```python
import torch

def _softmax(x, axis=-1):
    return torch.softmax(x, dim=axis)
def _gelu(x):
    return torch.nn.functional.gelu(x, approximate="tanh")
def _silu(x):
    return torch.nn.functional.silu(x)
def _sigmoid(x):
    return torch.sigmoid(x)
def _layernorm(x, axis=-1, eps=1e-5):
    m = x.mean(dim=axis, keepdim=True)
    v = x.var(dim=axis, keepdim=True, unbiased=False)
    return (x - m) / torch.sqrt(v + eps)
def _scatter_add(tgt, idx, src, axis=0):
    return tgt.clone().index_add_(axis, idx, src)
def _segment_sum(src, seg, n):
    out = torch.zeros((n,) + src.shape[1:], dtype=src.dtype)
    return out.index_add_(0, seg, src)
def _pad(x, pw):
    flat = tuple(v for pair in reversed(pw) for v in pair)
    return torch.nn.functional.pad(x, flat)

kernel_name = 'recurrent_scan__gqa_block_cached__mixer_token_mlp__decode'

def setup_inputs():

    _w = (lambda a: (lambda t: t.to(torch.bfloat16) if t.is_floating_point() else t)(torch.as_tensor(a)))
    def _A_setup():
        B, Sq, D = 4, 1, 576
        Hq, Hkv, Sk, Dh = 32, 16, 8192, 128
        assert Hq % Hkv == 0, (Hq, Hkv)
        return {
            "x": _w((lambda *s: torch.randn(*s, dtype=torch.bfloat16) * 0.05)(B, Sq, D)),
            "k_cache": _w((lambda *s: torch.randn(*s, dtype=torch.bfloat16) * 1.6)(B, Hkv, Sk, Dh)),
            "v_cache": _w((lambda *s: torch.randn(*s, dtype=torch.bfloat16) * 1.6)(B, Hkv, Sk, Dh)),
            "wq": _w((lambda *s: torch.randn(*s, dtype=torch.bfloat16) * 1.6)(D, Hq * Dh) * (D ** -0.5)),
            "wo": _w((lambda *s: torch.randn(*s, dtype=torch.bfloat16) * 1.6)(Hq * Dh, D) * ((Hq * Dh) ** -0.5)),
        }
    _A_in = _A_setup()

    def _B_setup():
        B, S, D, F = 4, 1, 576, 4608
        return {
            "x": _w((lambda *s: torch.randn(*s, dtype=torch.bfloat16) * 0.05)(B, S, D)),
            "w1": _w((lambda *s: torch.randn(*s, dtype=torch.bfloat16) * 0.2)(S, F) * (S ** -0.5)),
            "b1": _w((lambda *s: torch.randn(*s, dtype=torch.bfloat16) * 0.2)(F) * 0.02),
            "w2": _w((lambda *s: torch.randn(*s, dtype=torch.bfloat16) * 0.2)(F, S) * (F ** -0.5)),
            "b2": _w((lambda *s: torch.randn(*s, dtype=torch.bfloat16) * 0.2)(S) * 0.02),
        }
    _B_in = _B_setup()

    return {
        "A_x": _A_in["x"],
        "A_k_cache": _A_in["k_cache"],
        "A_v_cache": _A_in["v_cache"],
        "A_wq": _A_in["wq"],
        "A_wo": _A_in["wo"],
        "B_x": _B_in["x"],
        "B_w1": _B_in["w1"],
        "B_b1": _B_in["b1"],
        "B_w2": _B_in["w2"],
        "B_b2": _B_in["b2"],
    }

def reference(A_x, A_k_cache, A_v_cache, A_wq, A_wo, B_x, B_w1, B_b1, B_w2, B_b2):
    def _A_ref(x, k_cache, v_cache, wq, wo):
        B, Sq, D = x.shape
        Hq, Dh = 32, 128
        Hkv = k_cache.shape[1]
        rep = Hq // Hkv
        q = (lambda x, *d: x.permute(*d))((x @ wq).reshape(B, Sq, Hq, Dh), 0, 2, 1, 3)
        k = (lambda x, n, axis: torch.repeat_interleave(x, n, dim=axis))(k_cache, rep, axis=1)
        v = (lambda x, n, axis: torch.repeat_interleave(x, n, dim=axis))(v_cache, rep, axis=1)
        scores = torch.einsum("bhqd,bhkd->bhqk", q, k) * (Dh ** -0.5)
        p = _softmax(scores, axis=-1)
        o = torch.einsum("bhqk,bhkd->bhqd", p, v)
        return (lambda x, *d: x.permute(*d))(o, 0, 2, 1, 3).reshape(B, Sq, Hq * Dh) @ wo

    def _B_ref(x, w1, b1, w2, b2):
        B, S, D = x.shape
        h = _layernorm(x, axis=-1)
        u = torch.einsum("bsd,sf->bdf", h, w1) + b1
        u = _gelu(u)
        y = torch.einsum("bdf,fs->bds", u, w2) + b2
        return (lambda x, *d: x.permute(*d))(y, 0, 2, 1)

    x = A_x
    xn = _layernorm(x, axis=-1)
    s = _A_ref(xn, A_k_cache, A_v_cache, A_wq, A_wo)
    g = _silu(_B_ref(xn, B_w1, B_b1, B_w2, B_b2))
    return x + s * g
```

```python
import re
TRANS = ("v_exp_f32","v_rcp_f32","v_rsq_f32","v_sqrt_f32","v_log_f32","v_sin_f32","v_cos_f32")
def regs_of(op):
    op = op.strip()
    op = op.lstrip('-')
    m = re.fullmatch(r"abs\((.*)\)", op)
    if m: op = m.group(1)
    op = op.strip('|')
    if op == 'vcc': return [('s',106),('s',107)]
    if op == 'exec': return [('s',126),('s',127)]
    m = re.fullmatch(r"([vs])(\d+)", op)
    if m: return [(m.group(1), int(m.group(2)))]
    m = re.fullmatch(r"([vs])\[(\d+):(\d+)\]", op)
    if m: return [(m.group(1), i) for i in range(int(m.group(2)), int(m.group(3))+1)]
    return []

class Asm:
    def __init__(self):
        self.lines=[]
        self.pos=0
        self.vw={}
        self.sw={}
        self.st={}
        self.vm=[]
        self.ninstr=0
    def raw(self, s):
        self.lines.append(s)
    def comment(self, s):
        self.lines.append("  ; "+s)
    def label(self, l):
        self.lines.append(l+":")
        self.nop(5)
    def nop(self, n):
        while n>0:
            k=min(n,16)
            self.lines.append(f"  s_nop {k-1}")
            self.pos+=k; n-=k
    def _need(self, need):
        if need>0: self.nop(need)
    def I(self, mn, *ops, mod=""):
        ops=[str(o) for o in ops]
        isv = mn.startswith("v_")
        isvm = mn.startswith("buffer_") or mn.startswith("global_")
        isds = mn.startswith("ds_")
        reads=[]; writes=[]
        base = mn.replace("_dpp","").replace("_e32","").replace("_e64","").replace("_sdwa","")
        if isv:
            if base.startswith("v_permlane") and "swap" in base:
                reads = regs_of(ops[0])+regs_of(ops[1]); writes=list(reads)
            elif base.startswith("v_cmp"):
                writes = regs_of(ops[0]); reads = sum((regs_of(o) for o in ops[1:]),[])
            else:
                writes = regs_of(ops[0]); reads = sum((regs_of(o) for o in ops[1:]),[])
                if base in ("v_fmac_f32","v_dot2c_f32_bf16","v_writelane_b32"): reads += regs_of(ops[0])
                if base=="v_cndmask_b32" and len(ops)==3: reads += regs_of("vcc")
                if mn.endswith("_dpp"): reads += regs_of(ops[0])
        elif isvm:
            if "load" in mn:
                writes = regs_of(ops[0]); reads = sum((regs_of(o) for o in ops[1:]),[])
            else:
                reads = sum((regs_of(o) for o in ops),[])
        elif isds:
            if "read" in mn or "permute" in mn or "swizzle" in mn:
                writes = regs_of(ops[0]); reads = sum((regs_of(o) for o in ops[1:]),[])
            else:
                reads = sum((regs_of(o) for o in ops),[])
        else:
            reads = sum((regs_of(o) for o in ops[1:]),[]) if ops else []
            writes = regs_of(ops[0]) if ops else []
        need=0
        def dist(p): return self.pos - p - 1
        isdpp = mn.endswith("_dpp")
        isperml = base.startswith("v_permlane")
        isrl = base in ("v_readlane_b32","v_readfirstlane_b32")
        isdot = base.startswith("v_dot2")
        for idx,(k,n) in enumerate(reads):
            if k=='v' and n in self.vw:
                p,kind,opc = self.vw[n]
                d=dist(p)
                if kind!='mem':
                    if isdpp: need=max(need,2-d)
                    if isperml: need=max(need,2-d)
                    if isrl: need=max(need,1-d)
                if kind=='trans' and base not in TRANS: need=max(need,1-d)
                if kind=='dot':
                    srcC = isdot and opc==base and ((base=="v_dot2c_f32_bf16" and (k,n) in regs_of(ops[0]) and (k,n) not in regs_of(ops[1])+regs_of(ops[2])) or (base=="v_dot2_f32_bf16" and (k,n) in regs_of(ops[3]) and (k,n) not in regs_of(ops[1])+regs_of(ops[2])))
                    if not srcC: need=max(need,3-d)
            if k=='s' and n in self.sw:
                d=dist(self.sw[n])
                if isv:
                    if isrl or base=="v_writelane_b32": need=max(need,4-d)
                    else: need=max(need,2-d)
                elif isvm: need=max(need,5-d)
                else: need=max(need,1-d)
        for (k,n) in writes:
            if k=='v':
                if n in self.st:
                    d=dist(self.st[n]); need=max(need,(2 if isv else 1)-d)
                if n in self.vw:
                    p,kind,opc=self.vw[n]
                    if kind=='dot' and not (isdot and opc==base): need=max(need,3-dist(p))
        self._need(need)
        txt = "  "+mn+" "+", ".join(ops)+((" "+mod) if mod else "")
        self.lines.append(txt)
        self.ninstr+=1
        kind = 'trans' if base in TRANS else ('dot' if isdot else ('valu' if isv else 'mem'))
        for (k,n) in writes:
            if k=='v': self.vw[n]=(self.pos,kind,base)
            elif k=='s':
                if isv: self.sw[n]=self.pos
                else: self.sw.pop(n,None)
        if isvm and "store" in mn and ("x4" in mn or "x3" in mn):
            for (k,n) in regs_of(ops[0]):
                self.st[n]=self.pos
        self.pos+=1
    def vm_issue(self, tag):
        self.vm.append(tag)
        assert len(self.vm)<=63, "too many outstanding vmem"
    def vm_wait(self, tag):
        idx=[i for i,t in enumerate(self.vm) if t==tag]
        if not idx: return
        last=idx[-1]
        n=len(self.vm)-1-last
        self.I("s_waitcnt", f"vmcnt({n})")
        self.vm=self.vm[last+1:]
    def vm_wait_all(self):
        self.I("s_waitcnt","vmcnt(0)")
        self.vm=[]
    def lgkm(self, n=0):
        self.I("s_waitcnt", f"lgkmcnt({n})")
    def text(self):
        return "\n".join(self.lines)+"\n"
```

```python
import sys, struct
sys.path.insert(0, 'gen')
from asmlib import Asm

def f32(x): return "0x%08x" % struct.unpack('<I', struct.pack('<f', x))[0]
LOG2E = 1.4426950408889634
SCALE = 0.08838834764831845
C0 = 2*0.7978845608028654*LOG2E
C1 = C0*0.044715

OPT = dict(gate_per_tile=2, gate_start=1, wo_start=6, wo_per_tile=6, nt_w=False, fused=False)
for arg in sys.argv[2:]:
    k, v = arg.split('=')
    OPT[k] = int(v)

L_XN = 0; L_QP = 2048; L_QS = 10240; L_GP = 14336; L_OP = 16384; L_ML = 24576; L_ML2 = 24576+128; L_TP = 25600
LDS_SIZE = 25600 + 8*2304
TSTRIDE = 5120
G_OFF = 0x200000

a = Asm()
I = a.I
S_K, S_V, S_WQ, S_WO, S_X, S_M1, S_WS, S_M2 = 4, 8, 12, 16, 20, 24, 28, 32
P_X, P_K, P_V, P_WQ, P_WO, P_W1, P_B1, P_W2, P_B2, P_OUT, P_DBG, P_WS = 36, 38, 40, 42, 44, 48, 50, 52, 54, 56, 58, 60
sKVH, sSPLIT, sB, sP, sW, sT0, sT1 = 62, 63, 80, 81, 82, 83, 84
sH = 64
sSELLO, sSELHI, sMASK, sSCALE, sLOG2E, sBP = 85, 86, 87, 88, 89, 90
sM3 = 92
def sr(n): return f"s[{n}:{n+3}]"
def vr(n, k=4): return f"v[{n}:{n+k-1}]"
def v(n): return f"v{n}"
def s(n): return f"s{n}"

def srd(dst, ptr, off, records):
    if off is None:
        I("s_mov_b32", s(dst), s(ptr)); I("s_mov_b32", s(dst+1), s(ptr+1))
    else:
        I("s_add_u32", s(dst), s(ptr), off); I("s_addc_u32", s(dst+1), s(ptr+1), 0)
    I("s_mov_b32", s(dst+2), records); I("s_mov_b32", s(dst+3), "0x20000")

DPPALL = "row_mask:0xf bank_mask:0xf"
def allred(op, x, t, rows=True):
    if rows:
        for n in (8, 4, 2, 1):
            I(op+"_dpp", v(x), v(x), v(x), mod=f"row_ror:{n} {DPPALL}")
    I("v_mov_b32", v(t), v(x)); I("v_permlane16_swap_b32", v(x), v(t)); I(op, v(x), v(x), v(t))
    I("v_mov_b32", v(t), v(x)); I("v_permlane32_swap_b32", v(x), v(t)); I(op, v(x), v(x), v(t))

def bfr1(x):
    I("v_cvt_pk_bf16_f32", v(x), v(x), v(x)); I("v_and_b32", v(x), s(sMASK), v(x))
def bfr2(x, y, w):
    I("v_cvt_pk_bf16_f32", v(w), v(x), v(y)); I("v_lshlrev_b32", v(x), 16, v(w)); I("v_and_b32", v(y), s(sMASK), v(w))

def layernorm(X, O, T):
    sm, tt, mean, var, den, rc = T[:6]
    I("v_add_f32", v(sm), v(X[0]), v(X[1]))
    for k in range(2, 9): I("v_add_f32", v(sm), v(sm), v(X[k]))
    allred("v_add_f32", sm, tt)
    I("v_mul_f32", v(mean), f32(1.0/576), v(sm))
    for k in range(9): I("v_sub_f32", v(O[k]), v(X[k]), v(mean))
    I("v_mul_f32", v(var), v(O[0]), v(O[0]))
    for k in range(1, 9): I("v_fmac_f32", v(var), v(O[k]), v(O[k]))
    allred("v_add_f32", var, tt)
    I("v_mul_f32", v(var), f32(1.0/576), v(var))
    bfr2(mean, var, tt)
    I("v_add_f32", v(var), f32(1e-5), v(var)); bfr1(var)
    I("v_sqrt_f32", v(den), v(var)); bfr1(den)
    I("v_rcp_f32", v(rc), v(den))
    for k in range(9): I("v_sub_f32", v(O[k]), v(X[k]), v(mean))
    for k in range(0, 8, 2): bfr2(O[k], O[k+1], tt)
    bfr1(O[8])
    for k in range(9):
        I("v_mul_f32", v(sm), v(O[k]), v(rc))
        I("v_fma_f32", v(tt), "-"+v(sm), v(den), v(O[k]))
        I("v_fma_f32", v(O[k]), v(tt), v(rc), v(sm))
    for k in range(0, 8, 2): bfr2(O[k], O[k+1], tt)
    bfr1(O[8])

vTID, vLANE, vKOFF, vM, vL = 0, 1, 2, 3, 4
vT = [5, 6, 7]
vQ = 8
vACC = 16
vS = 32
vP = 40
BIG = 48
KB = [192, 224]; VB = [208, 240]
NT = "nt"
WMOD = "nt" if OPT['nt_w'] else ""

def issue_tile(kind, n):
    base = (KB if kind == 'K' else VB)[n & 1]
    srdn = S_K if kind == 'K' else S_V
    I("s_mov_b32", s(sT0), n*32768)
    for i in range(4):
        I("buffer_load_dwordx4", vr(base+4*i), v(vKOFF), sr(srdn), s(sT0), mod=f"offen offset:{i*1024} {NT}")
        a.vm_issue(f"{kind}{n}")

name = "recurrent_scan__gqa_block_cached__mixer_token_mlp__decode"
K1 = "attn_main_kernel"; K2 = "attn_fin_kernel"

def k1():
    a.raw(f".globl {K1}\n.p2align 8\n.type {K1},@function\n{K1}:")
    I("s_cmp_ge_u32", "s2", 256); I("s_cbranch_scc1", "K1_END")
    I("s_load_dwordx16", "s[36:51]", "s[0:1]", 0)
    I("s_load_dwordx8", "s[52:59]", "s[0:1]", 64)
    I("s_load_dwordx2", "s[60:61]", "s[0:1]", 96)
    I("s_and_b32", s(sKVH), "s2", 7); I("s_lshl_b32", s(sKVH), s(sKVH), 1)
    I("s_bfe_u32", s(sT0), "s2", (1 << 16) | 3); I("s_or_b32", s(sKVH), s(sKVH), s(sT0))
    I("s_bfe_u32", s(sSPLIT), "s2", (2 << 16) | 4)
    I("s_lshr_b32", s(sB), "s2", 6)
    I("s_lshl_b32", s(sP), s(sKVH), 2); I("s_or_b32", s(sP), s(sP), s(sSPLIT))
    I("s_lshl_b32", s(sBP), s(sB), 6); I("s_or_b32", s(sBP), s(sBP), s(sP))
    I("s_mov_b32", s(sSELLO), "0x05040100"); I("s_mov_b32", s(sSELHI), "0x07060302")
    I("s_mov_b32", s(sMASK), "0xffff0000"); I("s_mov_b32", s(sSCALE), f32(SCALE)); I("s_mov_b32", s(sLOG2E), f32(LOG2E))
    I("v_and_b32", v(vLANE), 63, v(vTID))
    I("v_lshrrev_b32", v(5), 6, v(vTID))
    I("v_readfirstlane_b32", s(sW), v(5))
    I("v_lshlrev_b32", v(vKOFF), 4, v(vLANE)); I("v_lshl_add_u32", v(vKOFF), v(5), 12, v(vKOFF))
    I("v_mul_u32_u24", v(6), 18, v(vLANE))
    I("v_lshrrev_b32", v(7), 5, v(vTID))
    I("v_mul_u32_u24", v(7), 36*8192, v(7))
    I("v_and_b32", v(40), 31, v(vTID)); I("v_lshl_add_u32", v(7), v(40), 4, v(7))
    a.lgkm(0)
    I("s_mul_i32", s(sT0), s(sB), 1152); srd(S_X, P_X, s(sT0), 1152)
    I("s_lshl_b32", s(sT0), s(sBP), 19)
    srd(S_K, P_K, s(sT0), 1 << 19); srd(S_V, P_V, s(sT0), 1 << 19)
    X = list(range(16, 25))
    for k in range(9):
        I("buffer_load_ushort", v(X[k]), v(6), sr(S_X), 0, mod=f"offen offset:{2*k}"); a.vm_issue("x")
    issue_tile('K', 0); issue_tile('V', 0)
    I("s_lshl_b32", s(sT0), s(sKVH), 9)
    I("s_sub_u32", s(sT1), 576*8192, s(sT0))
    I("s_add_u32", s(S_WQ), s(P_WQ), s(sT0)); I("s_addc_u32", s(S_WQ+1), s(P_WQ+1), 0)
    I("s_mov_b32", s(S_WQ+2), s(sT1)); I("s_mov_b32", s(S_WQ+3), "0x20000")
    for i in range(36):
        I("s_mov_b32", s(sT0), i*8192)
        I("buffer_load_dwordx4", vr(BIG+4*i), v(7), sr(S_WQ), s(sT0), mod=f"offen {WMOD}"); a.vm_issue(f"wq{i}")
    issue_tile('K', 1); issue_tile('V', 1)
    I("s_mul_i32", s(sT0), s(sKVH), 256*1152); srd(S_WO, P_WO, s(sT0), 256*1152)
    srd(S_M1, P_W1, None, 9216); srd(S_M2, P_B1, None, 9216); srd(sM3, P_W2, None, 9216)
    a.vm_wait("x")
    for k in range(9): I("v_lshlrev_b32", v(X[k]), 16, v(X[k]))
    XN = list(range(25, 34)); T = list(range(34, 40))
    layernorm(X, XN, T)
    for k in range(9):
        I("ds_write_b16_d16_hi", v(6), v(XN[k]), mod=f"offset:{L_XN+2*k}")
    H = X
    layernorm(XN, H, T)
    for k in range(9): I("v_readlane_b32", s(sH+k), v(H[k]), s(sP))
    I("v_lshrrev_b32", v(5), 5, v(vTID)); I("v_mul_u32_u24", v(5), 72, v(5))
    a.lgkm(0)
    XP = 16
    for k in range(9):
        I("ds_read_b64", vr(XP+2*k, 2), v(5), mod=f"offset:{L_XN+8*k}")
    QA = 34
    PT = [42, 43, 44, 45, 46, 47]
    a.lgkm(0)
    for ip in range(18):
        a.vm_wait(f"wq{2*ip+1}")
        w0 = BIG+8*ip; w1 = w0+4
        for half in range(2):
            for r in (2*half, 2*half+1):
                t0, t1 = PT[2*(r & 1)], PT[2*(r & 1)+1]
                I("v_perm_b32", v(t0), v(w1+r), v(w0+r), s(sSELLO))
                I("v_perm_b32", v(t1), v(w1+r), v(w0+r), s(sSELHI))
            for r in (2*half, 2*half+1):
                t0, t1 = PT[2*(r & 1)], PT[2*(r & 1)+1]
                if ip == 0:
                    I("v_dot2_f32_bf16", v(QA+2*r), v(t0), v(XP+ip), 0)
                    I("v_dot2_f32_bf16", v(QA+2*r+1), v(t1), v(XP+ip), 0)
                else:
                    I("v_dot2_f32_bf16", v(QA+2*r), v(t0), v(XP+ip), v(QA+2*r))
                    I("v_dot2_f32_bf16", v(QA+2*r+1), v(t1), v(XP+ip), v(QA+2*r+1))
    GR = 128
    gW1r, gB1r, gW2r = GR, GR+4, GR+8
    gW1x, gB1x, gW2x = GR+12, GR+13, GR+14
    I("v_lshlrev_b32", v(5), 4, v(vTID)); I("v_lshlrev_b32", v(6), 1, v(vTID))
    for (dst, dx, sd) in ((gW1r, gW1x, S_M1), (gB1r, gB1x, S_M2), (gW2r, gW2x, sM3)):
        I("buffer_load_dwordx4", vr(dst), v(5), sr(sd), 0, mod="offen"); a.vm_issue("gw")
        I("s_movk_i32", s(sT0), 8192)
        I("buffer_load_ushort", v(dx), v(6), sr(sd), s(sT0), mod="offen"); a.vm_issue("gw")
    for k in range(4):
        I("v_permlane32_swap_b32", v(QA+k), v(QA+k+4))
    for k in range(4):
        I("v_add_f32", v(QA+k), v(QA+k), v(QA+k+4))
    I("v_and_b32", v(5), 31, v(vLANE)); I("v_lshlrev_b32", v(5), 5, v(5))
    I("v_lshrrev_b32", v(6), 5, v(vLANE)); I("v_lshl_add_u32", v(5), v(6), 4, v(5))
    I("s_lshl_b32", s(sT0), s(sW), 10); I("v_add_u32", v(5), s(sT0), v(5))
    I("ds_write_b128", v(5), vr(QA), mod=f"offset:{L_QP}")
    a.lgkm(0)
    I("s_barrier")
    I("v_lshlrev_b32", v(5), 4, v(vLANE))
    for w in range(8):
        I("ds_read_b128", vr(BIG+4*w), v(5), mod=f"offset:{L_QP+1024*w}")
    a.lgkm(0)
    for st in (4, 2, 1):
        for w in range(st):
            for k in range(4):
                I("v_add_f32", v(BIG+4*w+k), v(BIG+4*w+k), v(BIG+4*(w+st)+k))
    I("v_cvt_pk_bf16_f32", v(BIG), v(BIG), v(BIG+1)); I("v_cvt_pk_bf16_f32", v(BIG+1), v(BIG+2), v(BIG+3))
    I("s_lshl_b32", s(sT0), s(sW), 9)
    I("v_lshlrev_b32", v(5), 3, v(vLANE)); I("v_add_u32", v(5), s(sT0), v(5))
    I("ds_write_b64", v(5), vr(BIG, 2), mod=f"offset:{L_QS}")
    I("v_and_b32", v(5), 15, v(vLANE)); I("v_lshlrev_b32", v(5), 4, v(5)); I("v_add_u32", v(5), s(sT0), v(5))
    a.lgkm(0)
    I("ds_read_b128", vr(vQ), v(5), mod=f"offset:{L_QS}")
    I("ds_read_b128", vr(vQ+4), v(5), mod=f"offset:{L_QS+256}")
    for k in range(16): I("v_mov_b32", v(vACC+k), 0)
    I("v_mov_b32", v(vM), f32(-1e30)); I("v_mov_b32", v(vL), 0)
    a.lgkm(0)

    gW1f = GR+16; gB1f = GR+25; gY = GR+34; gT = GR+43
    vC1 = GR+15
    def gate_prep():
        a.vm_wait("gw")
        I("v_mov_b32", v(vC1), f32(C1))
        for q in range(4):
            I("v_lshlrev_b32", v(gW1f+2*q), 16, v(gW1r+q)); I("v_and_b32", v(gW1f+2*q+1), s(sMASK), v(gW1r+q))
            I("v_lshlrev_b32", v(gB1f+2*q), 16, v(gB1r+q)); I("v_and_b32", v(gB1f+2*q+1), s(sMASK), v(gB1r+q))
        I("v_lshlrev_b32", v(gW1f+8), 16, v(gW1x)); I("v_lshlrev_b32", v(gB1f+8), 16, v(gB1x))
        I("v_lshlrev_b32", v(gW2x), 16, v(gW2x))
    def gelu_list(U, TT):
        for u, t in zip(U, TT): I("v_mul_f32", v(t), v(u), v(u))
        for u, t in zip(U, TT): I("v_fmaak_f32", v(t), v(t), v(vC1), f32(C0))
        for u, t in zip(U, TT): I("v_mul_f32", v(t), v(t), v(u))
        for u, t in zip(U, TT): I("v_exp_f32", v(t), "-"+v(t))
        for u, t in zip(U, TT): I("v_add_f32", v(t), 1.0, v(t))
        for u, t in zip(U, TT): I("v_rcp_f32", v(t), v(t))
        for u, t in zip(U, TT): I("v_mul_f32", v(u), v(u), v(t))
    def gate_col(k):
        for hh in range(2):
            U = [gT+i for i in range(4)]; TT = [gT+4+i for i in range(4)]; W = [gT+8, gT+9]
            for i in range(4): I("v_mul_f32", v(U[i]), s(sH+k), v(gW1f+4*hh+i))
            bfr2(U[0], U[1], W[0]); bfr2(U[2], U[3], W[1])
            for i in range(4): I("v_add_f32", v(U[i]), v(U[i]), v(gB1f+4*hh+i))
            bfr2(U[0], U[1], W[0]); bfr2(U[2], U[3], W[1])
            gelu_list(U, TT)
            I("v_cvt_pk_bf16_f32", v(W[0]), v(U[0]), v(U[1])); I("v_cvt_pk_bf16_f32", v(W[1]), v(U[2]), v(U[3]))
            I("v_dot2_f32_bf16", v(gY+k), v(W[0]), v(gW2r+2*hh), 0 if hh == 0 else v(gY+k))
            I("v_dot2_f32_bf16", v(gY+k), v(W[1]), v(gW2r+2*hh+1), v(gY+k))
    def gate_fin():
        for grp in ((0, 1, 2, 3), (4, 5, 6, 7), (8,)):
            n = len(grp)
            U = [gT+i for i in range(n)]; TT = [gT+4+i for i in range(n)]; W = [gT+8, gT+9]
            for i, k in enumerate(grp): I("v_mul_f32", v(U[i]), s(sH+k), v(gW1f+8))
            def rnd():
                if n == 4: bfr2(U[0], U[1], W[0]); bfr2(U[2], U[3], W[1])
                else: bfr1(U[0])
            rnd()
            for i in range(n): I("v_add_f32", v(U[i]), v(U[i]), v(gB1f+8))
            rnd()
            gelu_list(U, TT)
            rnd()
            for i, k in enumerate(grp): I("v_fmac_f32", v(gY+k), v(U[i]), v(gW2x))
        for n in (8, 4, 2, 1):
            for k in range(9):
                I("v_add_f32_dpp", v(gY+k), v(gY+k), v(gY+k), mod=f"row_ror:{n} {DPPALL}")
        for (sw) in ("v_permlane16_swap_b32", "v_permlane32_swap_b32"):
            for k in range(9): I("v_mov_b32", v(gT+k), v(gY+k))
            for k in range(9): I(sw, v(gY+k), v(gT+k))
            for k in range(9): I("v_add_f32", v(gY+k), v(gY+k), v(gT+k))
        I("s_lshl_b32", s(sT0), s(sW), 6); I("v_mov_b32", v(gT), s(sT0))
        for k in range(9):
            I("ds_write_b32", v(gT), v(gY+k), mod=f"offset:{L_GP+4*k}")

    wo_loads = [('m', k) for k in range(32)] + [('l', q) for q in range(4)]
    vWOM, vWOL = 46, 47
    def wo_addr():
        I("s_mul_i32", s(sT0), s(sW), 32*1152)
        I("v_lshlrev_b32", v(vWOM), 4, v(vLANE)); I("v_add_u32", v(vWOM), s(sT0), v(vWOM))
        I("v_lshrrev_b32", v(5), 3, v(vLANE)); I("v_mul_u32_u24", v(5), 4*1152, v(5))
        I("v_and_b32", v(6), 7, v(vLANE)); I("v_lshl_add_u32", v(5), v(6), 4, v(5))
        I("s_add_u32", s(sT0), s(sT0), 1024); I("v_add_u32", v(vWOL), s(sT0), v(5))
    def wo_issue(idx):
        kind, k = wo_loads[idx]
        if kind == 'm':
            I("s_mov_b32", s(sT1), (k//3)*3456)
            I("buffer_load_dwordx4", vr(BIG+4*k), v(vWOM), sr(S_WO), s(sT1), mod=f"offen offset:{(k%3)*1152} {WMOD}")
        else:
            I("buffer_load_dwordx4", vr(BIG+128+4*k), v(vWOL), sr(S_WO), 0, mod=f"offen offset:{k*1152} {WMOD}")
        a.vm_issue(f"wo{idx}")
    WP = {}
    free = [45]
    def wo_perm(pair):
        a.vm_wait(f"wo{2*pair+1}")
        r0 = BIG+8*pair; r1 = r0+4
        for r in range(4):
            f = free.pop()
            I("v_perm_b32", v(f), v(r1+r), v(r0+r), s(sSELLO))
            I("v_perm_b32", v(r1+r), v(r1+r), v(r0+r), s(sSELHI))
            WP[(pair, 2*r)] = f; WP[(pair, 2*r+1)] = r1+r
            free.append(r0+r)
    wo_addr()

    gate_next = 0; wo_next = 0; perm_next = 0
    gate_done = False
    PTm = [40, 41, 42, 43]; vPP = 44
    for n in range(16):
        kb = KB[n & 1]; vb = VB[n & 1]
        a.vm_wait(f"K{n}")
        for r in range(4):
            for i in range(4):
                for h in range(2):
                    d = vS+4*h+i
                    I("v_dot2_f32_bf16", v(d), v(kb+4*i+r), v(vQ+4*h+r), 0 if r == 0 else v(d))
        if n+2 < 16: issue_tile('K', n+2)
        for h in range(2):
            for e in range(2):
                d = vS+4*h+e
                I("v_add_f32_dpp", v(d), v(d), v(d), mod="row_ror:8 row_mask:0xf bank_mask:0x3")
        for h in range(2):
            for e in range(2):
                d = vS+4*h+e; sft = vS+4*h+2+e
                I("v_add_f32_dpp", v(d), v(sft), v(sft), mod="row_ror:8 row_mask:0xf bank_mask:0xc")
        for e in range(2):
            d = vS+e
            I("v_add_f32_dpp", v(d), v(d), v(d), mod="row_shl:4 row_mask:0xf bank_mask:0x5")
        for e in range(2):
            d = vS+e; sft = vS+4+e
            I("v_add_f32_dpp", v(d), v(sft), v(sft), mod="row_shr:4 row_mask:0xf bank_mask:0xa")
        for qp in ("[1,0,3,2]", "[2,3,0,1]"):
            for e in range(2):
                d = vS+e
                I("v_add_f32_dpp", v(d), v(d), v(d), mod=f"quad_perm:{qp} {DPPALL}")
        A, B, W, TM, AL = vS, vS+1, vS+2, vS+3, vS+4
        bfr2(A, B, W)
        I("v_mul_f32", v(A), s(sSCALE), v(A)); I("v_mul_f32", v(B), s(sSCALE), v(B))
        bfr2(A, B, W)
        I("v_max_f32", v(TM), v(A), v(B))
        I("v_max_f32_dpp", v(TM), v(TM), v(TM), mod=f"row_ror:8 {DPPALL}")
        I("v_mul_f32", v(TM), s(sLOG2E), v(TM))
        I("v_max_f32", v(TM), v(TM), v(vM))
        I("v_sub_f32", v(AL), v(vM), v(TM))
        I("v_fma_f32", v(A), v(A), s(sLOG2E), "-"+v(TM))
        I("v_fma_f32", v(B), v(B), s(sLOG2E), "-"+v(TM))
        I("v_exp_f32", v(AL), v(AL)); I("v_exp_f32", v(A), v(A)); I("v_exp_f32", v(B), v(B))
        I("v_mov_b32", v(vM), v(TM))
        I("v_fma_f32", v(vL), v(vL), v(AL), v(A))
        I("v_cvt_pk_bf16_f32", v(vPP), v(A), v(B))
        I("v_add_f32", v(vL), v(vL), v(B))
        for h in range(2):
            for k in range(8):
                d = vACC+8*h+k
                I("v_mul_f32_dpp", v(d), v(AL), v(d), mod=f"row_newbcast:{4*h} {DPPALL}")
        a.vm_wait(f"V{n}")
        for j in range(2):
            for rr in range(2):
                for r in (2*rr, 2*rr+1):
                    t0, t1 = PTm[2*(r & 1)], PTm[2*(r & 1)+1]
                    I("v_perm_b32", v(t0), v(vb+4*(2*j+1)+r), v(vb+4*(2*j)+r), s(sSELLO))
                    I("v_perm_b32", v(t1), v(vb+4*(2*j+1)+r), v(vb+4*(2*j)+r), s(sSELHI))
                for h in range(2):
                    for r in (2*rr, 2*rr+1):
                        t0, t1 = PTm[2*(r & 1)], PTm[2*(r & 1)+1]
                        I("v_dot2c_f32_bf16_dpp", v(vACC+8*h+2*r), v(vPP), v(t0), mod=f"row_newbcast:{4*(2*j+h)} {DPPALL}")
                        I("v_dot2c_f32_bf16_dpp", v(vACC+8*h+2*r+1), v(vPP), v(t1), mod=f"row_newbcast:{4*(2*j+h)} {DPPALL}")
        if n+2 < 16: issue_tile('V', n+2)
        if n >= OPT['gate_start'] and not gate_done:
            if gate_next == 0: gate_prep()
            for _ in range(OPT['gate_per_tile']):
                if gate_next < 9:
                    gate_col(gate_next); gate_next += 1
            if gate_next == 9:
                gate_fin(); gate_done = True
        elif n >= OPT['wo_start']:
            assert gate_done
            lim = max(0, wo_next - 2*OPT['wo_per_tile'])
            while perm_next < 18 and 2*perm_next+1 < lim:
                wo_perm(perm_next); perm_next += 1
            for _ in range(OPT['wo_per_tile']):
                if wo_next < 36:
                    wo_issue(wo_next); wo_next += 1
            if wo_next == 36 and n >= 14:
                while perm_next < 18:
                    wo_perm(perm_next); perm_next += 1
    assert wo_next == 36 and perm_next == 18, (wo_next, perm_next)

    T0, T1, T2 = vS, vS+1, vS+2
    I("v_add_f32_dpp", v(vL), v(vL), v(vL), mod=f"row_ror:8 {DPPALL}")
    I("v_mov_b32", v(T0), v(vM))
    allred("v_max_f32", T0, T1, rows=False)
    I("v_sub_f32", v(T2), v(vM), v(T0)); I("v_exp_f32", v(T2), v(T2))
    I("v_mul_f32", v(vL), v(vL), v(T2))
    for h in range(2):
        for k in range(8):
            d = vACC+8*h+k
            I("v_mul_f32_dpp", v(d), v(T2), v(d), mod=f"row_newbcast:{4*h} {DPPALL}")
    allred("v_add_f32", vL, T1, rows=False)
    for k in range(8): I("v_permlane32_swap_b32", v(vACC+k), v(vACC+8+k))
    for k in range(8): I("v_add_f32", v(vACC+k), v(vACC+k), v(vACC+8+k))
    for k in range(4): I("v_permlane16_swap_b32", v(vACC+k), v(vACC+4+k))
    for k in range(4): I("v_add_f32", v(vACC+k), v(vACC+k), v(vACC+4+k))
    I("v_and_b32", v(5), 15, v(vLANE)); I("v_lshlrev_b32", v(5), 5, v(5))
    I("v_bfe_u32", v(6), v(vLANE), 4, 1); I("v_lshl_add_u32", v(5), v(6), 4, v(5))
    I("v_lshrrev_b32", v(6), 5, v(vLANE)); I("v_lshl_add_u32", v(5), v(6), 9, v(5))
    I("s_lshl_b32", s(sT0), s(sW), 10); I("v_add_u32", v(5), s(sT0), v(5))
    I("ds_write_b128", v(5), vr(vACC), mod=f"offset:{L_OP}")
    I("v_bfe_u32", v(6), v(vLANE), 2, 1); I("v_lshlrev_b32", v(6), 5, v(6))
    I("s_lshl_b32", s(sT0), s(sW), 2); I("v_add_u32", v(6), s(sT0), v(6))
    I("ds_write_b32", v(6), v(T0), mod=f"offset:{L_ML}")
    I("ds_write_b32", v(6), v(vL), mod=f"offset:{L_ML+64}")
    a.lgkm(0)
    I("s_barrier")
    R = 192
    I("v_lshrrev_b32", v(5), 3, v(vLANE)); I("v_lshlrev_b32", v(5), 4, v(5))
    I("s_lshl_b32", s(sT0), s(sW), 7); I("v_add_u32", v(5), s(sT0), v(5))
    I("s_lshr_b32", s(sT1), s(sW), 2); I("s_lshl_b32", s(sT1), s(sT1), 5); I("v_mov_b32", v(6), s(sT1))
    MM = R+32; LL = R+40
    I("ds_read_b128", vr(MM), v(6), mod=f"offset:{L_ML}"); I("ds_read_b128", vr(MM+4), v(6), mod=f"offset:{L_ML+16}")
    I("ds_read_b128", vr(LL), v(6), mod=f"offset:{L_ML+64}"); I("ds_read_b128", vr(LL+4), v(6), mod=f"offset:{L_ML+80}")
    for w in range(8):
        I("ds_read_b128", vr(R+4*w), v(5), mod=f"offset:{L_OP+1024*w}")
    a.lgkm(10)
    MX = vS; LS = vS+1; O = vS+2
    I("v_max3_f32", v(MX), v(MM), v(MM+1), v(MM+2)); I("v_max3_f32", v(MX), v(MX), v(MM+3), v(MM+4))
    I("v_max3_f32", v(MX), v(MX), v(MM+5), v(MM+6)); I("v_max_f32", v(MX), v(MX), v(MM+7))
    for w in range(8): I("v_sub_f32", v(MM+w), v(MM+w), v(MX))
    for w in range(8): I("v_exp_f32", v(MM+w), v(MM+w))
    a.lgkm(8)
    I("v_mul_f32", v(LS), v(MM), v(LL))
    for w in range(1, 8): I("v_fmac_f32", v(LS), v(MM+w), v(LL+w))
    a.lgkm(0)
    for w in range(8):
        for q in range(4):
            if w == 0: I("v_mul_f32", v(O+q), v(MM), v(R+q))
            else: I("v_fmac_f32", v(O+q), v(MM+w), v(R+4*w+q))
    P01, P23 = vS+6, vS+7
    I("v_cvt_pk_bf16_f32", v(P01), v(O), v(O+1)); I("v_cvt_pk_bf16_f32", v(P23), v(O+2), v(O+3))
    for rr in range(8):
        I("v_readlane_b32", s(sH+2*rr), v(P01), 8*rr); I("v_readlane_b32", s(sH+2*rr+1), v(P23), 8*rr)
    I("s_lshr_b32", s(sT1), s(sW), 2); I("s_lshl_b32", s(sT1), s(sT1), 3); I("v_mov_b32", v(6), s(sT1))
    I("ds_write_b64", v(6), vr(MX, 2), mod=f"offset:{L_ML2}")
    TL = vACC+8; TMn = vACC
    for c in range(8): I("v_dot2_f32_bf16", v(TL+c), v(WP[(16, c)]), v(P01), 0)
    for c in range(8): I("v_dot2_f32_bf16", v(TL+c), v(WP[(17, c)]), v(P23), v(TL+c))
    for k in range(16):
        for c in range(8):
            I("v_dot2_f32_bf16", v(TMn+c), v(WP[(k, c)]), s(sH+k), 0 if k == 0 else v(TMn+c))
    for k in range(4): I("v_permlane32_swap_b32", v(TL+k), v(TL+4+k))
    for k in range(4): I("v_add_f32", v(TL+k), v(TL+k), v(TL+4+k))
    for k in range(2): I("v_permlane16_swap_b32", v(TL+k), v(TL+2+k))
    for k in range(2): I("v_add_f32", v(TL+k), v(TL+k), v(TL+2+k))
    I("v_add_f32_dpp", v(TL), v(TL), v(TL), mod="row_ror:8 row_mask:0xf bank_mask:0x3")
    I("v_add_f32_dpp", v(TL), v(TL+1), v(TL+1), mod="row_ror:8 row_mask:0xf bank_mask:0xc")
    I("s_mul_i32", s(sT0), s(sW), 2304)
    I("v_and_b32", v(5), 7, v(vLANE)); I("v_lshlrev_b32", v(5), 5, v(5))
    I("v_lshrrev_b32", v(6), 3, v(vLANE)); I("v_lshl_add_u32", v(5), v(6), 2, v(5)); I("v_add_u32", v(5), s(sT0), v(5))
    I("v_lshlrev_b32", v(6), 5, v(vLANE)); I("v_add_u32", v(6), s(sT0), v(6))
    I("ds_write_b128", v(6), vr(TMn), mod=f"offset:{L_TP}")
    I("ds_write_b128", v(6), vr(TMn+4), mod=f"offset:{L_TP+16}")
    I("ds_write_b32", v(5), v(TL), mod=f"offset:{L_TP+2048}")
    I("s_mul_i32", s(sT0), s(sBP), TSTRIDE); srd(S_WS, P_WS, s(sT0), TSTRIDE)
    a.lgkm(0)
    I("s_barrier")
    I("s_cmp_ge_u32", s(sW), 5); I("s_cbranch_scc1", "K1_W5")
    I("v_cmp_gt_u32", "vcc", 288, v(vTID)); I("s_and_saveexec_b64", "s[96:97]", "vcc")
    I("v_lshlrev_b32", v(5), 4, v(vTID))
    I("v_cmp_le_u32", "vcc", 144, v(vTID)); I("v_mov_b32", v(7), 6912); I("v_cndmask_b32", v(6), 0, v(7), "vcc")
    I("v_add_u32", v(6), v(6), v(5))
    for w in range(4): I("ds_read_b128", vr(R+4*w), v(6), mod=f"offset:{L_TP+2304*w}")
    a.lgkm(0)
    for k in range(4):
        I("v_add_f32", v(R+k), v(R+k), v(R+4+k)); I("v_add_f32", v(R+8+k), v(R+8+k), v(R+12+k))
    for k in range(4): I("v_add_f32", v(R+k), v(R+k), v(R+8+k))
    I("buffer_store_dwordx4", vr(R), v(5), sr(S_WS), 0, mod="offen")
    I("s_branch", "K1_END")
    a.label("K1_W5")
    I("s_cmp_lg_u32", s(sW), 5); I("s_cbranch_scc1", "K1_W6")
    I("s_mov_b64", "exec", 1)
    I("v_mov_b32", v(5), 0)
    I("ds_read_b128", vr(R), v(5), mod=f"offset:{L_ML2}")
    a.lgkm(0)
    I("buffer_store_dwordx4", vr(R), v(5), sr(S_WS), 0, mod="offen offset:4608-4095+4095" if False else "offen offset:0" if False else "offen")
    a.lines.pop()
    I("s_movk_i32", s(sT0), 4608)
    I("buffer_store_dwordx4", vr(R), v(5), sr(S_WS), s(sT0), mod="offen")
    I("s_branch", "K1_END")
    a.label("K1_W6")
    I("s_cmp_lg_u32", s(sW), 6); I("s_cbranch_scc1", "K1_END")
    I("s_mov_b64", "exec", 0x1ff)
    srd(S_M1, P_B2, None, 2)
    I("v_mov_b32", v(7), 0)
    I("buffer_load_ushort", v(R+8), v(7), sr(S_M1), 0, mod="offen")
    I("v_lshlrev_b32", v(5), 2, v(vLANE))
    for w in range(8): I("ds_read_b32", v(R+w), v(5), mod=f"offset:{L_GP+64*w}")
    a.lgkm(0)
    for st in (4, 2, 1):
        for w in range(st): I("v_add_f32", v(R+w), v(R+w), v(R+w+st))
    bfr1(R)
    I("s_waitcnt", "vmcnt(0)")
    I("v_lshlrev_b32", v(R+8), 16, v(R+8))
    I("v_add_f32", v(R), v(R), v(R+8)); bfr1(R)
    I("v_mul_f32", v(R+1), s(sLOG2E), v(R)); I("v_exp_f32", v(R+1), "-"+v(R+1))
    I("v_add_f32", v(R+1), 1.0, v(R+1)); I("v_rcp_f32", v(R+2), v(R+1))
    I("v_mul_f32", v(R+3), v(R), v(R+2))
    I("v_fma_f32", v(R+4), "-"+v(R+3), v(R+1), v(R)); I("v_fma_f32", v(R+3), v(R+4), v(R+2), v(R+3))
    bfr1(R+3)
    I("s_mul_i32", s(sT0), s(sBP), 36); I("s_add_u32", s(sT0), s(sT0), G_OFF)
    srd(S_M2, P_WS, s(sT0), 36)
    I("buffer_store_dword", v(R+3), v(5), sr(S_M2), 0, mod="offen")
    a.label("K1_END")
    I("s_endpgm")

def k2():
    a.raw(f".globl {K2}\n.p2align 8\n.type {K2},@function\n{K2}:")
    a.vm = []
    I("s_cmp_ge_u32", "s2", 256); I("s_cbranch_scc1", "K2_END")
    I("s_load_dwordx2", "s[36:37]", "s[0:1]", 0)
    I("s_load_dwordx2", "s[56:57]", "s[0:1]", 80)
    I("s_load_dwordx2", "s[60:61]", "s[0:1]", 96)
    I("s_mov_b32", s(sMASK), "0xffff0000")
    I("s_lshr_b32", s(sB), "s2", 6); I("s_and_b32", s(sP), "s2", 63)
    I("v_mul_u32_u24", v(5), TSTRIDE, v(0))
    I("s_mul_i32", s(sT1), s(sP), 36)
    I("v_add_u32", v(6), s(sT1), v(5))
    I("v_lshlrev_b32", v(7), 2, v(0)); I("v_lshlrev_b32", v(8), 1, v(0))
    a.lgkm(0)
    I("s_mul_i32", s(sT0), s(sB), 64*TSTRIDE); srd(S_WS, P_WS, s(sT0), 64*TSTRIDE)
    R = 16
    I("buffer_load_dwordx4", vr(R), v(6), sr(S_WS), 0, mod="offen")
    I("buffer_load_dwordx4", vr(R+4), v(6), sr(S_WS), 0, mod="offen offset:16")
    I("buffer_load_dword", v(R+8), v(6), sr(S_WS), 0, mod="offen offset:32")
    I("buffer_load_dwordx4", vr(R+12), v(6), sr(S_WS), 0, mod="offen offset:2304")
    I("buffer_load_dwordx4", vr(R+16), v(6), sr(S_WS), 0, mod="offen offset:2320")
    I("buffer_load_dword", v(R+20), v(6), sr(S_WS), 0, mod="offen offset:2336")
    I("s_movk_i32", s(sT0), 4608)
    I("buffer_load_dwordx4", vr(R+24), v(5), sr(S_WS), s(sT0), mod="offen")
    I("s_mul_i32", s(sT0), "s2", 36); I("s_add_u32", s(sT0), s(sT0), G_OFF); srd(S_M2, P_WS, s(sT0), 36)
    I("buffer_load_dword", v(R+28), v(7), sr(S_M2), 0, mod="offen")
    I("s_mul_i32", s(sT0), "s2", 18); srd(S_X, P_X, s(sT0), 18); srd(S_M1, P_OUT, s(sT0), 18)
    I("buffer_load_ushort", v(R+29), v(8), sr(S_X), 0, mod="offen")
    I("s_waitcnt", "vmcnt(0)")
    ML = R+24; C = [R+32, R+33]; T = R+34
    for h in range(2):
        Mv, Lv = ML+2*h, ML+2*h+1
        I("v_max_f32_dpp", v(T), v(Mv), v(Mv), mod=f"quad_perm:[1,0,3,2] {DPPALL}")
        I("v_max_f32_dpp", v(T), v(T), v(T), mod=f"quad_perm:[2,3,0,1] {DPPALL}")
        I("v_sub_f32", v(T), v(Mv), v(T)); I("v_exp_f32", v(C[h]), v(T))
        I("v_mul_f32", v(T), v(C[h]), v(Lv))
        I("v_add_f32_dpp", v(T), v(T), v(T), mod=f"quad_perm:[1,0,3,2] {DPPALL}")
        I("v_add_f32_dpp", v(T), v(T), v(T), mod=f"quad_perm:[2,3,0,1] {DPPALL}")
        I("v_rcp_f32", v(T), v(T))
        I("v_mul_f32", v(C[h]), v(C[h]), v(T))
    for k in range(9): I("v_mul_f32", v(R+k), v(C[0]), v(R+k))
    for k in range(9): I("v_fmac_f32", v(R+k), v(C[1]), v(R+12+k))
    for n in (8, 4, 2, 1):
        for k in range(9): I("v_add_f32_dpp", v(R+k), v(R+k), v(R+k), mod=f"row_ror:{n} {DPPALL}")
    for sw in ("v_permlane16_swap_b32", "v_permlane32_swap_b32"):
        for k in range(9): I("v_mov_b32", v(R+12+k), v(R+k))
        for k in range(9): I(sw, v(R+k), v(R+12+k))
        for k in range(9): I("v_add_f32", v(R+k), v(R+k), v(R+12+k))
    for k in range(1, 9):
        I("v_cmp_eq_u32", "vcc", k, v(0)); I("v_cndmask_b32", v(R), v(R), v(R+k), "vcc")
    bfr1(R)
    I("v_mul_f32", v(R), v(R), v(R+28)); bfr1(R)
    I("v_lshlrev_b32", v(R+29), 16, v(R+29))
    I("v_add_f32", v(R), v(R), v(R+29))
    I("v_cvt_pk_bf16_f32", v(R), v(R), v(R))
    I("s_mov_b64", "exec", 0x1ff)
    I("buffer_store_short", v(R), v(8), sr(S_M1), 0, mod="offen")
    a.label("K2_END")
    I("s_endpgm")

hdr = open('cdna_kernels/'+name+'.s.ref').read().split('\n')
top = [l for l in hdr if l.startswith(';') and '@launch' not in l and 'Override' not in l and 'grid=ceil' not in l]
out = "\n".join(top)+"\n"
out += f"; @launch kernel={K1} grid=(256,1,1) block=(512,1,1) lds={LDS_SIZE}\n"
out += f"; @launch kernel={K2} grid=(256,1,1) block=(64,1,1) lds=0\n"
out += '.amdgcn_target "amdgcn-amd-amdhsa--gfx950"\n.text\n'
k1(); k2()
out += a.text()
out += '.section .rodata,"a"\n'
for kn, nv in ((K1, 256), (K2, 64)):
    out += f""".p2align 6
.amdhsa_kernel {kn}
  .amdhsa_next_free_vgpr {nv}
  .amdhsa_next_free_sgpr 102
  .amdhsa_accum_offset {nv}
  .amdhsa_group_segment_fixed_size 0
  .amdhsa_kernarg_size 104
  .amdhsa_user_sgpr_count 2
  .amdhsa_user_sgpr_kernarg_segment_ptr 1
  .amdhsa_system_sgpr_workgroup_id_x 1
.end_amdhsa_kernel
"""
open(sys.argv[1], 'w').write(out)
print("instrs", a.ninstr, "bytes", len(out))
```

```python
import sys, struct
sys.path.insert(0, 'gen')
from asmlib import Asm

def f32(x): return "0x%08x" % struct.unpack('<I', struct.pack('<f', x))[0]
LOG2E = 1.4426950408889634
SCALE = 0.08838834764831845
C0 = 2*0.7978845608028654*LOG2E
C1 = C0*0.044715

OPT = dict(gate_per_tile=2, gate_start=1, wo_start=6, wo_per_tile=6, nt_w=True, fused=False, ts=0, tbar=0, nowo=0, nogate=0, nowq=0, pwq=1, pwo=1, bar=1, rot=1, kv0=4, kvstep=3, kvpre=12, lnpos=24, cred=2, o1=8, o2=17, o3=26, d0=2, dstep=2)
GOPT = [dict(kvfirst=0, kvafter=8, cred=0, stage=0, lnpos=24, wo_start=6, wo_per_tile=12, gate_start=1, gate_per_tile=2, bar=1, pendlate=1),
        dict(kvfirst=32, kvafter=0, cred=0, stage=1, lnpos=-1, wo_start=10, wo_per_tile=12, gate_start=1, gate_per_tile=2, bar=0, pendlate=1)]
OPT['gbit'] = 3
for arg in sys.argv[2:]:
    k, v = arg.split('=')
    if k[:2] in ('A_', 'B_'): GOPT[0 if k[0] == 'A' else 1][k[2:]] = int(v)
    else: OPT[k] = int(v)
STAGE = [0]

L_XN = 0; L_QP = 2048; L_QS = 10240; L_GP = 14336; L_ML = 14848; L_ML2 = 14976; L_TS = 15360
L_ST = 16384; L_TP = 16384; L_OP = 147456
LDS_SIZE = 147456 + 8192
TSTRIDE = 5120
G_OFF = 0x200000

a = Asm()
I = a.I
S_K, S_V, S_WQ, S_WO, S_X, S_M1, S_WS, S_M2 = 4, 8, 12, 16, 20, 24, 28, 32
P_X, P_K, P_V, P_WQ, P_WO, P_W1, P_B1, P_W2, P_B2, P_OUT, P_DBG, P_WS = 36, 38, 40, 42, 44, 48, 50, 52, 54, 56, 58, 60
sKVH, sSPLIT, sB, sP, sW, sT0, sT1 = 62, 63, 80, 81, 82, 83, 84
sH = 64
sSELLO, sSELHI, sMASK, sSCALE, sLOG2E, sBP = 85, 86, 87, 88, 89, 90
sM3 = 92
def sr(n): return f"s[{n}:{n+3}]"
def vr(n, k=4): return f"v[{n}:{n+k-1}]"
def v(n): return f"v{n}"
def s(n): return f"s{n}"

def srd(dst, ptr, off, records):
    if off is None:
        I("s_mov_b32", s(dst), s(ptr)); I("s_mov_b32", s(dst+1), s(ptr+1))
    else:
        I("s_add_u32", s(dst), s(ptr), off); I("s_addc_u32", s(dst+1), s(ptr+1), 0)
    I("s_mov_b32", s(dst+2), records); I("s_mov_b32", s(dst+3), "0x20000")

DPPALL = "row_mask:0xf bank_mask:0xf"
def allred(op, x, t, rows=True):
    if rows:
        for n in (8, 4, 2, 1):
            I(op+"_dpp", v(x), v(x), v(x), mod=f"row_ror:{n} {DPPALL}")
    I("v_mov_b32", v(t), v(x)); I("v_permlane16_swap_b32", v(x), v(t)); I(op, v(x), v(x), v(t))
    I("v_mov_b32", v(t), v(x)); I("v_permlane32_swap_b32", v(x), v(t)); I(op, v(x), v(x), v(t))

def bfr1(x):
    I("v_cvt_pk_bf16_f32", v(x), v(x), v(x)); I("v_and_b32", v(x), s(sMASK), v(x))
def bfr2(x, y, w):
    I("v_cvt_pk_bf16_f32", v(w), v(x), v(y)); I("v_lshlrev_b32", v(x), 16, v(w)); I("v_and_b32", v(y), s(sMASK), v(w))

def layernorm(X, O, T):
    sm, tt, mean, var, den, rc = T[:6]
    I("v_add_f32", v(sm), v(X[0]), v(X[1]))
    for k in range(2, 9): I("v_add_f32", v(sm), v(sm), v(X[k]))
    allred("v_add_f32", sm, tt)
    I("v_mul_f32", v(mean), f32(1.0/576), v(sm))
    for k in range(9): I("v_sub_f32", v(O[k]), v(X[k]), v(mean))
    I("v_mul_f32", v(var), v(O[0]), v(O[0]))
    for k in range(1, 9): I("v_fmac_f32", v(var), v(O[k]), v(O[k]))
    allred("v_add_f32", var, tt)
    I("v_mul_f32", v(var), f32(1.0/576), v(var))
    bfr2(mean, var, tt)
    I("v_add_f32", v(var), f32(1e-5), v(var)); bfr1(var)
    I("v_sqrt_f32", v(den), v(var)); bfr1(den)
    I("v_rcp_f32", v(rc), v(den))
    for k in range(9): I("v_sub_f32", v(O[k]), v(X[k]), v(mean))
    for k in range(0, 8, 2): bfr2(O[k], O[k+1], tt)
    bfr1(O[8])
    for k in range(9):
        I("v_mul_f32", v(sm), v(O[k]), v(rc))
        I("v_fma_f32", v(tt), "-"+v(sm), v(den), v(O[k]))
        I("v_fma_f32", v(O[k]), v(tt), v(rc), v(sm))
    for k in range(0, 8, 2): bfr2(O[k], O[k+1], tt)
    bfr1(O[8])

vTID, vLANE, vKOFF, vM, vL = 0, 1, 2, 3, 4
vT = [5, 6, 7]
vQ = 8
vACC = 16
vS = 32
vP = 40
BIG = 48
KB = [192, 224]; VB = [208, 240]
NT = "nt"
POLS = ["", "nt", "sc1", "sc0", "sc0 sc1", "sc1 nt", "sc0 nt", "sc0 sc1 nt"]
WMOD = POLS[OPT['pwq']]; WOMOD = POLS[OPT['pwo']]

def tile_regs(kind, n):
    if STAGE[0] and n in (2, 3): return BIG + 32*(n-2) + (0 if kind == 'K' else 16)
    return (KB if kind == 'K' else VB)[n & 1]
def issue_tile_lds(kind, n):
    srdn = S_K if kind == 'K' else S_V
    q = 2*(n-2) + (0 if kind == 'K' else 1)
    I("s_lshl_b32", s(sT1), s(sW), 14); I("s_add_u32", s(sT1), s(sT1), L_ST+q*4096)
    I("s_mov_b32", "m0", s(sT1))
    I("s_mov_b32", s(sT0), n*32768)
    for i in range(4):
        a.raw(f"  buffer_load_dwordx4 {v(vKOFF)}, {sr(srdn)}, {s(sT0)} offen offset:{i*1024} {NT} lds"); a.pos += 1
        a.vm_issue(f"{kind}{n}")
def room():
    if len(a.vm) >= 62:
        I("s_waitcnt", f"vmcnt({len(a.vm)-4})"); a.vm = a.vm[4:]
def issue_one(kind, n, i):
    srdn = S_K if kind == 'K' else S_V
    room()
    if STAGE[0] and n in (2, 3):
        q = 2*(n-2) + (0 if kind == 'K' else 1)
        I("s_lshl_b32", s(sT1), s(sW), 14); I("s_add_u32", s(sT1), s(sT1), L_ST+q*4096)
        I("s_mov_b32", "m0", s(sT1))
        I("s_mov_b32", s(sT0), n*32768)
        a.raw(f"  buffer_load_dwordx4 {v(vKOFF)}, {sr(srdn)}, {s(sT0)} offen offset:{i*1024} {NT} lds"); a.pos += 1
    else:
        base = tile_regs(kind, n)
        I("s_mov_b32", s(sT0), n*32768)
        I("buffer_load_dwordx4", vr(base+4*i), v(vKOFF), sr(srdn), s(sT0), mod=f"offen offset:{i*1024} {NT}")
    a.vm_issue(f"{kind}{n}")
def read_tile_lds(kind, n):
    q = 2*(n-2) + (0 if kind == 'K' else 1)
    base = tile_regs(kind, n)
    for i in range(4):
        I("ds_read_b128", vr(base+4*i), v(7), mod=f"offset:{q*4096+i*1024}")
def issue_tile(kind, n):
    base = tile_regs(kind, n)
    srdn = S_K if kind == 'K' else S_V
    I("s_mov_b32", s(sT0), n*32768)
    for i in range(4):
        I("buffer_load_dwordx4", vr(base+4*i), v(vKOFF), sr(srdn), s(sT0), mod=f"offen offset:{i*1024} {NT}")
        a.vm_issue(f"{kind}{n}")

ts_n = [0]
def stamp(ra, rb):
    if not OPT['ts']: return
    I("s_memrealtime", "s[98:99]"); a.lgkm(0)
    I("s_lshl_b32", "s99", s(sW), 7)
    I("v_mov_b32", v(ra), "s98"); I("v_mov_b32", v(rb), "s99")
    I("ds_write_b32", v(rb), v(ra), mod=f"offset:{L_TS+4*ts_n[0]}")
    ts_n[0] += 1
def stamp_dump():
    if not OPT['ts']: return
    I("s_mov_b64", "exec", -1)
    I("s_lshl_b32", "s99", s(sW), 7)
    I("v_and_b32", v(5), 31, v(vLANE)); I("v_lshlrev_b32", v(5), 2, v(5)); I("v_add_u32", v(5), "s99", v(5))
    a.lgkm(0)
    I("ds_read_b32", v(6), v(5), mod=f"offset:{L_TS}")
    I("s_lshl_b32", s(sT0), "s2", 10); I("s_add_u32", s(sT0), s(sT0), 0x400000)
    srd(S_M1, P_WS, s(sT0), 1024)
    a.lgkm(0)
    I("buffer_store_dword", v(6), v(5), sr(S_M1), 0, mod="offen")

name = "recurrent_scan__gqa_block_cached__mixer_token_mlp__decode"
K1 = "attn_main_kernel"; K2 = "attn_fin_kernel"

def k1():
    a.raw(f".globl {K1}\n.p2align 8\n.type {K1},@function\n{K1}:")
    I("s_cmp_ge_u32", "s2", 256); I("s_cbranch_scc1", "K1_END")
    I("s_load_dwordx16", "s[36:51]", "s[0:1]", 0)
    I("s_load_dwordx8", "s[52:59]", "s[0:1]", 64)
    I("s_load_dwordx2", "s[60:61]", "s[0:1]", 96)
    I("s_and_b32", s(sKVH), "s2", 7); I("s_lshl_b32", s(sKVH), s(sKVH), 1)
    I("s_bfe_u32", s(sT0), "s2", (1 << 16) | 3); I("s_or_b32", s(sKVH), s(sKVH), s(sT0))
    I("s_bfe_u32", s(sSPLIT), "s2", (2 << 16) | 4)
    I("s_lshr_b32", s(sB), "s2", 6)
    I("s_lshl_b32", s(sP), s(sKVH), 2); I("s_or_b32", s(sP), s(sP), s(sSPLIT))
    I("s_lshl_b32", s(sBP), s(sB), 6); I("s_or_b32", s(sBP), s(sBP), s(sP))
    I("s_mov_b32", s(sSELLO), "0x05040100"); I("s_mov_b32", s(sSELHI), "0x07060302")
    I("s_mov_b32", s(sMASK), "0xffff0000"); I("s_mov_b32", s(sSCALE), f32(SCALE)); I("s_mov_b32", s(sLOG2E), f32(LOG2E))
    I("v_and_b32", v(vLANE), 63, v(vTID))
    I("v_lshrrev_b32", v(5), 6, v(vTID))
    I("v_readfirstlane_b32", s(sW), v(5))
    I("v_lshlrev_b32", v(vKOFF), 4, v(vLANE)); I("v_lshl_add_u32", v(vKOFF), v(5), 12, v(vKOFF))
    I("v_mul_u32_u24", v(6), 18, v(vLANE))
    I("v_lshrrev_b32", v(7), 5, v(vTID))
    I("v_mul_u32_u24", v(7), 36*8192, v(7))
    I("v_and_b32", v(40), 31, v(vTID)); I("v_lshl_add_u32", v(7), v(40), 4, v(7))
    a.lgkm(0)
    stamp(40,41)
    I("s_mul_i32", s(sT0), s(sB), 1152); srd(S_X, P_X, s(sT0), 1152)
    I("s_lshl_b32", s(sT0), s(sBP), 19)
    srd(S_K, P_K, s(sT0), 1 << 19); srd(S_V, P_V, s(sT0), 1 << 19)
    X = list(range(16, 25))
    for k in range(9):
        I("buffer_load_ushort", v(X[k]), v(6), sr(S_X), 0, mod=f"offen offset:{2*k}"); a.vm_issue("x")
    I("s_lshl_b32", s(sT0), s(sKVH), 9)
    I("s_sub_u32", s(sT1), 576*8192, s(sT0))
    I("s_add_u32", s(S_WQ), s(P_WQ), s(sT0)); I("s_addc_u32", s(S_WQ+1), s(P_WQ+1), 0)
    I("s_mov_b32", s(S_WQ+2), s(sT1)); I("s_mov_b32", s(S_WQ+3), "0x20000")
    sROT, sRO = 91, 96
    I("s_lshl_b32", s(sROT), s(sB), 2); I("s_or_b32", s(sROT), s(sROT), s(sSPLIT))
    I("s_mul_i32", s(sROT), s(sROT), 18); I("s_lshr_b32", s(sROT), s(sROT), 4)
    if not OPT['rot']: I("s_mov_b32", s(sROT), 0)
    I("s_lshl_b32", s(sRO), s(sROT), 14)
    I("s_bitcmp1_b32", "s2", OPT['gbit']); I("s_cbranch_scc1", "K1_GB")
    import copy
    save = (copy.deepcopy(a.vm), ts_n[0])
    body(0, X, sROT, sRO)
    a.label("K1_GB")
    a.vm = save[0]; ts_n[0] = save[1]
    body(1, X, sROT, sRO)
    a.label("K1_END")
    I("s_endpgm")

def body(G, X, sROT, sRO):
    O = dict(OPT); O.update(GOPT[G]); STAGE[0] = O['stage']
    sfx = "AB"[G]
    tl = (('K', 0), ('V', 0), ('K', 1), ('V', 1), ('K', 2), ('V', 2), ('K', 3), ('V', 3)) if O['stage'] else (('K', 0), ('V', 0), ('K', 1), ('V', 1))
    pend = [(k, n, i) for (k, n) in tl for i in range(4)]
    XN = list(range(25, 34)); T = list(range(34, 40))
    def do_ln():
        stamp(40,41)
        a.vm_wait("x")
        stamp(40,41)
        for k in range(9): I("v_lshlrev_b32", v(X[k]), 16, v(X[k]))
        layernorm(X, XN, T)
        for k in range(9):
            I("ds_write_b16_d16_hi", v(6), v(XN[k]), mod=f"offset:{L_XN+2*k}")
    for _ in range(O['kvfirst']):
        if pend: issue_one(*pend.pop(0))
    if O['lnpos'] < 0: do_ln()
    for i in range(36):
        if not OPT['nowq']:
            room()
            I("buffer_load_dwordx4", vr(BIG+4*i), v(7), sr(S_WQ), s(sRO), mod=f"offen {WMOD}"); a.vm_issue(f"wq{i}")
        I("s_add_u32", s(sRO), s(sRO), 8192); I("s_cmp_ge_u32", s(sRO), 36*8192); I("s_cselect_b32", s(sRO), 0, s(sRO))
        if i == O['lnpos']: do_ln()
    if O['bar']: I("s_barrier")
    for _ in range(O['kvafter']):
        if pend: issue_one(*pend.pop(0))
    I("s_mul_i32", s(sT0), s(sKVH), 256*1152); srd(S_WO, P_WO, s(sT0), 256*1152)
    srd(S_M1, P_W1, None, 9216); srd(S_M2, P_B1, None, 9216); srd(sM3, P_W2, None, 9216)
    I("v_lshrrev_b32", v(5), 5, v(vTID)); I("v_mul_u32_u24", v(5), 72, v(5))
    a.lgkm(0)
    XP = 16
    I("s_lshl_b32", s(sRO), s(sROT), 2)
    for k in range(18):
        I("v_add_u32", v(40+(k & 1)), s(sRO), v(5))
        I("ds_read_b32", v(XP+k), v(40+(k & 1)), mod=f"offset:{L_XN}")
        I("s_add_u32", s(sRO), s(sRO), 4); I("s_cmp_ge_u32", s(sRO), 72); I("s_cselect_b32", s(sRO), 0, s(sRO))
        if k == 13: a.lgkm(8)
    QA = 34
    stamp(40,41)
    PT = [42, 43, 44, 45, 46, 47]
    a.lgkm(0)
    for ip in range(18):
        a.vm_wait(f"wq{2*ip+1}")
        for _ in range(O['cred']):
            if pend: issue_one(*pend.pop(0))
        w0 = BIG+8*ip; w1 = w0+4
        for half in range(2):
            for r in (2*half, 2*half+1):
                t0, t1 = PT[2*(r & 1)], PT[2*(r & 1)+1]
                I("v_perm_b32", v(t0), v(w1+r), v(w0+r), s(sSELLO))
                I("v_perm_b32", v(t1), v(w1+r), v(w0+r), s(sSELHI))
            for r in (2*half, 2*half+1):
                t0, t1 = PT[2*(r & 1)], PT[2*(r & 1)+1]
                if ip == 0:
                    I("v_dot2_f32_bf16", v(QA+2*r), v(t0), v(XP+ip), 0)
                    I("v_dot2_f32_bf16", v(QA+2*r+1), v(t1), v(XP+ip), 0)
                else:
                    I("v_dot2_f32_bf16", v(QA+2*r), v(t0), v(XP+ip), v(QA+2*r))
                    I("v_dot2_f32_bf16", v(QA+2*r+1), v(t1), v(XP+ip), v(QA+2*r+1))
    stamp(5,6)
    GR = 128
    gW1r, gB1r, gW2r = GR, GR+4, GR+8
    gW1x, gB1x, gW2x = GR+12, GR+13, GR+14
    I("v_lshlrev_b32", v(5), 4, v(vTID)); I("v_lshlrev_b32", v(6), 1, v(vTID))
    for (dst, dx, sd) in ((gW1r, gW1x, S_M1), (gB1r, gB1x, S_M2), (gW2r, gW2x, sM3)):
        I("buffer_load_dwordx4", vr(dst), v(5), sr(sd), 0, mod="offen"); a.vm_issue("gw")
        I("s_movk_i32", s(sT0), 8192)
        I("buffer_load_ushort", v(dx), v(6), sr(sd), s(sT0), mod="offen"); a.vm_issue("gw")
    for k in range(4):
        I("v_permlane32_swap_b32", v(QA+k), v(QA+k+4))
    for k in range(4):
        I("v_add_f32", v(QA+k), v(QA+k), v(QA+k+4))
    I("v_and_b32", v(5), 31, v(vLANE)); I("v_lshlrev_b32", v(5), 5, v(5))
    I("v_lshrrev_b32", v(6), 5, v(vLANE)); I("v_lshl_add_u32", v(5), v(6), 4, v(5))
    I("s_lshl_b32", s(sT0), s(sW), 10); I("v_add_u32", v(5), s(sT0), v(5))
    I("ds_write_b128", v(5), vr(QA), mod=f"offset:{L_QP}")
    if not O['pendlate']:
        while pend: issue_one(*pend.pop(0))
    a.lgkm(0)
    I("s_barrier")
    I("v_lshlrev_b32", v(5), 4, v(vLANE))
    for w in range(8):
        I("ds_read_b128", vr(BIG+4*w), v(5), mod=f"offset:{L_QP+1024*w}")
    a.lgkm(0)
    for st in (4, 2, 1):
        for w in range(st):
            for k in range(4):
                I("v_add_f32", v(BIG+4*w+k), v(BIG+4*w+k), v(BIG+4*(w+st)+k))
    I("v_cvt_pk_bf16_f32", v(BIG), v(BIG), v(BIG+1)); I("v_cvt_pk_bf16_f32", v(BIG+1), v(BIG+2), v(BIG+3))
    I("s_lshl_b32", s(sT0), s(sW), 9)
    I("v_lshlrev_b32", v(5), 3, v(vLANE)); I("v_add_u32", v(5), s(sT0), v(5))
    I("ds_write_b64", v(5), vr(BIG, 2), mod=f"offset:{L_QS}")
    I("v_and_b32", v(5), 15, v(vLANE)); I("v_lshlrev_b32", v(5), 4, v(5)); I("v_add_u32", v(5), s(sT0), v(5))
    a.lgkm(0)
    I("ds_read_b128", vr(vQ), v(5), mod=f"offset:{L_QS}")
    I("ds_read_b128", vr(vQ+4), v(5), mod=f"offset:{L_QS+256}")
    while pend: issue_one(*pend.pop(0))
    for k in range(16): I("v_mov_b32", v(vACC+k), 0)
    I("v_mov_b32", v(vM), f32(-1e30)); I("v_mov_b32", v(vL), 0)
    a.lgkm(0)

    stamp(5,6)
    gW1f = GR+16; gB1f = GR+25; gY = GR+34; gT = GR+43
    vC1 = GR+15
    def gate_prep():
        XX = [gW1f+i for i in range(9)]; HH = [gB1f+i for i in range(9)]
        I("v_mul_u32_u24", v(gT+12), 18, v(vLANE))
        for k in range(9): I("v_mov_b32", v(XX[k]), 0)
        for k in range(9): I("ds_read_u16_d16_hi", v(XX[k]), v(gT+12), mod=f"offset:{L_XN+2*k}")
        a.lgkm(0)
        layernorm(XX, HH, [gT+i for i in range(6)])
        for k in range(9): I("v_readlane_b32", s(sH+k), v(HH[k]), s(sP))
        a.vm_wait("gw")
        I("v_mov_b32", v(vC1), f32(C1))
        for q in range(4):
            I("v_lshlrev_b32", v(gW1f+2*q), 16, v(gW1r+q)); I("v_and_b32", v(gW1f+2*q+1), s(sMASK), v(gW1r+q))
            I("v_lshlrev_b32", v(gB1f+2*q), 16, v(gB1r+q)); I("v_and_b32", v(gB1f+2*q+1), s(sMASK), v(gB1r+q))
        I("v_lshlrev_b32", v(gW1f+8), 16, v(gW1x)); I("v_lshlrev_b32", v(gB1f+8), 16, v(gB1x))
        I("v_lshlrev_b32", v(gW2x), 16, v(gW2x))
    def gelu_list(U, TT):
        for u, t in zip(U, TT): I("v_mul_f32", v(t), v(u), v(u))
        for u, t in zip(U, TT): I("v_fmaak_f32", v(t), v(t), v(vC1), f32(C0))
        for u, t in zip(U, TT): I("v_mul_f32", v(t), v(t), v(u))
        for u, t in zip(U, TT): I("v_exp_f32", v(t), "-"+v(t))
        for u, t in zip(U, TT): I("v_add_f32", v(t), 1.0, v(t))
        for u, t in zip(U, TT): I("v_rcp_f32", v(t), v(t))
        for u, t in zip(U, TT): I("v_mul_f32", v(u), v(u), v(t))
    def gate_col(k):
        if OPT['nogate']: return
        for hh in range(2):
            U = [gT+i for i in range(4)]; TT = [gT+4+i for i in range(4)]; W = [gT+8, gT+9]
            for i in range(4): I("v_mul_f32", v(U[i]), s(sH+k), v(gW1f+4*hh+i))
            bfr2(U[0], U[1], W[0]); bfr2(U[2], U[3], W[1])
            for i in range(4): I("v_add_f32", v(U[i]), v(U[i]), v(gB1f+4*hh+i))
            bfr2(U[0], U[1], W[0]); bfr2(U[2], U[3], W[1])
            gelu_list(U, TT)
            I("v_cvt_pk_bf16_f32", v(W[0]), v(U[0]), v(U[1])); I("v_cvt_pk_bf16_f32", v(W[1]), v(U[2]), v(U[3]))
            I("v_dot2_f32_bf16", v(gY+k), v(W[0]), v(gW2r+2*hh), 0 if hh == 0 else v(gY+k))
            I("v_dot2_f32_bf16", v(gY+k), v(W[1]), v(gW2r+2*hh+1), v(gY+k))
    def gate_fin():
        for grp in ((0, 1, 2, 3), (4, 5, 6, 7), (8,)):
            n = len(grp)
            U = [gT+i for i in range(n)]; TT = [gT+4+i for i in range(n)]; W = [gT+8, gT+9]
            for i, k in enumerate(grp): I("v_mul_f32", v(U[i]), s(sH+k), v(gW1f+8))
            def rnd():
                if n == 4: bfr2(U[0], U[1], W[0]); bfr2(U[2], U[3], W[1])
                else: bfr1(U[0])
            rnd()
            for i in range(n): I("v_add_f32", v(U[i]), v(U[i]), v(gB1f+8))
            rnd()
            gelu_list(U, TT)
            rnd()
            for i, k in enumerate(grp): I("v_fmac_f32", v(gY+k), v(U[i]), v(gW2x))
        for n in (8, 4, 2, 1):
            for k in range(9):
                I("v_add_f32_dpp", v(gY+k), v(gY+k), v(gY+k), mod=f"row_ror:{n} {DPPALL}")
        for (sw) in ("v_permlane16_swap_b32", "v_permlane32_swap_b32"):
            for k in range(9): I("v_mov_b32", v(gT+k), v(gY+k))
            for k in range(9): I(sw, v(gY+k), v(gT+k))
            for k in range(9): I("v_add_f32", v(gY+k), v(gY+k), v(gT+k))
        I("s_lshl_b32", s(sT0), s(sW), 6); I("v_mov_b32", v(gT), s(sT0))
        for k in range(9):
            I("ds_write_b32", v(gT), v(gY+k), mod=f"offset:{L_GP+4*k}")

    wo_loads = [('m', k) for k in range(32)] + [('l', q) for q in range(4)]
    vWOM, vWOL = 46, 47
    def wo_addr():
        I("s_mul_i32", s(sT0), s(sW), 32*1152)
        I("v_lshlrev_b32", v(vWOM), 4, v(vLANE)); I("v_add_u32", v(vWOM), s(sT0), v(vWOM))
        I("v_lshrrev_b32", v(5), 3, v(vLANE)); I("v_mul_u32_u24", v(5), 4*1152, v(5))
        I("v_and_b32", v(6), 7, v(vLANE)); I("v_lshl_add_u32", v(5), v(6), 4, v(5))
        I("s_add_u32", s(sT0), s(sT0), 1024); I("v_add_u32", v(vWOL), s(sT0), v(5))
    def wo_issue(idx):
        kind, k = wo_loads[idx]
        if OPT['nowo']: return
        room()
        if kind == 'm':
            I("s_mov_b32", s(sT1), (k//3)*3456)
            I("buffer_load_dwordx4", vr(BIG+4*k), v(vWOM), sr(S_WO), s(sT1), mod=f"offen offset:{(k%3)*1152} {WOMOD}")
        else:
            I("buffer_load_dwordx4", vr(BIG+128+4*k), v(vWOL), sr(S_WO), 0, mod=f"offen offset:{k*1152} {WOMOD}")
        a.vm_issue(f"wo{idx}")
    WP = {}
    free = [45]
    def wo_perm(pair):
        a.vm_wait(f"wo{2*pair+1}")
        r0 = BIG+8*pair; r1 = r0+4
        for r in range(4):
            f = free.pop()
            I("v_perm_b32", v(f), v(r1+r), v(r0+r), s(sSELLO))
            I("v_perm_b32", v(r1+r), v(r1+r), v(r0+r), s(sSELHI))
            WP[(pair, 2*r)] = f; WP[(pair, 2*r+1)] = r1+r
            free.append(r0+r)
    wo_addr()

    gate_next = 0; wo_next = 0; perm_next = 0; wo_hist = {}
    gate_done = False
    PTm = [40, 41, 42, 43]; vPP = 44
    for n in range(16):
        kb = tile_regs('K', n); vb = tile_regs('V', n)
        if OPT['tbar'] and n >= 4 and n % OPT['tbar'] == 0: I("s_barrier")
        a.vm_wait(f"K{n}")
        stamp(5,6)
        nxt = (n+4 if n < 2 else (None if n < 4 else n+2)) if O['stage'] else n+2
        if nxt is not None and nxt >= 16: nxt = None
        if O['stage'] and n in (2, 3):
            I("s_lshl_b32", s(sT1), s(sW), 14); I("s_add_u32", s(sT1), s(sT1), L_ST)
            I("v_lshlrev_b32", v(7), 4, v(vLANE)); I("v_add_u32", v(7), s(sT1), v(7))
            read_tile_lds('K', n)
            a.vm_wait(f"V{n}")
            read_tile_lds('V', n)
            a.lgkm(4)
        for r in range(4):
            for i in range(4):
                for h in range(2):
                    d = vS+4*h+i
                    I("v_dot2_f32_bf16", v(d), v(kb+4*i+r), v(vQ+4*h+r), 0 if r == 0 else v(d))
        if nxt is not None: issue_tile('K', nxt)
        for h in range(2):
            for e in range(2):
                d = vS+4*h+e
                I("v_add_f32_dpp", v(d), v(d), v(d), mod="row_ror:8 row_mask:0xf bank_mask:0x3")
        for h in range(2):
            for e in range(2):
                d = vS+4*h+e; sft = vS+4*h+2+e
                I("v_add_f32_dpp", v(d), v(sft), v(sft), mod="row_ror:8 row_mask:0xf bank_mask:0xc")
        for e in range(2):
            d = vS+e
            I("v_add_f32_dpp", v(d), v(d), v(d), mod="row_shl:4 row_mask:0xf bank_mask:0x5")
        for e in range(2):
            d = vS+e; sft = vS+4+e
            I("v_add_f32_dpp", v(d), v(sft), v(sft), mod="row_shr:4 row_mask:0xf bank_mask:0xa")
        for qp in ("[1,0,3,2]", "[2,3,0,1]"):
            for e in range(2):
                d = vS+e
                I("v_add_f32_dpp", v(d), v(d), v(d), mod=f"quad_perm:{qp} {DPPALL}")
        A, B, W, TM, AL = vS, vS+1, vS+2, vS+3, vS+4
        bfr2(A, B, W)
        I("v_mul_f32", v(A), s(sSCALE), v(A)); I("v_mul_f32", v(B), s(sSCALE), v(B))
        bfr2(A, B, W)
        I("v_max_f32", v(TM), v(A), v(B))
        I("v_max_f32_dpp", v(TM), v(TM), v(TM), mod=f"row_ror:8 {DPPALL}")
        I("v_mul_f32", v(TM), s(sLOG2E), v(TM))
        I("v_max_f32", v(TM), v(TM), v(vM))
        I("v_sub_f32", v(AL), v(vM), v(TM))
        I("v_fma_f32", v(A), v(A), s(sLOG2E), "-"+v(TM))
        I("v_fma_f32", v(B), v(B), s(sLOG2E), "-"+v(TM))
        I("v_exp_f32", v(AL), v(AL)); I("v_exp_f32", v(A), v(A)); I("v_exp_f32", v(B), v(B))
        I("v_mov_b32", v(vM), v(TM))
        I("v_fma_f32", v(vL), v(vL), v(AL), v(A))
        I("v_cvt_pk_bf16_f32", v(vPP), v(A), v(B))
        I("v_add_f32", v(vL), v(vL), v(B))
        for h in range(2):
            for k in range(8):
                d = vACC+8*h+k
                I("v_mul_f32_dpp", v(d), v(AL), v(d), mod=f"row_newbcast:{4*h} {DPPALL}")
        a.vm_wait(f"V{n}")
        if O['stage'] and n in (2, 3): a.lgkm(0)
        for j in range(2):
            for rr in range(2):
                for r in (2*rr, 2*rr+1):
                    t0, t1 = PTm[2*(r & 1)], PTm[2*(r & 1)+1]
                    I("v_perm_b32", v(t0), v(vb+4*(2*j+1)+r), v(vb+4*(2*j)+r), s(sSELLO))
                    I("v_perm_b32", v(t1), v(vb+4*(2*j+1)+r), v(vb+4*(2*j)+r), s(sSELHI))
                for h in range(2):
                    for r in (2*rr, 2*rr+1):
                        t0, t1 = PTm[2*(r & 1)], PTm[2*(r & 1)+1]
                        I("v_dot2c_f32_bf16_dpp", v(vACC+8*h+2*r), v(vPP), v(t0), mod=f"row_newbcast:{4*(2*j+h)} {DPPALL}")
                        I("v_dot2c_f32_bf16_dpp", v(vACC+8*h+2*r+1), v(vPP), v(t1), mod=f"row_newbcast:{4*(2*j+h)} {DPPALL}")
        if nxt is not None: issue_tile('V', nxt)
        if n >= O['gate_start'] and not gate_done:
            if gate_next == 0: gate_prep()
            for _ in range(O['gate_per_tile']):
                if gate_next < 9:
                    gate_col(gate_next); gate_next += 1
            if gate_next == 9:
                gate_fin(); gate_done = True
        if n >= O['wo_start']:
            lim = wo_hist.get(n-2, 0)
            while perm_next < 18 and 2*perm_next+1 < lim:
                wo_perm(perm_next); perm_next += 1
            for _ in range(O['wo_per_tile']):
                if wo_next < 36 and (wo_next < 20 or gate_done) and (wo_next >= 16 or n >= 3 or not O['stage']):
                    wo_issue(wo_next); wo_next += 1
            wo_hist[n] = wo_next
            if n == 15:
                while perm_next < 18:
                    wo_perm(perm_next); perm_next += 1
    assert wo_next == 36 and perm_next == 18, (wo_next, perm_next)

    stamp(5,6)
    T0, T1, T2 = vS, vS+1, vS+2
    I("v_add_f32_dpp", v(vL), v(vL), v(vL), mod=f"row_ror:8 {DPPALL}")
    I("v_mov_b32", v(T0), v(vM))
    allred("v_max_f32", T0, T1, rows=False)
    I("v_sub_f32", v(T2), v(vM), v(T0)); I("v_exp_f32", v(T2), v(T2))
    I("v_mul_f32", v(vL), v(vL), v(T2))
    for h in range(2):
        for k in range(8):
            d = vACC+8*h+k
            I("v_mul_f32_dpp", v(d), v(T2), v(d), mod=f"row_newbcast:{4*h} {DPPALL}")
    allred("v_add_f32", vL, T1, rows=False)
    for k in range(8): I("v_permlane32_swap_b32", v(vACC+k), v(vACC+8+k))
    for k in range(8): I("v_add_f32", v(vACC+k), v(vACC+k), v(vACC+8+k))
    for k in range(4): I("v_permlane16_swap_b32", v(vACC+k), v(vACC+4+k))
    for k in range(4): I("v_add_f32", v(vACC+k), v(vACC+k), v(vACC+4+k))
    I("v_and_b32", v(5), 15, v(vLANE)); I("v_lshlrev_b32", v(5), 5, v(5))
    I("v_bfe_u32", v(6), v(vLANE), 4, 1); I("v_lshl_add_u32", v(5), v(6), 4, v(5))
    I("v_lshrrev_b32", v(6), 5, v(vLANE)); I("v_lshl_add_u32", v(5), v(6), 9, v(5))
    I("s_lshl_b32", s(sT0), s(sW), 10); I("s_add_u32", s(sT0), s(sT0), L_OP); I("v_add_u32", v(5), s(sT0), v(5))
    I("ds_write_b128", v(5), vr(vACC))
    I("v_bfe_u32", v(6), v(vLANE), 2, 1); I("v_lshlrev_b32", v(6), 5, v(6))
    I("s_lshl_b32", s(sT0), s(sW), 2); I("v_add_u32", v(6), s(sT0), v(6))
    I("ds_write_b32", v(6), v(T0), mod=f"offset:{L_ML}")
    I("ds_write_b32", v(6), v(vL), mod=f"offset:{L_ML+64}")
    a.lgkm(0)
    I("s_barrier")
    stamp(5,6)
    R = 192
    I("v_lshrrev_b32", v(5), 3, v(vLANE)); I("v_lshlrev_b32", v(5), 4, v(5))
    I("s_lshl_b32", s(sT0), s(sW), 7); I("s_add_u32", s(sT0), s(sT0), L_OP); I("v_add_u32", v(5), s(sT0), v(5))
    I("s_lshr_b32", s(sT1), s(sW), 2); I("s_lshl_b32", s(sT1), s(sT1), 5); I("v_mov_b32", v(6), s(sT1))
    MM = R+32; LL = R+40
    I("ds_read_b128", vr(MM), v(6), mod=f"offset:{L_ML}"); I("ds_read_b128", vr(MM+4), v(6), mod=f"offset:{L_ML+16}")
    I("ds_read_b128", vr(LL), v(6), mod=f"offset:{L_ML+64}"); I("ds_read_b128", vr(LL+4), v(6), mod=f"offset:{L_ML+80}")
    for w in range(8):
        I("ds_read_b128", vr(R+4*w), v(5), mod=f"offset:{1024*w}")
    a.lgkm(10)
    MX = vS; LS = vS+1; O = vS+2
    I("v_max3_f32", v(MX), v(MM), v(MM+1), v(MM+2)); I("v_max3_f32", v(MX), v(MX), v(MM+3), v(MM+4))
    I("v_max3_f32", v(MX), v(MX), v(MM+5), v(MM+6)); I("v_max_f32", v(MX), v(MX), v(MM+7))
    for w in range(8): I("v_sub_f32", v(MM+w), v(MM+w), v(MX))
    for w in range(8): I("v_exp_f32", v(MM+w), v(MM+w))
    a.lgkm(8)
    I("v_mul_f32", v(LS), v(MM), v(LL))
    for w in range(1, 8): I("v_fmac_f32", v(LS), v(MM+w), v(LL+w))
    a.lgkm(0)
    for w in range(8):
        for q in range(4):
            if w == 0: I("v_mul_f32", v(O+q), v(MM), v(R+q))
            else: I("v_fmac_f32", v(O+q), v(MM+w), v(R+4*w+q))
    P01, P23 = vS+6, vS+7
    I("v_cvt_pk_bf16_f32", v(P01), v(O), v(O+1)); I("v_cvt_pk_bf16_f32", v(P23), v(O+2), v(O+3))
    for rr in range(8):
        I("v_readlane_b32", s(sH+2*rr), v(P01), 8*rr); I("v_readlane_b32", s(sH+2*rr+1), v(P23), 8*rr)
    I("s_lshr_b32", s(sT1), s(sW), 2); I("s_lshl_b32", s(sT1), s(sT1), 3); I("v_mov_b32", v(6), s(sT1))
    I("ds_write_b64", v(6), vr(MX, 2), mod=f"offset:{L_ML2}")
    TL = vACC+8; TMn = vACC
    for c in range(8): I("v_dot2_f32_bf16", v(TL+c), v(WP[(16, c)]), v(P01), 0)
    for c in range(8): I("v_dot2_f32_bf16", v(TL+c), v(WP[(17, c)]), v(P23), v(TL+c))
    for k in range(16):
        for c in range(8):
            I("v_dot2_f32_bf16", v(TMn+c), v(WP[(k, c)]), s(sH+k), 0 if k == 0 else v(TMn+c))
    for k in range(4): I("v_permlane32_swap_b32", v(TL+k), v(TL+4+k))
    for k in range(4): I("v_add_f32", v(TL+k), v(TL+k), v(TL+4+k))
    for k in range(2): I("v_permlane16_swap_b32", v(TL+k), v(TL+2+k))
    for k in range(2): I("v_add_f32", v(TL+k), v(TL+k), v(TL+2+k))
    I("v_add_f32_dpp", v(TL), v(TL), v(TL), mod="row_ror:8 row_mask:0xf bank_mask:0x3")
    I("v_add_f32_dpp", v(TL), v(TL+1), v(TL+1), mod="row_ror:8 row_mask:0xf bank_mask:0xc")
    I("s_mul_i32", s(sT0), s(sW), 2304)
    I("v_and_b32", v(5), 7, v(vLANE)); I("v_lshlrev_b32", v(5), 5, v(5))
    I("v_lshrrev_b32", v(6), 3, v(vLANE)); I("v_lshl_add_u32", v(5), v(6), 2, v(5)); I("v_add_u32", v(5), s(sT0), v(5))
    I("v_lshlrev_b32", v(6), 5, v(vLANE)); I("v_add_u32", v(6), s(sT0), v(6))
    I("ds_write_b128", v(6), vr(TMn), mod=f"offset:{L_TP}")
    I("ds_write_b128", v(6), vr(TMn+4), mod=f"offset:{L_TP+16}")
    I("ds_write_b32", v(5), v(TL), mod=f"offset:{L_TP+2048}")
    stamp(7,40)
    I("s_mul_i32", s(sT0), s(sBP), TSTRIDE); srd(S_WS, P_WS, s(sT0), TSTRIDE)
    a.lgkm(0)
    I("s_barrier")
    stamp(5,6)
    I("s_cmp_ge_u32", s(sW), 5); I("s_cbranch_scc1", "K1_W5"+sfx)
    I("v_cmp_gt_u32", "vcc", 288, v(vTID)); I("s_and_saveexec_b64", "s[96:97]", "vcc")
    I("v_lshlrev_b32", v(5), 4, v(vTID))
    I("v_cmp_le_u32", "vcc", 144, v(vTID)); I("v_mov_b32", v(7), 6912); I("v_cndmask_b32", v(6), 0, v(7), "vcc")
    I("v_add_u32", v(6), v(6), v(5))
    for w in range(4): I("ds_read_b128", vr(R+4*w), v(6), mod=f"offset:{L_TP+2304*w}")
    a.lgkm(0)
    for k in range(4):
        I("v_add_f32", v(R+k), v(R+k), v(R+4+k)); I("v_add_f32", v(R+8+k), v(R+8+k), v(R+12+k))
    for k in range(4): I("v_add_f32", v(R+k), v(R+k), v(R+8+k))
    I("buffer_store_dwordx4", vr(R), v(5), sr(S_WS), 0, mod="offen")
    I("s_branch", "K1_FIN"+sfx)
    a.label("K1_W5"+sfx)
    I("s_cmp_lg_u32", s(sW), 5); I("s_cbranch_scc1", "K1_W6"+sfx)
    I("s_mov_b64", "exec", 1)
    I("v_mov_b32", v(5), 0)
    I("ds_read_b128", vr(R), v(5), mod=f"offset:{L_ML2}")
    a.lgkm(0)
    I("s_movk_i32", s(sT0), 4608)
    I("buffer_store_dwordx4", vr(R), v(5), sr(S_WS), s(sT0), mod="offen")
    I("s_branch", "K1_FIN"+sfx)
    a.label("K1_W6"+sfx)
    I("s_cmp_lg_u32", s(sW), 6); I("s_cbranch_scc1", "K1_FIN"+sfx)
    I("s_mov_b64", "exec", 0x1ff)
    srd(S_M1, P_B2, None, 2)
    I("v_mov_b32", v(7), 0)
    I("buffer_load_ushort", v(R+8), v(7), sr(S_M1), 0, mod="offen")
    I("v_lshlrev_b32", v(5), 2, v(vLANE))
    for w in range(8): I("ds_read_b32", v(R+w), v(5), mod=f"offset:{L_GP+64*w}")
    a.lgkm(0)
    for st in (4, 2, 1):
        for w in range(st): I("v_add_f32", v(R+w), v(R+w), v(R+w+st))
    bfr1(R)
    I("s_waitcnt", "vmcnt(0)")
    I("v_lshlrev_b32", v(R+8), 16, v(R+8))
    I("v_add_f32", v(R), v(R), v(R+8)); bfr1(R)
    I("v_mul_f32", v(R+1), s(sLOG2E), v(R)); I("v_exp_f32", v(R+1), "-"+v(R+1))
    I("v_add_f32", v(R+1), 1.0, v(R+1)); I("v_rcp_f32", v(R+2), v(R+1))
    I("v_mul_f32", v(R+3), v(R), v(R+2))
    I("v_fma_f32", v(R+4), "-"+v(R+3), v(R+1), v(R)); I("v_fma_f32", v(R+3), v(R+4), v(R+2), v(R+3))
    bfr1(R+3)
    I("s_mul_i32", s(sT0), s(sBP), 36); I("s_add_u32", s(sT0), s(sT0), G_OFF)
    srd(S_M2, P_WS, s(sT0), 36)
    I("buffer_store_dword", v(R+3), v(5), sr(S_M2), 0, mod="offen")
    a.label("K1_FIN"+sfx)
    stamp(5,6)
    stamp_dump()
    I("s_endpgm")

def k2():
    a.raw(f".globl {K2}\n.p2align 8\n.type {K2},@function\n{K2}:")
    a.vm = []
    I("s_cmp_ge_u32", "s2", 256); I("s_cbranch_scc1", "K2_END")
    I("s_load_dwordx2", "s[36:37]", "s[0:1]", 0)
    I("s_load_dwordx2", "s[56:57]", "s[0:1]", 80)
    I("s_load_dwordx2", "s[60:61]", "s[0:1]", 96)
    I("s_mov_b32", s(sMASK), "0xffff0000")
    I("s_lshr_b32", s(sB), "s2", 6); I("s_and_b32", s(sP), "s2", 63)
    I("v_mul_u32_u24", v(5), TSTRIDE, v(0))
    I("s_mul_i32", s(sT1), s(sP), 36)
    I("v_add_u32", v(6), s(sT1), v(5))
    I("v_lshlrev_b32", v(7), 2, v(0)); I("v_lshlrev_b32", v(8), 1, v(0))
    a.lgkm(0)
    I("s_mul_i32", s(sT0), s(sB), 64*TSTRIDE); srd(S_WS, P_WS, s(sT0), 64*TSTRIDE)
    R = 16
    I("buffer_load_dwordx4", vr(R), v(6), sr(S_WS), 0, mod="offen")
    I("buffer_load_dwordx4", vr(R+4), v(6), sr(S_WS), 0, mod="offen offset:16")
    I("buffer_load_dword", v(R+8), v(6), sr(S_WS), 0, mod="offen offset:32")
    I("buffer_load_dwordx4", vr(R+12), v(6), sr(S_WS), 0, mod="offen offset:2304")
    I("buffer_load_dwordx4", vr(R+16), v(6), sr(S_WS), 0, mod="offen offset:2320")
    I("buffer_load_dword", v(R+20), v(6), sr(S_WS), 0, mod="offen offset:2336")
    I("s_movk_i32", s(sT0), 4608)
    I("buffer_load_dwordx4", vr(R+24), v(5), sr(S_WS), s(sT0), mod="offen")
    I("s_mul_i32", s(sT0), "s2", 36); I("s_add_u32", s(sT0), s(sT0), G_OFF); srd(S_M2, P_WS, s(sT0), 36)
    I("buffer_load_dword", v(R+28), v(7), sr(S_M2), 0, mod="offen")
    I("s_mul_i32", s(sT0), "s2", 18); srd(S_X, P_X, s(sT0), 18); srd(S_M1, P_OUT, s(sT0), 18)
    I("buffer_load_ushort", v(R+29), v(8), sr(S_X), 0, mod="offen")
    I("s_waitcnt", "vmcnt(0)")
    ML = R+24; C = [R+32, R+33]; T = R+34
    for h in range(2):
        Mv, Lv = ML+2*h, ML+2*h+1
        I("v_max_f32_dpp", v(T), v(Mv), v(Mv), mod=f"quad_perm:[1,0,3,2] {DPPALL}")
        I("v_max_f32_dpp", v(T), v(T), v(T), mod=f"quad_perm:[2,3,0,1] {DPPALL}")
        I("v_sub_f32", v(T), v(Mv), v(T)); I("v_exp_f32", v(C[h]), v(T))
        I("v_mul_f32", v(T), v(C[h]), v(Lv))
        I("v_add_f32_dpp", v(T), v(T), v(T), mod=f"quad_perm:[1,0,3,2] {DPPALL}")
        I("v_add_f32_dpp", v(T), v(T), v(T), mod=f"quad_perm:[2,3,0,1] {DPPALL}")
        I("v_rcp_f32", v(T), v(T))
        I("v_mul_f32", v(C[h]), v(C[h]), v(T))
    for k in range(9): I("v_mul_f32", v(R+k), v(C[0]), v(R+k))
    for k in range(9): I("v_fmac_f32", v(R+k), v(C[1]), v(R+12+k))
    for n in (8, 4, 2, 1):
        for k in range(9): I("v_add_f32_dpp", v(R+k), v(R+k), v(R+k), mod=f"row_ror:{n} {DPPALL}")
    for sw in ("v_permlane16_swap_b32", "v_permlane32_swap_b32"):
        for k in range(9): I("v_mov_b32", v(R+12+k), v(R+k))
        for k in range(9): I(sw, v(R+k), v(R+12+k))
        for k in range(9): I("v_add_f32", v(R+k), v(R+k), v(R+12+k))
    for k in range(1, 9):
        I("v_cmp_eq_u32", "vcc", k, v(0)); I("v_cndmask_b32", v(R), v(R), v(R+k), "vcc")
    bfr1(R)
    I("v_mul_f32", v(R), v(R), v(R+28)); bfr1(R)
    I("v_lshlrev_b32", v(R+29), 16, v(R+29))
    I("v_add_f32", v(R), v(R), v(R+29))
    I("v_cvt_pk_bf16_f32", v(R), v(R), v(R))
    I("s_mov_b64", "exec", 0x1ff)
    I("buffer_store_short", v(R), v(8), sr(S_M1), 0, mod="offen")
    a.label("K2_END")
    I("s_endpgm")

hdr = open('cdna_kernels/'+name+'.s.ref').read().split('\n')
top = [l for l in hdr if l.startswith(';') and '@launch' not in l and 'Override' not in l and 'grid=ceil' not in l]
out = "\n".join(top)+"\n"
out += f"; @launch kernel={K1} grid=(256,1,1) block=(512,1,1) lds={LDS_SIZE}\n"
out += f"; @launch kernel={K2} grid=(256,1,1) block=(64,1,1) lds=0\n"
out += '.amdgcn_target "amdgcn-amd-amdhsa--gfx950"\n.text\n'
k1(); k2()
out += a.text()
out += '.section .rodata,"a"\n'
for kn, nv in ((K1, 256), (K2, 64)):
    out += f""".p2align 6
.amdhsa_kernel {kn}
  .amdhsa_next_free_vgpr {nv}
  .amdhsa_next_free_sgpr 102
  .amdhsa_accum_offset {nv}
  .amdhsa_group_segment_fixed_size 0
  .amdhsa_kernarg_size 104
  .amdhsa_user_sgpr_count 2
  .amdhsa_user_sgpr_kernarg_segment_ptr 1
  .amdhsa_system_sgpr_workgroup_id_x 1
.end_amdhsa_kernel
"""
open(sys.argv[1], 'w').write(out)
print("instrs", a.ninstr, "bytes", len(out))
```

```python
import sys, struct
sys.path.insert(0, 'gen')
from asmlib import Asm

def f32(x): return "0x%08x" % struct.unpack('<I', struct.pack('<f', x))[0]
LOG2E = 1.4426950408889634
SCALE = 0.08838834764831845
C0 = 2*0.7978845608028654*LOG2E
C1 = C0*0.044715

OPT = dict(gate_per_tile=2, gate_start=1, wo_start=6, wo_per_tile=6, nt_w=True, fused=False, ts=0, tbar=0, nowo=0, nogate=0, nowq=0, pwq=1, pwo=1, bar=1, rot=1, kv0=4, kvstep=3, kvpre=12, lnpos=24, cred=2, o1=8, o2=17, o3=26, d0=2, dstep=2)
GOPT = [dict(wqpre=36, kvfirst=8, kvafter=0, cred=0, stage=0, lnpos=24, wo_start=4, wo_per_tile=4, gate_start=1, gate_per_tile=2, pendlate=1),
        dict(wqpre=6, kvfirst=32, kvafter=0, cred=0, stage=1, lnpos=5, wo_start=4, wo_per_tile=4, gate_start=1, gate_per_tile=2, pendlate=1)]
OPT['gbit'] = 7; OPT['kbit'] = 6; OPT['fused'] = 1; OPT['slp_l'] = 24; OPT['slp_s'] = 4; OPT['thr'] = 8; OPT['pst'] = 2; OPT['badx'] = 0
for arg in sys.argv[2:]:
    k, v = arg.split('=')
    if k[:2] in ('A_', 'B_'): GOPT[0 if k[0] == 'A' else 1][k[2:]] = int(v)
    else: OPT[k] = int(v)
STAGE = [0]

L_XN = 0; L_QS = 4608; L_GP = 8704; L_ML = 9216; L_ML2 = 9344; L_TK = 9408; L_TS = 15360
L_ST = 16384; L_TP = 16384; L_OP = 147456; L_QP = 147456
LDS_SIZE = 147456 + 8192
TSTRIDE = 5120
G_OFF = 0x200000

a = Asm()
I = a.I
S_K, S_V, S_WQ, S_WO, S_X, S_M1, S_WS, S_M2 = 4, 8, 12, 16, 20, 24, 28, 32
P_X, P_K, P_V, P_WQ, P_WO, P_W1, P_B1, P_W2, P_B2, P_OUT, P_DBG, P_WS = 36, 38, 40, 42, 44, 48, 50, 52, 54, 56, 58, 60
sKVH, sSPLIT, sB, sP, sW, sT0, sT1 = 62, 63, 80, 81, 82, 83, 84
sH = 64
sSELLO, sSELHI, sMASK, sSCALE, sLOG2E, sBP = 85, 86, 87, 88, 89, 90
sM3 = 92
sXCC, sITEM, sFLAG, sRO = 100, 101, 91, 96
def sr(n): return f"s[{n}:{n+3}]"
def vr(n, k=4): return f"v[{n}:{n+k-1}]"
def v(n): return f"v{n}"
def s(n): return f"s{n}"

def srd(dst, ptr, off, records):
    if off is None:
        I("s_mov_b32", s(dst), s(ptr)); I("s_mov_b32", s(dst+1), s(ptr+1))
    else:
        I("s_add_u32", s(dst), s(ptr), off); I("s_addc_u32", s(dst+1), s(ptr+1), 0)
    I("s_mov_b32", s(dst+2), records); I("s_mov_b32", s(dst+3), "0x20000")

DPPALL = "row_mask:0xf bank_mask:0xf"
def allred(op, x, t, rows=True):
    if rows:
        for n in (8, 4, 2, 1):
            I(op+"_dpp", v(x), v(x), v(x), mod=f"row_ror:{n} {DPPALL}")
    I("v_mov_b32", v(t), v(x)); I("v_permlane16_swap_b32", v(x), v(t)); I(op, v(x), v(x), v(t))
    I("v_mov_b32", v(t), v(x)); I("v_permlane32_swap_b32", v(x), v(t)); I(op, v(x), v(x), v(t))

def bfr1(x):
    I("v_cvt_pk_bf16_f32", v(x), v(x), v(x)); I("v_and_b32", v(x), s(sMASK), v(x))
def bfr2(x, y, w):
    I("v_cvt_pk_bf16_f32", v(w), v(x), v(y)); I("v_lshlrev_b32", v(x), 16, v(w)); I("v_and_b32", v(y), s(sMASK), v(w))

def layernorm(X, O, T):
    sm, tt, mean, var, den, rc = T[:6]
    I("v_add_f32", v(sm), v(X[0]), v(X[1]))
    for k in range(2, 9): I("v_add_f32", v(sm), v(sm), v(X[k]))
    allred("v_add_f32", sm, tt)
    I("v_mul_f32", v(mean), f32(1.0/576), v(sm))
    for k in range(9): I("v_sub_f32", v(O[k]), v(X[k]), v(mean))
    I("v_mul_f32", v(var), v(O[0]), v(O[0]))
    for k in range(1, 9): I("v_fmac_f32", v(var), v(O[k]), v(O[k]))
    allred("v_add_f32", var, tt)
    I("v_mul_f32", v(var), f32(1.0/576), v(var))
    bfr2(mean, var, tt)
    I("v_add_f32", v(var), f32(1e-5), v(var)); bfr1(var)
    I("v_sqrt_f32", v(den), v(var)); bfr1(den)
    I("v_rcp_f32", v(rc), v(den))
    for k in range(9): I("v_sub_f32", v(O[k]), v(X[k]), v(mean))
    for k in range(0, 8, 2): bfr2(O[k], O[k+1], tt)
    bfr1(O[8])
    for k in range(9):
        I("v_mul_f32", v(sm), v(O[k]), v(rc))
        I("v_fma_f32", v(tt), "-"+v(sm), v(den), v(O[k]))
        I("v_fma_f32", v(O[k]), v(tt), v(rc), v(sm))
    for k in range(0, 8, 2): bfr2(O[k], O[k+1], tt)
    bfr1(O[8])

vTID, vLANE, vKOFF, vM, vL = 0, 1, 2, 3, 4
vT = [5, 6, 7]
vQ = 8
vACC = 16
vS = 32
vP = 40
BIG = 48
KB = [192, 224]; VB = [208, 240]
NT = "nt"
POLS = ["", "nt", "sc1", "sc0", "sc0 sc1", "sc1 nt", "sc0 nt", "sc0 sc1 nt"]
WMOD = POLS[OPT['pwq']]; WOMOD = POLS[OPT['pwo']]

def tile_regs(kind, n):
    if STAGE[0] and n in (2, 3): return BIG + 32*(n-2) + (0 if kind == 'K' else 16)
    return (KB if kind == 'K' else VB)[n & 1]
def issue_tile_lds(kind, n):
    srdn = S_K if kind == 'K' else S_V
    q = 2*(n-2) + (0 if kind == 'K' else 1)
    I("s_lshl_b32", s(sT1), s(sW), 14); I("s_add_u32", s(sT1), s(sT1), L_ST+q*4096)
    I("s_mov_b32", "m0", s(sT1))
    I("s_mov_b32", s(sT0), n*32768)
    for i in range(4):
        a.raw(f"  buffer_load_dwordx4 {v(vKOFF)}, {sr(srdn)}, {s(sT0)} offen offset:{i*1024} {NT} lds"); a.pos += 1
        a.vm_issue(f"{kind}{n}")
def room():
    if len(a.vm) >= 62:
        I("s_waitcnt", f"vmcnt({len(a.vm)-4})"); a.vm = a.vm[4:]
def issue_one(kind, n, i):
    srdn = S_K if kind == 'K' else S_V
    room()
    if STAGE[0] and n in (2, 3):
        q = 2*(n-2) + (0 if kind == 'K' else 1)
        I("s_lshl_b32", s(sT1), s(sW), 14); I("s_add_u32", s(sT1), s(sT1), L_ST+q*4096)
        I("s_mov_b32", "m0", s(sT1))
        I("s_mov_b32", s(sT0), n*32768)
        a.raw(f"  buffer_load_dwordx4 {v(vKOFF)}, {sr(srdn)}, {s(sT0)} offen offset:{i*1024} {NT} lds"); a.pos += 1
    else:
        base = tile_regs(kind, n)
        I("s_mov_b32", s(sT0), n*32768)
        I("buffer_load_dwordx4", vr(base+4*i), v(vKOFF), sr(srdn), s(sT0), mod=f"offen offset:{i*1024} {NT}")
    a.vm_issue(f"{kind}{n}")
def read_tile_lds(kind, n):
    q = 2*(n-2) + (0 if kind == 'K' else 1)
    base = tile_regs(kind, n)
    for i in range(4):
        I("ds_read_b128", vr(base+4*i), v(7), mod=f"offset:{q*4096+i*1024}")
def issue_tile(kind, n):
    base = tile_regs(kind, n)
    srdn = S_K if kind == 'K' else S_V
    I("s_mov_b32", s(sT0), n*32768)
    for i in range(4):
        I("buffer_load_dwordx4", vr(base+4*i), v(vKOFF), sr(srdn), s(sT0), mod=f"offen offset:{i*1024} {NT}")
        a.vm_issue(f"{kind}{n}")

ts_n = [0]
def stamp(ra, rb):
    if not OPT['ts']: return
    I("s_memrealtime", "s[98:99]"); a.lgkm(0)
    I("s_lshl_b32", "s99", s(sW), 7)
    I("v_mov_b32", v(ra), "s98"); I("v_mov_b32", v(rb), "s99")
    I("ds_write_b32", v(rb), v(ra), mod=f"offset:{L_TS+4*ts_n[0]}")
    ts_n[0] += 1
def stamp_dump():
    if not OPT['ts']: return
    I("s_mov_b64", "exec", -1)
    I("s_lshl_b32", "s99", s(sW), 7)
    I("v_and_b32", v(5), 31, v(vLANE)); I("v_lshlrev_b32", v(5), 2, v(5)); I("v_add_u32", v(5), "s99", v(5))
    a.lgkm(0)
    I("ds_read_b32", v(6), v(5), mod=f"offset:{L_TS}")
    I("s_lshl_b32", s(sT0), "s2", 10); I("s_add_u32", s(sT0), s(sT0), 0x400000)
    srd(S_M1, P_WS, s(sT0), 1024)
    a.lgkm(0)
    I("buffer_store_dword", v(6), v(5), sr(S_M1), 0, mod="offen")

name = "recurrent_scan__gqa_block_cached__mixer_token_mlp__decode"
K1 = "attn_main_kernel"; K2 = "attn_fin_kernel"

def set_wq():
    I("s_lshl_b32", s(sT0), s(sKVH), 9)
    I("s_sub_u32", s(sT1), 576*8192, s(sT0))
    I("s_add_u32", s(S_WQ), s(P_WQ), s(sT0)); I("s_addc_u32", s(S_WQ+1), s(P_WQ+1), 0)
    I("s_mov_b32", s(S_WQ+2), s(sT1)); I("s_mov_b32", s(S_WQ+3), "0x20000")
def decode():
    I("s_lshr_b32", s(sKVH), s(sITEM), 4); I("s_and_b32", s(sKVH), s(sKVH), 15)
    I("s_and_b32", s(sSPLIT), s(sITEM), 3)
    I("s_bfe_u32", s(sB), s(sITEM), (2 << 16) | 2)
    I("s_lshl_b32", s(sP), s(sKVH), 2); I("s_or_b32", s(sP), s(sP), s(sSPLIT))
    I("s_lshl_b32", s(sBP), s(sB), 6); I("s_or_b32", s(sBP), s(sBP), s(sP))
    I("s_lshl_b32", s(sT0), s(sBP), 19)
    srd(S_K, P_K, s(sT0), 1 << 19); srd(S_V, P_V, s(sT0), 1 << 19)
    I("s_mul_i32", s(sT0), s(sBP), TSTRIDE); srd(S_WS, P_WS, s(sT0), TSTRIDE)
def wq_load(i):
    if OPT['nowq']: return
    room()
    I("s_mov_b32", s(sRO), i*8192)
    I("buffer_load_dwordx4", vr(BIG+4*i), v(7), sr(S_WQ), s(sRO), mod=f"offen {WMOD}"); a.vm_issue(f"wq{i}")
STMOD = POLS[OPT['pst']]

def k1():
    a.raw(f".globl {K1}\n.p2align 8\n.type {K1},@function\n{K1}:")
    I("s_cmp_ge_u32", "s2", 256); I("s_cbranch_scc1", "K1_END")
    I("s_load_dwordx16", "s[36:51]", "s[0:1]", 0)
    I("s_load_dwordx8", "s[52:59]", "s[0:1]", 64)
    I("s_load_dwordx2", "s[60:61]", "s[0:1]", 96)
    I("s_getreg_b32", s(sXCC), "hwreg(HW_REG_XCC_ID, 0, 4)"); I("s_and_b32", s(sXCC), s(sXCC), 7)
    if OPT['badx'] == 1: I("s_mov_b32", s(sXCC), 3)
    if OPT['badx'] == 2: I("s_and_b32", s(sXCC), s(sXCC), 5)
    I("s_lshl_b32", s(sKVH), s(sXCC), 1)
    I("s_bfe_u32", s(sT0), "s2", (1 << 16) | OPT['kbit']); I("s_or_b32", s(sKVH), s(sKVH), s(sT0))
    I("s_mov_b32", s(sSELLO), "0x05040100"); I("s_mov_b32", s(sSELHI), "0x07060302")
    I("s_mov_b32", s(sMASK), "0xffff0000"); I("s_mov_b32", s(sSCALE), f32(SCALE)); I("s_mov_b32", s(sLOG2E), f32(LOG2E))
    I("v_and_b32", v(vLANE), 63, v(vTID))
    I("v_lshrrev_b32", v(5), 6, v(vTID))
    I("v_readfirstlane_b32", s(sW), v(5))
    I("v_lshlrev_b32", v(vKOFF), 4, v(vLANE)); I("v_lshl_add_u32", v(vKOFF), v(5), 12, v(vKOFF))
    I("v_mul_u32_u24", v(6), 18, v(vLANE))
    I("v_lshrrev_b32", v(7), 5, v(vTID))
    I("v_mul_u32_u24", v(7), 36*8192, v(7))
    I("v_and_b32", v(40), 31, v(vTID)); I("v_lshl_add_u32", v(7), v(40), 4, v(7))
    a.lgkm(0)
    stamp(40,41)
    I("s_cmp_eq_u32", s(sW), 7); I("s_cbranch_scc1", "K1_TK")
    I("s_and_b32", s(sT0), s(sW), 3)
    I("s_mul_i32", s(sT0), s(sT0), 1152); srd(S_X, P_X, s(sT0), 1152)
    X = list(range(16, 25))
    for k in range(9):
        I("buffer_load_ushort", v(X[k]), v(6), sr(S_X), 0, mod=f"offen offset:{2*k}"); a.vm_issue("x")
    I("v_add_u32", v(6), s(sT0), v(6))
    set_wq()
    I("s_bitcmp1_b32", "s2", OPT['gbit']); I("s_cbranch_scc1", "K1_GB")
    import copy
    save = (copy.deepcopy(a.vm), ts_n[0])
    body(0, X)
    a.label("K1_GB")
    a.vm = save[0]; ts_n[0] = save[1]
    body(1, X)
    a.label("K1_TK")
    a.vm = []
    srd(S_M2, P_DBG, None, 256)
    I("s_mov_b64", "exec", 1)
    I("s_mov_b32", s(sFLAG), 0)
    a.label("K1_TKL")
    I("s_lshr_b32", s(sT0), s(sKVH), 1); I("s_lshl_b32", s(sT0), s(sT0), 5)
    I("s_and_b32", s(sT1), s(sKVH), 1); I("s_lshl_b32", s(sT1), s(sT1), 2); I("s_add_u32", s(sT0), s(sT0), s(sT1))
    I("v_mov_b32", v(41), s(sT0)); I("v_mov_b32", v(40), 1)
    I("buffer_atomic_add", v(40), v(41), sr(S_M2), 0, mod="offen sc0")
    I("s_waitcnt", "vmcnt(0)")
    I("v_readfirstlane_b32", s(sT0), v(40))
    a.nop(2)
    I("s_cmp_lt_u32", s(sT0), 16); I("s_cbranch_scc1", "K1_TKOK")
    I("s_add_u32", s(sKVH), s(sKVH), 1); I("s_and_b32", s(sKVH), s(sKVH), 15)
    I("s_add_u32", s(sFLAG), s(sFLAG), 1); I("s_cmp_lt_u32", s(sFLAG), 64); I("s_cbranch_scc1", "K1_TKL")
    I("s_and_b32", s(sT0), s(sT0), 15)
    a.label("K1_TKOK")
    I("s_lshl_b32", s(sITEM), s(sKVH), 4); I("s_or_b32", s(sITEM), s(sITEM), s(sT0))
    I("v_mov_b32", v(40), s(sITEM)); I("v_mov_b32", v(41), 0)
    I("ds_write_b32", v(41), v(40), mod=f"offset:{L_TK}")
    I("s_mov_b64", "exec", -1)
    a.lgkm(0)
    I("s_barrier")
    decode()
    if OPT['fused']:
        for k in range(4): I("v_mov_b32", v(40+k), -1)
        I("v_lshlrev_b32", v(5), 4, v(vLANE))
        for k in range(4): I("buffer_store_dwordx4", vr(40), v(5), sr(S_WS), 0, mod=f"offen offset:{1024*k} {STMOD}")
        I("s_movk_i32", s(sT0), 4096)
        I("buffer_store_dwordx4", vr(40), v(5), sr(S_WS), s(sT0), mod=f"offen {STMOD}")
        I("s_lshl_b32", s(sT0), s(sXCC), 5); I("s_add_u32", s(sT0), s(sT0), 8)
        I("v_mov_b32", v(45), s(sT0)); I("v_mov_b32", v(44), 1)
        I("s_waitcnt", "vmcnt(0)")
        I("s_mov_b64", "exec", 1)
        I("buffer_atomic_add", v(44), v(45), sr(S_M2), 0, mod="offen")
        I("s_mov_b64", "exec", -1)
    I("s_bitcmp1_b32", "s2", OPT['gbit']); I("s_cbranch_scc1", "K1_RQ2B")
    I("s_branch", "K1_RQ2A")
    a.label("K1_END")
    I("s_endpgm")

def body(G, X):
    O = dict(OPT); O.update(GOPT[G]); STAGE[0] = O['stage']
    sfx = "AB"[G]
    tl = (('K', 0), ('V', 0), ('K', 1), ('V', 1), ('K', 2), ('V', 2), ('K', 3), ('V', 3)) if O['stage'] else (('K', 0), ('V', 0), ('K', 1), ('V', 1))
    pend = [(k, n, i) for (k, n) in tl for i in range(4)]
    XN = list(range(25, 34)); T = list(range(34, 40))
    def do_ln():
        stamp(40,41)
        a.vm_wait("x")
        stamp(40,41)
        for k in range(9): I("v_lshlrev_b32", v(X[k]), 16, v(X[k]))
        layernorm(X, XN, T)
        for k in range(9):
            I("ds_write_b16_d16_hi", v(6), v(XN[k]), mod=f"offset:{L_XN+2*k}")
    if O['lnpos'] < 0: do_ln()
    for i in range(O['wqpre']):
        wq_load(i)
        if i == O['lnpos']: do_ln()
    assert O['lnpos'] < O['wqpre']
    a.lgkm(0)
    I("s_barrier")
    I("v_mov_b32", v(41), 0)
    I("ds_read_b32", v(40), v(41), mod=f"offset:{L_TK}")
    a.lgkm(0)
    I("v_readfirstlane_b32", s(sITEM), v(40))
    I("s_mov_b32", s(sFLAG), s(sKVH))
    a.nop(2)
    decode()
    I("s_cmp_eq_u32", s(sFLAG), s(sKVH)); I("s_cbranch_scc1", "K1_GO"+sfx)
    I("s_waitcnt", "vmcnt(0)")
    a.label("K1_RQ2"+sfx)
    import copy
    vmsave = copy.deepcopy(a.vm)
    a.vm = []
    set_wq()
    for i in range(O['wqpre']): wq_load(i)
    if not OPT['nowq']: assert a.vm == vmsave, (a.vm, vmsave)
    a.label("K1_GO"+sfx)
    stamp(40,41)
    for _ in range(O['kvfirst']):
        if pend: issue_one(*pend.pop(0))
    for i in range(O['wqpre'], 36): wq_load(i)
    for _ in range(O['kvafter']):
        if pend: issue_one(*pend.pop(0))
    I("s_mul_i32", s(sT0), s(sKVH), 256*1152); srd(S_WO, P_WO, s(sT0), 256*1152)
    srd(S_M1, P_W1, None, 9216); srd(S_M2, P_B1, None, 9216); srd(sM3, P_W2, None, 9216)
    I("v_lshrrev_b32", v(5), 5, v(vTID)); I("v_mul_u32_u24", v(5), 72, v(5))
    I("s_mul_i32", s(sT0), s(sB), 1152); I("v_add_u32", v(5), s(sT0), v(5))
    XP = 16
    for k in range(9):
        I("ds_read_b64", vr(XP+2*k, 2), v(5), mod=f"offset:{L_XN+8*k}")
    QA = 34
    stamp(40,41)
    PT = [42, 43, 44, 45, 46, 47]
    a.lgkm(0)
    for ip in range(18):
        a.vm_wait(f"wq{2*ip+1}")
        for _ in range(O['cred']):
            if pend: issue_one(*pend.pop(0))
        w0 = BIG+8*ip; w1 = w0+4
        for half in range(2):
            for r in (2*half, 2*half+1):
                t0, t1 = PT[2*(r & 1)], PT[2*(r & 1)+1]
                I("v_perm_b32", v(t0), v(w1+r), v(w0+r), s(sSELLO))
                I("v_perm_b32", v(t1), v(w1+r), v(w0+r), s(sSELHI))
            for r in (2*half, 2*half+1):
                t0, t1 = PT[2*(r & 1)], PT[2*(r & 1)+1]
                if ip == 0:
                    I("v_dot2_f32_bf16", v(QA+2*r), v(t0), v(XP+ip), 0)
                    I("v_dot2_f32_bf16", v(QA+2*r+1), v(t1), v(XP+ip), 0)
                else:
                    I("v_dot2_f32_bf16", v(QA+2*r), v(t0), v(XP+ip), v(QA+2*r))
                    I("v_dot2_f32_bf16", v(QA+2*r+1), v(t1), v(XP+ip), v(QA+2*r+1))
    stamp(5,6)
    GR = 128
    gW1r, gB1r, gW2r = GR, GR+4, GR+8
    gW1x, gB1x, gW2x = GR+12, GR+13, GR+14
    I("v_lshlrev_b32", v(5), 4, v(vTID)); I("v_lshlrev_b32", v(6), 1, v(vTID))
    for (dst, dx, sd) in ((gW1r, gW1x, S_M1), (gB1r, gB1x, S_M2), (gW2r, gW2x, sM3)):
        I("buffer_load_dwordx4", vr(dst), v(5), sr(sd), 0, mod="offen"); a.vm_issue("gw")
        I("s_movk_i32", s(sT0), 8192)
        I("buffer_load_ushort", v(dx), v(6), sr(sd), s(sT0), mod="offen"); a.vm_issue("gw")
    for k in range(4):
        I("v_permlane32_swap_b32", v(QA+k), v(QA+k+4))
    for k in range(4):
        I("v_add_f32", v(QA+k), v(QA+k), v(QA+k+4))
    I("v_and_b32", v(5), 31, v(vLANE)); I("v_lshlrev_b32", v(5), 5, v(5))
    I("v_lshrrev_b32", v(6), 5, v(vLANE)); I("v_lshl_add_u32", v(5), v(6), 4, v(5))
    I("s_lshl_b32", s(sT0), s(sW), 10); I("s_add_u32", s(sT0), s(sT0), L_QP); I("v_add_u32", v(5), s(sT0), v(5))
    I("ds_write_b128", v(5), vr(QA))
    if not O['pendlate']:
        while pend: issue_one(*pend.pop(0))
    a.lgkm(0)
    I("s_barrier")
    I("v_lshlrev_b32", v(5), 4, v(vLANE)); I("v_add_u32", v(5), L_QP, v(5))
    for w in range(8):
        I("ds_read_b128", vr(BIG+4*w), v(5), mod=f"offset:{1024*w}")
    a.lgkm(0)
    for st in (4, 2, 1):
        for w in range(st):
            for k in range(4):
                I("v_add_f32", v(BIG+4*w+k), v(BIG+4*w+k), v(BIG+4*(w+st)+k))
    I("v_cvt_pk_bf16_f32", v(BIG), v(BIG), v(BIG+1)); I("v_cvt_pk_bf16_f32", v(BIG+1), v(BIG+2), v(BIG+3))
    I("s_lshl_b32", s(sT0), s(sW), 9)
    I("v_lshlrev_b32", v(5), 3, v(vLANE)); I("v_add_u32", v(5), s(sT0), v(5))
    I("ds_write_b64", v(5), vr(BIG, 2), mod=f"offset:{L_QS}")
    I("v_and_b32", v(5), 15, v(vLANE)); I("v_lshlrev_b32", v(5), 4, v(5)); I("v_add_u32", v(5), s(sT0), v(5))
    a.lgkm(0)
    I("ds_read_b128", vr(vQ), v(5), mod=f"offset:{L_QS}")
    I("ds_read_b128", vr(vQ+4), v(5), mod=f"offset:{L_QS+256}")
    while pend: issue_one(*pend.pop(0))
    for k in range(16): I("v_mov_b32", v(vACC+k), 0)
    I("v_mov_b32", v(vM), f32(-1e30)); I("v_mov_b32", v(vL), 0)
    a.lgkm(0)

    stamp(5,6)
    gW1f = GR+16; gB1f = GR+25; gY = GR+34; gT = GR+43
    vC1 = GR+15
    def gate_prep():
        XX = [gW1f+i for i in range(9)]; HH = [gB1f+i for i in range(9)]
        I("v_mul_u32_u24", v(gT+12), 18, v(vLANE))
        I("s_mul_i32", s(sT0), s(sB), 1152); I("v_add_u32", v(gT+12), s(sT0), v(gT+12))
        for k in range(9): I("v_mov_b32", v(XX[k]), 0)
        for k in range(9): I("ds_read_u16_d16_hi", v(XX[k]), v(gT+12), mod=f"offset:{L_XN+2*k}")
        a.lgkm(0)
        layernorm(XX, HH, [gT+i for i in range(6)])
        for k in range(9): I("v_readlane_b32", s(sH+k), v(HH[k]), s(sP))
        a.vm_wait("gw")
        I("v_mov_b32", v(vC1), f32(C1))
        for q in range(4):
            I("v_lshlrev_b32", v(gW1f+2*q), 16, v(gW1r+q)); I("v_and_b32", v(gW1f+2*q+1), s(sMASK), v(gW1r+q))
            I("v_lshlrev_b32", v(gB1f+2*q), 16, v(gB1r+q)); I("v_and_b32", v(gB1f+2*q+1), s(sMASK), v(gB1r+q))
        I("v_lshlrev_b32", v(gW1f+8), 16, v(gW1x)); I("v_lshlrev_b32", v(gB1f+8), 16, v(gB1x))
        I("v_lshlrev_b32", v(gW2x), 16, v(gW2x))
    def gelu_list(U, TT):
        for u, t in zip(U, TT): I("v_mul_f32", v(t), v(u), v(u))
        for u, t in zip(U, TT): I("v_fmaak_f32", v(t), v(t), v(vC1), f32(C0))
        for u, t in zip(U, TT): I("v_mul_f32", v(t), v(t), v(u))
        for u, t in zip(U, TT): I("v_exp_f32", v(t), "-"+v(t))
        for u, t in zip(U, TT): I("v_add_f32", v(t), 1.0, v(t))
        for u, t in zip(U, TT): I("v_rcp_f32", v(t), v(t))
        for u, t in zip(U, TT): I("v_mul_f32", v(u), v(u), v(t))
    def gate_col(k):
        if OPT['nogate']: return
        for hh in range(2):
            U = [gT+i for i in range(4)]; TT = [gT+4+i for i in range(4)]; W = [gT+8, gT+9]
            for i in range(4): I("v_mul_f32", v(U[i]), s(sH+k), v(gW1f+4*hh+i))
            bfr2(U[0], U[1], W[0]); bfr2(U[2], U[3], W[1])
            for i in range(4): I("v_add_f32", v(U[i]), v(U[i]), v(gB1f+4*hh+i))
            bfr2(U[0], U[1], W[0]); bfr2(U[2], U[3], W[1])
            gelu_list(U, TT)
            I("v_cvt_pk_bf16_f32", v(W[0]), v(U[0]), v(U[1])); I("v_cvt_pk_bf16_f32", v(W[1]), v(U[2]), v(U[3]))
            I("v_dot2_f32_bf16", v(gY+k), v(W[0]), v(gW2r+2*hh), 0 if hh == 0 else v(gY+k))
            I("v_dot2_f32_bf16", v(gY+k), v(W[1]), v(gW2r+2*hh+1), v(gY+k))
    def gate_fin():
        for grp in ((0, 1, 2, 3), (4, 5, 6, 7), (8,)):
            n = len(grp)
            U = [gT+i for i in range(n)]; TT = [gT+4+i for i in range(n)]; W = [gT+8, gT+9]
            for i, k in enumerate(grp): I("v_mul_f32", v(U[i]), s(sH+k), v(gW1f+8))
            def rnd():
                if n == 4: bfr2(U[0], U[1], W[0]); bfr2(U[2], U[3], W[1])
                else: bfr1(U[0])
            rnd()
            for i in range(n): I("v_add_f32", v(U[i]), v(U[i]), v(gB1f+8))
            rnd()
            gelu_list(U, TT)
            rnd()
            for i, k in enumerate(grp): I("v_fmac_f32", v(gY+k), v(U[i]), v(gW2x))
        for n in (8, 4, 2, 1):
            for k in range(9):
                I("v_add_f32_dpp", v(gY+k), v(gY+k), v(gY+k), mod=f"row_ror:{n} {DPPALL}")
        for (sw) in ("v_permlane16_swap_b32", "v_permlane32_swap_b32"):
            for k in range(9): I("v_mov_b32", v(gT+k), v(gY+k))
            for k in range(9): I(sw, v(gY+k), v(gT+k))
            for k in range(9): I("v_add_f32", v(gY+k), v(gY+k), v(gT+k))
        I("s_lshl_b32", s(sT0), s(sW), 6); I("v_mov_b32", v(gT), s(sT0))
        for k in range(9):
            I("ds_write_b32", v(gT), v(gY+k), mod=f"offset:{L_GP+4*k}")

    wo_loads = [('m', k) for k in range(32)] + [('l', q) for q in range(4)]
    vWOM, vWOL = 46, 47
    def wo_addr():
        I("s_mul_i32", s(sT0), s(sW), 32*1152)
        I("v_lshlrev_b32", v(vWOM), 4, v(vLANE)); I("v_add_u32", v(vWOM), s(sT0), v(vWOM))
        I("v_lshrrev_b32", v(5), 3, v(vLANE)); I("v_mul_u32_u24", v(5), 4*1152, v(5))
        I("v_and_b32", v(6), 7, v(vLANE)); I("v_lshl_add_u32", v(5), v(6), 4, v(5))
        I("s_add_u32", s(sT0), s(sT0), 1024); I("v_add_u32", v(vWOL), s(sT0), v(5))
    def wo_issue(idx):
        kind, k = wo_loads[idx]
        if OPT['nowo']: return
        room()
        if kind == 'm':
            I("s_mov_b32", s(sT1), (k//3)*3456)
            I("buffer_load_dwordx4", vr(BIG+4*k), v(vWOM), sr(S_WO), s(sT1), mod=f"offen offset:{(k%3)*1152} {WOMOD}")
        else:
            I("buffer_load_dwordx4", vr(BIG+128+4*k), v(vWOL), sr(S_WO), 0, mod=f"offen offset:{k*1152} {WOMOD}")
        a.vm_issue(f"wo{idx}")
    WP = {}
    free = [45]
    def wo_perm(pair):
        a.vm_wait(f"wo{2*pair+1}")
        r0 = BIG+8*pair; r1 = r0+4
        for r in range(4):
            f = free.pop()
            I("v_perm_b32", v(f), v(r1+r), v(r0+r), s(sSELLO))
            I("v_perm_b32", v(r1+r), v(r1+r), v(r0+r), s(sSELHI))
            WP[(pair, 2*r)] = f; WP[(pair, 2*r+1)] = r1+r
            free.append(r0+r)
    wo_addr()

    gate_next = 0; wo_next = 0; perm_next = 0; wo_hist = {}
    gate_done = False
    PTm = [40, 41, 42, 43]; vPP = 44
    for n in range(16):
        kb = tile_regs('K', n); vb = tile_regs('V', n)
        if OPT['tbar'] and n >= 4 and n % OPT['tbar'] == 0: I("s_barrier")
        a.vm_wait(f"K{n}")
        stamp(5,6)
        if n == 15:
            srd(S_M1, P_B2, None, 2)
            I("v_mov_b32", v(7), 0)
            I("buffer_load_ushort", v(192), v(7), sr(S_M1), 0, mod="offen"); a.vm_issue("misc")
            if OPT['fused']:
                I("s_mul_i32", s(sT0), s(sBP), 18); srd(S_X, P_X, s(sT0), 18)
                I("v_lshlrev_b32", v(196), 1, v(vLANE))
                I("buffer_load_ushort", v(193), v(196), sr(S_X), 0, mod="offen"); a.vm_issue("misc")
                srd(S_M2, P_DBG, None, 256)
                I("v_lshlrev_b32", v(195), 2, v(vLANE))
                I("buffer_load_dword", v(194), v(195), sr(S_M2), 0, mod="offen sc1"); a.vm_issue("misc")
        nxt = (n+4 if n < 2 else (None if n < 4 else n+2)) if O['stage'] else n+2
        if nxt is not None and nxt >= 16: nxt = None
        if O['stage'] and n in (2, 3):
            I("s_lshl_b32", s(sT1), s(sW), 14); I("s_add_u32", s(sT1), s(sT1), L_ST)
            I("v_lshlrev_b32", v(7), 4, v(vLANE)); I("v_add_u32", v(7), s(sT1), v(7))
            read_tile_lds('K', n)
            a.vm_wait(f"V{n}")
            read_tile_lds('V', n)
            a.lgkm(4)
        for r in range(4):
            for i in range(4):
                for h in range(2):
                    d = vS+4*h+i
                    I("v_dot2_f32_bf16", v(d), v(kb+4*i+r), v(vQ+4*h+r), 0 if r == 0 else v(d))
        if nxt is not None: issue_tile('K', nxt)
        for h in range(2):
            for e in range(2):
                d = vS+4*h+e
                I("v_add_f32_dpp", v(d), v(d), v(d), mod="row_ror:8 row_mask:0xf bank_mask:0x3")
        for h in range(2):
            for e in range(2):
                d = vS+4*h+e; sft = vS+4*h+2+e
                I("v_add_f32_dpp", v(d), v(sft), v(sft), mod="row_ror:8 row_mask:0xf bank_mask:0xc")
        for e in range(2):
            d = vS+e
            I("v_add_f32_dpp", v(d), v(d), v(d), mod="row_shl:4 row_mask:0xf bank_mask:0x5")
        for e in range(2):
            d = vS+e; sft = vS+4+e
            I("v_add_f32_dpp", v(d), v(sft), v(sft), mod="row_shr:4 row_mask:0xf bank_mask:0xa")
        for qp in ("[1,0,3,2]", "[2,3,0,1]"):
            for e in range(2):
                d = vS+e
                I("v_add_f32_dpp", v(d), v(d), v(d), mod=f"quad_perm:{qp} {DPPALL}")
        A, B, W, TM, AL = vS, vS+1, vS+2, vS+3, vS+4
        bfr2(A, B, W)
        I("v_mul_f32", v(A), s(sSCALE), v(A)); I("v_mul_f32", v(B), s(sSCALE), v(B))
        bfr2(A, B, W)
        I("v_max_f32", v(TM), v(A), v(B))
        I("v_max_f32_dpp", v(TM), v(TM), v(TM), mod=f"row_ror:8 {DPPALL}")
        I("v_mul_f32", v(TM), s(sLOG2E), v(TM))
        I("v_max_f32", v(TM), v(TM), v(vM))
        I("v_sub_f32", v(AL), v(vM), v(TM))
        I("v_fma_f32", v(A), v(A), s(sLOG2E), "-"+v(TM))
        I("v_fma_f32", v(B), v(B), s(sLOG2E), "-"+v(TM))
        I("v_exp_f32", v(AL), v(AL)); I("v_exp_f32", v(A), v(A)); I("v_exp_f32", v(B), v(B))
        I("v_mov_b32", v(vM), v(TM))
        I("v_fma_f32", v(vL), v(vL), v(AL), v(A))
        I("v_cvt_pk_bf16_f32", v(vPP), v(A), v(B))
        I("v_add_f32", v(vL), v(vL), v(B))
        for h in range(2):
            for k in range(8):
                d = vACC+8*h+k
                I("v_mul_f32_dpp", v(d), v(AL), v(d), mod=f"row_newbcast:{4*h} {DPPALL}")
        a.vm_wait(f"V{n}")
        if O['stage'] and n in (2, 3): a.lgkm(0)
        for j in range(2):
            for rr in range(2):
                for r in (2*rr, 2*rr+1):
                    t0, t1 = PTm[2*(r & 1)], PTm[2*(r & 1)+1]
                    I("v_perm_b32", v(t0), v(vb+4*(2*j+1)+r), v(vb+4*(2*j)+r), s(sSELLO))
                    I("v_perm_b32", v(t1), v(vb+4*(2*j+1)+r), v(vb+4*(2*j)+r), s(sSELHI))
                for h in range(2):
                    for r in (2*rr, 2*rr+1):
                        t0, t1 = PTm[2*(r & 1)], PTm[2*(r & 1)+1]
                        I("v_dot2c_f32_bf16_dpp", v(vACC+8*h+2*r), v(vPP), v(t0), mod=f"row_newbcast:{4*(2*j+h)} {DPPALL}")
                        I("v_dot2c_f32_bf16_dpp", v(vACC+8*h+2*r+1), v(vPP), v(t1), mod=f"row_newbcast:{4*(2*j+h)} {DPPALL}")
        if nxt is not None: issue_tile('V', nxt)
        if n >= O['gate_start'] and not gate_done:
            if gate_next == 0: gate_prep()
            for _ in range(O['gate_per_tile']):
                if gate_next < 9:
                    gate_col(gate_next); gate_next += 1
            if gate_next == 9:
                gate_fin(); gate_done = True
        if n >= O['wo_start']:
            lim = wo_hist.get(n-2, 0)
            while perm_next < 18 and 2*perm_next+1 < lim:
                wo_perm(perm_next); perm_next += 1
            for _ in range(O['wo_per_tile']):
                if wo_next < 36 and (wo_next < 20 or gate_done) and (wo_next >= 16 or n >= 3 or not O['stage']):
                    wo_issue(wo_next); wo_next += 1
            wo_hist[n] = wo_next
            if n == 15:
                while perm_next < 18:
                    wo_perm(perm_next); perm_next += 1
    assert wo_next == 36 and perm_next == 18, (wo_next, perm_next)

    stamp(5,6)
    T0, T1, T2 = vS, vS+1, vS+2
    I("v_add_f32_dpp", v(vL), v(vL), v(vL), mod=f"row_ror:8 {DPPALL}")
    I("v_mov_b32", v(T0), v(vM))
    allred("v_max_f32", T0, T1, rows=False)
    I("v_sub_f32", v(T2), v(vM), v(T0)); I("v_exp_f32", v(T2), v(T2))
    I("v_mul_f32", v(vL), v(vL), v(T2))
    for h in range(2):
        for k in range(8):
            d = vACC+8*h+k
            I("v_mul_f32_dpp", v(d), v(T2), v(d), mod=f"row_newbcast:{4*h} {DPPALL}")
    allred("v_add_f32", vL, T1, rows=False)
    for k in range(8): I("v_permlane32_swap_b32", v(vACC+k), v(vACC+8+k))
    for k in range(8): I("v_add_f32", v(vACC+k), v(vACC+k), v(vACC+8+k))
    for k in range(4): I("v_permlane16_swap_b32", v(vACC+k), v(vACC+4+k))
    for k in range(4): I("v_add_f32", v(vACC+k), v(vACC+k), v(vACC+4+k))
    I("v_and_b32", v(5), 15, v(vLANE)); I("v_lshlrev_b32", v(5), 5, v(5))
    I("v_bfe_u32", v(6), v(vLANE), 4, 1); I("v_lshl_add_u32", v(5), v(6), 4, v(5))
    I("v_lshrrev_b32", v(6), 5, v(vLANE)); I("v_lshl_add_u32", v(5), v(6), 9, v(5))
    I("s_lshl_b32", s(sT0), s(sW), 10); I("s_add_u32", s(sT0), s(sT0), L_OP); I("v_add_u32", v(5), s(sT0), v(5))
    I("ds_write_b128", v(5), vr(vACC))
    I("v_bfe_u32", v(6), v(vLANE), 2, 1); I("v_lshlrev_b32", v(6), 5, v(6))
    I("s_lshl_b32", s(sT0), s(sW), 2); I("v_add_u32", v(6), s(sT0), v(6))
    I("ds_write_b32", v(6), v(T0), mod=f"offset:{L_ML}")
    I("ds_write_b32", v(6), v(vL), mod=f"offset:{L_ML+64}")
    a.lgkm(0)
    I("s_barrier")
    stamp(5,6)
    R = 208
    I("v_lshrrev_b32", v(5), 3, v(vLANE)); I("v_lshlrev_b32", v(5), 4, v(5))
    I("s_lshl_b32", s(sT0), s(sW), 7); I("s_add_u32", s(sT0), s(sT0), L_OP); I("v_add_u32", v(5), s(sT0), v(5))
    I("s_lshr_b32", s(sT1), s(sW), 2); I("s_lshl_b32", s(sT1), s(sT1), 5); I("v_mov_b32", v(6), s(sT1))
    MM = R+32; LL = R+40
    I("ds_read_b128", vr(MM), v(6), mod=f"offset:{L_ML}"); I("ds_read_b128", vr(MM+4), v(6), mod=f"offset:{L_ML+16}")
    I("ds_read_b128", vr(LL), v(6), mod=f"offset:{L_ML+64}"); I("ds_read_b128", vr(LL+4), v(6), mod=f"offset:{L_ML+80}")
    for w in range(8):
        I("ds_read_b128", vr(R+4*w), v(5), mod=f"offset:{1024*w}")
    a.lgkm(10)
    MX = vS; LS = vS+1; O = vS+2
    I("v_max3_f32", v(MX), v(MM), v(MM+1), v(MM+2)); I("v_max3_f32", v(MX), v(MX), v(MM+3), v(MM+4))
    I("v_max3_f32", v(MX), v(MX), v(MM+5), v(MM+6)); I("v_max_f32", v(MX), v(MX), v(MM+7))
    for w in range(8): I("v_sub_f32", v(MM+w), v(MM+w), v(MX))
    for w in range(8): I("v_exp_f32", v(MM+w), v(MM+w))
    a.lgkm(8)
    I("v_mul_f32", v(LS), v(MM), v(LL))
    for w in range(1, 8): I("v_fmac_f32", v(LS), v(MM+w), v(LL+w))
    a.lgkm(0)
    for w in range(8):
        for q in range(4):
            if w == 0: I("v_mul_f32", v(O+q), v(MM), v(R+q))
            else: I("v_fmac_f32", v(O+q), v(MM+w), v(R+4*w+q))
    P01, P23 = vS+6, vS+7
    I("v_cvt_pk_bf16_f32", v(P01), v(O), v(O+1)); I("v_cvt_pk_bf16_f32", v(P23), v(O+2), v(O+3))
    for rr in range(8):
        I("v_readlane_b32", s(sH+2*rr), v(P01), 8*rr); I("v_readlane_b32", s(sH+2*rr+1), v(P23), 8*rr)
    I("s_lshr_b32", s(sT1), s(sW), 2); I("s_lshl_b32", s(sT1), s(sT1), 3); I("v_mov_b32", v(6), s(sT1))
    I("ds_write_b64", v(6), vr(MX, 2), mod=f"offset:{L_ML2}")
    TL = vACC+8; TMn = vACC
    for c in range(8): I("v_dot2_f32_bf16", v(TL+c), v(WP[(16, c)]), v(P01), 0)
    for c in range(8): I("v_dot2_f32_bf16", v(TL+c), v(WP[(17, c)]), v(P23), v(TL+c))
    for k in range(16):
        for c in range(8):
            I("v_dot2_f32_bf16", v(TMn+c), v(WP[(k, c)]), s(sH+k), 0 if k == 0 else v(TMn+c))
    for k in range(4): I("v_permlane32_swap_b32", v(TL+k), v(TL+4+k))
    for k in range(4): I("v_add_f32", v(TL+k), v(TL+k), v(TL+4+k))
    for k in range(2): I("v_permlane16_swap_b32", v(TL+k), v(TL+2+k))
    for k in range(2): I("v_add_f32", v(TL+k), v(TL+k), v(TL+2+k))
    I("v_add_f32_dpp", v(TL), v(TL), v(TL), mod="row_ror:8 row_mask:0xf bank_mask:0x3")
    I("v_add_f32_dpp", v(TL), v(TL+1), v(TL+1), mod="row_ror:8 row_mask:0xf bank_mask:0xc")
    I("s_mul_i32", s(sT0), s(sW), 2304)
    I("v_and_b32", v(5), 7, v(vLANE)); I("v_lshlrev_b32", v(5), 5, v(5))
    I("v_lshrrev_b32", v(6), 3, v(vLANE)); I("v_lshl_add_u32", v(5), v(6), 2, v(5)); I("v_add_u32", v(5), s(sT0), v(5))
    I("v_lshlrev_b32", v(6), 5, v(vLANE)); I("v_add_u32", v(6), s(sT0), v(6))
    I("ds_write_b128", v(6), vr(TMn), mod=f"offset:{L_TP}")
    I("ds_write_b128", v(6), vr(TMn+4), mod=f"offset:{L_TP+16}")
    I("ds_write_b32", v(5), v(TL), mod=f"offset:{L_TP+2048}")
    stamp(7,40)
    a.lgkm(0)
    I("s_barrier")
    stamp(5,6)
    I("s_cmp_ge_u32", s(sW), 5); I("s_cbranch_scc1", "K1_W5"+sfx)
    I("v_cmp_gt_u32", "vcc", 288, v(vTID)); I("s_and_saveexec_b64", "s[96:97]", "vcc")
    I("v_lshlrev_b32", v(5), 4, v(vTID))
    I("v_cmp_le_u32", "vcc", 144, v(vTID)); I("v_mov_b32", v(7), 6912); I("v_cndmask_b32", v(6), 0, v(7), "vcc")
    I("v_add_u32", v(6), v(6), v(5))
    for w in range(4): I("ds_read_b128", vr(R+4*w), v(6), mod=f"offset:{L_TP+2304*w}")
    a.lgkm(0)
    for k in range(4):
        I("v_add_f32", v(R+k), v(R+k), v(R+4+k)); I("v_add_f32", v(R+8+k), v(R+8+k), v(R+12+k))
    for k in range(4): I("v_add_f32", v(R+k), v(R+k), v(R+8+k))
    I("buffer_store_dwordx4", vr(R), v(5), sr(S_WS), 0, mod="offen "+(STMOD if OPT['fused'] else ""))
    I("s_branch", "K1_FIN"+sfx)
    a.label("K1_W5"+sfx)
    I("s_cmp_lg_u32", s(sW), 5); I("s_cbranch_scc1", "K1_W6"+sfx)
    I("s_mov_b64", "exec", 1)
    I("v_mov_b32", v(5), 0)
    I("ds_read_b128", vr(R), v(5), mod=f"offset:{L_ML2}")
    a.lgkm(0)
    I("s_movk_i32", s(sT0), 4608)
    I("buffer_store_dwordx4", vr(R), v(5), sr(S_WS), s(sT0), mod="offen "+(STMOD if OPT['fused'] else ""))
    I("s_branch", "K1_FIN"+sfx)
    a.label("K1_W6"+sfx)
    I("s_cmp_lg_u32", s(sW), 6); I("s_cbranch_scc1", "K1_FIN"+sfx)
    I("s_mov_b64", "exec", 0x1ff)
    I("v_lshlrev_b32", v(5), 2, v(vLANE))
    for w in range(8): I("ds_read_b32", v(R+w), v(5), mod=f"offset:{L_GP+64*w}")
    a.lgkm(0)
    for st in (4, 2, 1):
        for w in range(st): I("v_add_f32", v(R+w), v(R+w), v(R+w+st))
    bfr1(R)
    I("s_waitcnt", "vmcnt(0)")
    I("v_lshlrev_b32", v(R+8), 16, v(192))
    I("v_add_f32", v(R), v(R), v(R+8)); bfr1(R)
    I("v_mul_f32", v(R+1), s(sLOG2E), v(R)); I("v_exp_f32", v(R+1), "-"+v(R+1))
    I("v_add_f32", v(R+1), 1.0, v(R+1)); I("v_rcp_f32", v(R+2), v(R+1))
    I("v_mul_f32", v(R+3), v(R), v(R+2))
    I("v_fma_f32", v(R+4), "-"+v(R+3), v(R+1), v(R)); I("v_fma_f32", v(R+3), v(R+4), v(R+2), v(R+3))
    bfr1(R+3)
    if not OPT['fused']:
        I("s_mul_i32", s(sT0), s(sBP), 36); I("s_add_u32", s(sT0), s(sT0), G_OFF)
        srd(S_M2, P_WS, s(sT0), 36)
        I("buffer_store_dword", v(R+3), v(5), sr(S_M2), 0, mod="offen")
    else:
        I("v_mov_b32", v(197), v(R+3))
        I("s_mov_b64", "exec", -1)
        I("v_mul_u32_u24", v(5), TSTRIDE, v(vLANE))
        I("s_mul_i32", s(sT1), s(sP), 36); I("v_add_u32", v(6), s(sT1), v(5))
        I("s_mul_i32", s(sT0), s(sB), 64*TSTRIDE); srd(S_WS, P_WS, s(sT0), 64*TSTRIDE)
        I("s_mul_i32", s(sT0), s(sBP), 18); srd(S_M1, P_OUT, s(sT0), 18)
        I("v_and_b32", v(7), 7, v(vLANE)); I("v_cmp_eq_u32", "s[96:97]", 2, v(7))
        I("s_mov_b32", s(sFLAG), 0)
        a.label("K1_ST"+sfx)
        I("v_cndmask_b32", v(198), 0, v(194), "s[96:97]")
        allred("v_add_u32", 198, 199)
        I("v_readfirstlane_b32", s(sT0), v(198))
        a.nop(2)
        I("s_cmp_eq_u32", s(sT0), 256); I("s_cbranch_scc1", "K1_STOK"+sfx)
        I("s_add_u32", s(sFLAG), s(sFLAG), 1); I("s_cmp_gt_u32", s(sFLAG), 20000); I("s_cbranch_scc1", "K1_STOK"+sfx)
        I("s_sleep", 16)
        I("buffer_load_dword", v(194), v(195), sr(S_M2), 0, mod="offen sc1")
        I("s_waitcnt", "vmcnt(0)")
        I("s_branch", "K1_ST"+sfx)
        a.label("K1_STOK"+sfx)
        I("s_mov_b64", "s[96:97]", -1)
        I("s_movk_i32", s(sT1), 4608)
        a.label("K1_PL"+sfx)
        I("s_mov_b64", "exec", "s[96:97]")
        LM = "sc1"
        I("buffer_load_dwordx4", vr(R+24), v(5), sr(S_WS), s(sT1), mod=f"offen {LM}")
        I("buffer_load_dwordx4", vr(R), v(6), sr(S_WS), 0, mod=f"offen {LM}")
        I("buffer_load_dwordx4", vr(R+4), v(6), sr(S_WS), 0, mod=f"offen offset:16 {LM}")
        I("buffer_load_dword", v(R+8), v(6), sr(S_WS), 0, mod=f"offen offset:32 {LM}")
        I("buffer_load_dwordx4", vr(R+12), v(6), sr(S_WS), 0, mod=f"offen offset:2304 {LM}")
        I("buffer_load_dwordx4", vr(R+16), v(6), sr(S_WS), 0, mod=f"offen offset:2320 {LM}")
        I("buffer_load_dword", v(R+20), v(6), sr(S_WS), 0, mod=f"offen offset:2336 {LM}")
        I("s_waitcnt", "vmcnt(0)")
        regs = [R+k for k in range(9)] + [R+12+k for k in range(9)] + [R+24+k for k in range(4)]
        I("v_max3_u32", v(198), v(regs[0]), v(regs[1]), v(regs[2]))
        I("v_max3_u32", v(199), v(regs[3]), v(regs[4]), v(regs[5]))
        for k in range(6, 22, 4):
            I("v_max3_u32", v(198), v(198), v(regs[k]), v(regs[k+1]))
            I("v_max3_u32", v(199), v(199), v(regs[k+2]), v(regs[k+3]))
        I("v_max_u32", v(198), v(198), v(199))
        I("v_cmp_eq_u32", "s[96:97]", -1, v(198))
        a.nop(2)
        I("s_cmp_eq_u64", "s[96:97]", 0); I("s_cbranch_scc1", "K1_PD"+sfx)
        I("s_add_u32", s(sFLAG), s(sFLAG), 1); I("s_cmp_gt_u32", s(sFLAG), 20000); I("s_cbranch_scc1", "K1_PD"+sfx)
        I("s_bcnt1_i32_b64", s(sT0), "s[96:97]"); I("s_cmp_le_u32", s(sT0), OPT['thr']); I("s_cbranch_scc1", "K1_PS"+sfx)
        I("s_sleep", OPT['slp_l'])
        a.label("K1_PS"+sfx)
        if OPT['slp_s']: I("s_sleep", OPT['slp_s'])
        I("s_branch", "K1_PL"+sfx)
        a.label("K1_PD"+sfx)
        I("s_mov_b64", "exec", -1)
        stamp(198,199)
        fin_math(R, 197, 193, vLANE)
        I("s_mov_b64", "exec", 0x1ff)
        I("buffer_store_short", v(R), v(196), sr(S_M1), 0, mod="offen")
    a.label("K1_FIN"+sfx)
    stamp(5,6)
    stamp_dump()
    I("s_endpgm")

def fin_math(R, G, XV, LN):
    ML = R+24; C = [R+32, R+33]; T = R+34
    for h in range(2):
        Mv, Lv = ML+2*h, ML+2*h+1
        I("v_max_f32_dpp", v(T), v(Mv), v(Mv), mod=f"quad_perm:[1,0,3,2] {DPPALL}")
        I("v_max_f32_dpp", v(T), v(T), v(T), mod=f"quad_perm:[2,3,0,1] {DPPALL}")
        I("v_sub_f32", v(T), v(Mv), v(T)); I("v_exp_f32", v(C[h]), v(T))
        I("v_mul_f32", v(T), v(C[h]), v(Lv))
        I("v_add_f32_dpp", v(T), v(T), v(T), mod=f"quad_perm:[1,0,3,2] {DPPALL}")
        I("v_add_f32_dpp", v(T), v(T), v(T), mod=f"quad_perm:[2,3,0,1] {DPPALL}")
        I("v_rcp_f32", v(T), v(T))
        I("v_mul_f32", v(C[h]), v(C[h]), v(T))
    for k in range(9): I("v_mul_f32", v(R+k), v(C[0]), v(R+k))
    for k in range(9): I("v_fmac_f32", v(R+k), v(C[1]), v(R+12+k))
    for n in (8, 4, 2, 1):
        for k in range(9): I("v_add_f32_dpp", v(R+k), v(R+k), v(R+k), mod=f"row_ror:{n} {DPPALL}")
    for sw in ("v_permlane16_swap_b32", "v_permlane32_swap_b32"):
        for k in range(9): I("v_mov_b32", v(R+12+k), v(R+k))
        for k in range(9): I(sw, v(R+k), v(R+12+k))
        for k in range(9): I("v_add_f32", v(R+k), v(R+k), v(R+12+k))
    for k in range(1, 9):
        I("v_cmp_eq_u32", "vcc", k, v(LN)); I("v_cndmask_b32", v(R), v(R), v(R+k), "vcc")
    bfr1(R)
    I("v_mul_f32", v(R), v(R), v(G)); bfr1(R)
    I("v_lshlrev_b32", v(XV), 16, v(XV))
    I("v_add_f32", v(R), v(R), v(XV))
    I("v_cvt_pk_bf16_f32", v(R), v(R), v(R))

def k2():
    a.raw(f".globl {K2}\n.p2align 8\n.type {K2},@function\n{K2}:")
    a.vm = []
    I("s_cmp_ge_u32", "s2", 256); I("s_cbranch_scc1", "K2_END")
    I("s_load_dwordx2", "s[36:37]", "s[0:1]", 0)
    I("s_load_dwordx2", "s[56:57]", "s[0:1]", 80)
    I("s_load_dwordx2", "s[60:61]", "s[0:1]", 96)
    I("s_mov_b32", s(sMASK), "0xffff0000")
    I("s_lshr_b32", s(sB), "s2", 6); I("s_and_b32", s(sP), "s2", 63)
    I("v_mul_u32_u24", v(5), TSTRIDE, v(0))
    I("s_mul_i32", s(sT1), s(sP), 36)
    I("v_add_u32", v(6), s(sT1), v(5))
    I("v_lshlrev_b32", v(7), 2, v(0)); I("v_lshlrev_b32", v(8), 1, v(0))
    a.lgkm(0)
    I("s_mul_i32", s(sT0), s(sB), 64*TSTRIDE); srd(S_WS, P_WS, s(sT0), 64*TSTRIDE)
    R = 16
    I("buffer_load_dwordx4", vr(R), v(6), sr(S_WS), 0, mod="offen")
    I("buffer_load_dwordx4", vr(R+4), v(6), sr(S_WS), 0, mod="offen offset:16")
    I("buffer_load_dword", v(R+8), v(6), sr(S_WS), 0, mod="offen offset:32")
    I("buffer_load_dwordx4", vr(R+12), v(6), sr(S_WS), 0, mod="offen offset:2304")
    I("buffer_load_dwordx4", vr(R+16), v(6), sr(S_WS), 0, mod="offen offset:2320")
    I("buffer_load_dword", v(R+20), v(6), sr(S_WS), 0, mod="offen offset:2336")
    I("s_movk_i32", s(sT0), 4608)
    I("buffer_load_dwordx4", vr(R+24), v(5), sr(S_WS), s(sT0), mod="offen")
    I("s_mul_i32", s(sT0), "s2", 36); I("s_add_u32", s(sT0), s(sT0), G_OFF); srd(S_M2, P_WS, s(sT0), 36)
    I("buffer_load_dword", v(R+28), v(7), sr(S_M2), 0, mod="offen")
    I("s_mul_i32", s(sT0), "s2", 18); srd(S_X, P_X, s(sT0), 18); srd(S_M1, P_OUT, s(sT0), 18)
    I("buffer_load_ushort", v(R+29), v(8), sr(S_X), 0, mod="offen")
    I("s_waitcnt", "vmcnt(0)")
    fin_math(R, R+28, R+29, 0)
    I("s_mov_b64", "exec", 0x1ff)
    I("buffer_store_short", v(R), v(8), sr(S_M1), 0, mod="offen")
    a.label("K2_END")
    I("s_endpgm")

hdr = open('cdna_kernels/'+name+'.s.ref').read().split('\n')
top = [l for l in hdr if l.startswith(';') and '@launch' not in l and 'Override' not in l and 'grid=ceil' not in l]
out = "\n".join(top)+"\n"
if OPT['fused']:
    K1 = name+"_kernel"
    out += f"; @launch grid=(256,1,1) block=(512,1,1) lds={LDS_SIZE}\n"
else:
    out += f"; @launch kernel={K1} grid=(256,1,1) block=(512,1,1) lds={LDS_SIZE}\n"
    out += f"; @launch kernel={K2} grid=(256,1,1) block=(64,1,1) lds=0\n"
out += '.amdgcn_target "amdgcn-amd-amdhsa--gfx950"\n.text\n'
k1()
if not OPT['fused']: k2()
out += a.text()
out += '.section .rodata,"a"\n'
for kn, nv in (((K1, 256),) if OPT['fused'] else ((K1, 256), (K2, 64))):
    out += f""".p2align 6
.amdhsa_kernel {kn}
  .amdhsa_next_free_vgpr {nv}
  .amdhsa_next_free_sgpr 102
  .amdhsa_accum_offset {nv}
  .amdhsa_group_segment_fixed_size 0
  .amdhsa_kernarg_size 104
  .amdhsa_user_sgpr_count 2
  .amdhsa_user_sgpr_kernarg_segment_ptr 1
  .amdhsa_system_sgpr_workgroup_id_x 1
.end_amdhsa_kernel
"""
open(sys.argv[1], 'w').write(out)
print("instrs", a.ninstr, "bytes", len(out))
```

```python
import sys, struct
sys.path.insert(0, 'gen')
from asmlib import Asm

def f32(x): return "0x%08x" % struct.unpack('<I', struct.pack('<f', x))[0]
LOG2E = 1.4426950408889634
SCALE = 0.08838834764831845
C0 = 2*0.7978845608028654*LOG2E
C1 = C0*0.044715

OPT = dict(gate_per_tile=2, gate_start=1, wo_start=6, wo_per_tile=6, nt_w=True, fused=False, ts=0, tbar=0, nowo=0, nogate=0, nowq=0, pwq=1, pwo=1, bar=1, rot=1, kv0=4, kvstep=3, kvpre=12, lnpos=24, cred=2, o1=8, o2=17, o3=26, d0=2, dstep=2)
GOPT = [dict(wqpre=36, kvfirst=8, kvafter=0, cred=0, stage=0, lnpos=24, wo_start=4, wo_per_tile=4, gate_start=1, gate_per_tile=2, pendlate=1),
        dict(wqpre=6, kvfirst=32, kvafter=0, cred=0, stage=1, lnpos=5, wo_start=4, wo_per_tile=4, gate_start=1, gate_per_tile=2, pendlate=1)]
OPT['gbit'] = 7; OPT['kbit'] = 6; OPT['fused'] = 1; OPT['slp_l'] = 24; OPT['slp_s'] = 4; OPT['thr'] = 8; OPT['pst'] = 2; OPT['badx'] = 0; OPT['dbgts'] = 0; OPT['pk'] = 1; OPT['pv'] = 1
for arg in sys.argv[2:]:
    k, v = arg.split('=')
    if k[:2] in ('A_', 'B_'): GOPT[0 if k[0] == 'A' else 1][k[2:]] = int(v)
    else: OPT[k] = int(v)
STAGE = [0]

L_XN = 0; L_QS = 4608; L_GP = 8704; L_ML = 9216; L_ML2 = 9344; L_TK = 9408; L_TS = 15360
L_ST = 16384; L_TP = 16384; L_OP = 147456; L_QP = 147456
LDS_SIZE = 147456 + 8192
TSTRIDE = 5120
G_OFF = 0x200000

a = Asm()
I = a.I
S_K, S_V, S_WQ, S_WO, S_X, S_M1, S_WS, S_M2 = 4, 8, 12, 16, 20, 24, 28, 32
P_X, P_K, P_V, P_WQ, P_WO, P_W1, P_B1, P_W2, P_B2, P_OUT, P_DBG, P_WS = 36, 38, 40, 42, 44, 48, 50, 52, 54, 56, 58, 60
sKVH, sSPLIT, sB, sP, sW, sT0, sT1 = 62, 63, 80, 81, 82, 83, 84
sH = 64
sSELLO, sSELHI, sMASK, sSCALE, sLOG2E, sBP = 85, 86, 87, 88, 89, 90
sM3 = 92
sXCC, sITEM, sFLAG, sRO = 100, 101, 91, 96
def sr(n): return f"s[{n}:{n+3}]"
def vr(n, k=4): return f"v[{n}:{n+k-1}]"
def v(n): return f"v{n}"
def s(n): return f"s{n}"

def srd(dst, ptr, off, records):
    if off is None:
        I("s_mov_b32", s(dst), s(ptr)); I("s_mov_b32", s(dst+1), s(ptr+1))
    else:
        I("s_add_u32", s(dst), s(ptr), off); I("s_addc_u32", s(dst+1), s(ptr+1), 0)
    I("s_mov_b32", s(dst+2), records); I("s_mov_b32", s(dst+3), "0x20000")

DPPALL = "row_mask:0xf bank_mask:0xf"
def allred(op, x, t, rows=True):
    if rows:
        for n in (8, 4, 2, 1):
            I(op+"_dpp", v(x), v(x), v(x), mod=f"row_ror:{n} {DPPALL}")
    I("v_mov_b32", v(t), v(x)); I("v_permlane16_swap_b32", v(x), v(t)); I(op, v(x), v(x), v(t))
    I("v_mov_b32", v(t), v(x)); I("v_permlane32_swap_b32", v(x), v(t)); I(op, v(x), v(x), v(t))

def bfr1(x):
    I("v_cvt_pk_bf16_f32", v(x), v(x), v(x)); I("v_and_b32", v(x), s(sMASK), v(x))
def bfr2(x, y, w):
    I("v_cvt_pk_bf16_f32", v(w), v(x), v(y)); I("v_lshlrev_b32", v(x), 16, v(w)); I("v_and_b32", v(y), s(sMASK), v(w))

def layernorm(X, O, T):
    sm, tt, mean, var, den, rc = T[:6]
    I("v_add_f32", v(sm), v(X[0]), v(X[1]))
    for k in range(2, 9): I("v_add_f32", v(sm), v(sm), v(X[k]))
    allred("v_add_f32", sm, tt)
    I("v_mul_f32", v(mean), f32(1.0/576), v(sm))
    for k in range(9): I("v_sub_f32", v(O[k]), v(X[k]), v(mean))
    I("v_mul_f32", v(var), v(O[0]), v(O[0]))
    for k in range(1, 9): I("v_fmac_f32", v(var), v(O[k]), v(O[k]))
    allred("v_add_f32", var, tt)
    I("v_mul_f32", v(var), f32(1.0/576), v(var))
    bfr2(mean, var, tt)
    I("v_add_f32", v(var), f32(1e-5), v(var)); bfr1(var)
    I("v_sqrt_f32", v(den), v(var)); bfr1(den)
    I("v_rcp_f32", v(rc), v(den))
    for k in range(9): I("v_sub_f32", v(O[k]), v(X[k]), v(mean))
    for k in range(0, 8, 2): bfr2(O[k], O[k+1], tt)
    bfr1(O[8])
    for k in range(9):
        I("v_mul_f32", v(sm), v(O[k]), v(rc))
        I("v_fma_f32", v(tt), "-"+v(sm), v(den), v(O[k]))
        I("v_fma_f32", v(O[k]), v(tt), v(rc), v(sm))
    for k in range(0, 8, 2): bfr2(O[k], O[k+1], tt)
    bfr1(O[8])

vTID, vLANE, vKOFF, vM, vL = 0, 1, 2, 3, 4
vT = [5, 6, 7]
vQ = 8
vACC = 16
vS = 32
vP = 40
BIG = 48
KB = [192, 224]; VB = [208, 240]
NT = "nt"
POLS = ["", "nt", "sc1", "sc0", "sc0 sc1", "sc1 nt", "sc0 nt", "sc0 sc1 nt"]
WMOD = POLS[OPT['pwq']]; WOMOD = POLS[OPT['pwo']]
KVP = {'K': POLS[OPT['pk']], 'V': POLS[OPT['pv']]}

def tile_regs(kind, n):
    if STAGE[0] and n in (2, 3): return BIG + 32*(n-2) + (0 if kind == 'K' else 16)
    return (KB if kind == 'K' else VB)[n & 1]
def issue_tile_lds(kind, n):
    srdn = S_K if kind == 'K' else S_V
    q = 2*(n-2) + (0 if kind == 'K' else 1)
    I("s_lshl_b32", s(sT1), s(sW), 14); I("s_add_u32", s(sT1), s(sT1), L_ST+q*4096)
    I("s_mov_b32", "m0", s(sT1))
    I("s_mov_b32", s(sT0), n*32768)
    for i in range(4):
        a.raw(f"  buffer_load_dwordx4 {v(vKOFF)}, {sr(srdn)}, {s(sT0)} offen offset:{i*1024} {KVP[kind]} lds"); a.pos += 1
        a.vm_issue(f"{kind}{n}")
def room():
    if len(a.vm) >= 62:
        I("s_waitcnt", f"vmcnt({len(a.vm)-4})"); a.vm = a.vm[4:]
def issue_one(kind, n, i):
    srdn = S_K if kind == 'K' else S_V
    room()
    if STAGE[0] and n in (2, 3):
        q = 2*(n-2) + (0 if kind == 'K' else 1)
        I("s_lshl_b32", s(sT1), s(sW), 14); I("s_add_u32", s(sT1), s(sT1), L_ST+q*4096)
        I("s_mov_b32", "m0", s(sT1))
        I("s_mov_b32", s(sT0), n*32768)
        a.raw(f"  buffer_load_dwordx4 {v(vKOFF)}, {sr(srdn)}, {s(sT0)} offen offset:{i*1024} {KVP[kind]} lds"); a.pos += 1
    else:
        base = tile_regs(kind, n)
        I("s_mov_b32", s(sT0), n*32768)
        I("buffer_load_dwordx4", vr(base+4*i), v(vKOFF), sr(srdn), s(sT0), mod=f"offen offset:{i*1024} {KVP[kind]}")
    a.vm_issue(f"{kind}{n}")
def read_tile_lds(kind, n):
    q = 2*(n-2) + (0 if kind == 'K' else 1)
    base = tile_regs(kind, n)
    for i in range(4):
        I("ds_read_b128", vr(base+4*i), v(7), mod=f"offset:{q*4096+i*1024}")
def issue_tile(kind, n):
    base = tile_regs(kind, n)
    srdn = S_K if kind == 'K' else S_V
    I("s_mov_b32", s(sT0), n*32768)
    for i in range(4):
        I("buffer_load_dwordx4", vr(base+4*i), v(vKOFF), sr(srdn), s(sT0), mod=f"offen offset:{i*1024} {KVP[kind]}")
        a.vm_issue(f"{kind}{n}")

ts_n = [0]
def stamp(ra, rb):
    if not OPT['ts']: return
    I("s_memrealtime", "s[98:99]"); a.lgkm(0)
    I("s_lshl_b32", "s99", s(sW), 7)
    I("v_mov_b32", v(ra), "s98"); I("v_mov_b32", v(rb), "s99")
    I("ds_write_b32", v(rb), v(ra), mod=f"offset:{L_TS+4*ts_n[0]}")
    ts_n[0] += 1
def stamp_dump():
    if not OPT['ts']: return
    I("s_mov_b64", "exec", -1)
    I("s_lshl_b32", "s99", s(sW), 7)
    I("v_and_b32", v(5), 31, v(vLANE)); I("v_lshlrev_b32", v(5), 2, v(5)); I("v_add_u32", v(5), "s99", v(5))
    a.lgkm(0)
    I("ds_read_b32", v(6), v(5), mod=f"offset:{L_TS}")
    I("s_lshl_b32", s(sT0), "s2", 10); I("s_add_u32", s(sT0), s(sT0), 0x400000)
    srd(S_M1, P_WS, s(sT0), 1024)
    a.lgkm(0)
    I("buffer_store_dword", v(6), v(5), sr(S_M1), 0, mod="offen")

name = "recurrent_scan__gqa_block_cached__mixer_token_mlp__decode"
K1 = "attn_main_kernel"; K2 = "attn_fin_kernel"

def set_wq():
    I("s_lshl_b32", s(sT0), s(sKVH), 9)
    I("s_sub_u32", s(sT1), 576*8192, s(sT0))
    I("s_add_u32", s(S_WQ), s(P_WQ), s(sT0)); I("s_addc_u32", s(S_WQ+1), s(P_WQ+1), 0)
    I("s_mov_b32", s(S_WQ+2), s(sT1)); I("s_mov_b32", s(S_WQ+3), "0x20000")
def decode():
    I("s_lshr_b32", s(sKVH), s(sITEM), 4); I("s_and_b32", s(sKVH), s(sKVH), 15)
    I("s_and_b32", s(sSPLIT), s(sITEM), 3)
    I("s_bfe_u32", s(sB), s(sITEM), (2 << 16) | 2)
    I("s_lshl_b32", s(sP), s(sKVH), 2); I("s_or_b32", s(sP), s(sP), s(sSPLIT))
    I("s_lshl_b32", s(sBP), s(sB), 6); I("s_or_b32", s(sBP), s(sBP), s(sP))
    I("s_lshl_b32", s(sT0), s(sBP), 19)
    srd(S_K, P_K, s(sT0), 1 << 19); srd(S_V, P_V, s(sT0), 1 << 19)
    I("s_mul_i32", s(sT0), s(sBP), TSTRIDE); srd(S_WS, P_WS, s(sT0), TSTRIDE)
def wq_load(i):
    if OPT['nowq']: return
    room()
    I("s_mov_b32", s(sRO), i*8192)
    I("buffer_load_dwordx4", vr(BIG+4*i), v(7), sr(S_WQ), s(sRO), mod=f"offen {WMOD}"); a.vm_issue(f"wq{i}")
STMOD = POLS[OPT['pst']]

def k1():
    a.raw(f".globl {K1}\n.p2align 8\n.type {K1},@function\n{K1}:")
    I("s_cmp_ge_u32", "s2", 256); I("s_cbranch_scc1", "K1_END")
    I("s_load_dwordx16", "s[36:51]", "s[0:1]", 0)
    I("s_load_dwordx8", "s[52:59]", "s[0:1]", 64)
    I("s_load_dwordx2", "s[60:61]", "s[0:1]", 96)
    I("s_getreg_b32", s(sXCC), "hwreg(HW_REG_XCC_ID, 0, 4)"); I("s_and_b32", s(sXCC), s(sXCC), 7)
    if OPT['badx'] == 1: I("s_mov_b32", s(sXCC), 3)
    if OPT['badx'] == 2: I("s_and_b32", s(sXCC), s(sXCC), 5)
    I("s_lshl_b32", s(sKVH), s(sXCC), 1)
    I("s_bfe_u32", s(sT0), "s2", (1 << 16) | OPT['kbit']); I("s_or_b32", s(sKVH), s(sKVH), s(sT0))
    I("s_mov_b32", s(sSELLO), "0x05040100"); I("s_mov_b32", s(sSELHI), "0x07060302")
    I("s_mov_b32", s(sMASK), "0xffff0000"); I("s_mov_b32", s(sSCALE), f32(SCALE)); I("s_mov_b32", s(sLOG2E), f32(LOG2E))
    I("v_and_b32", v(vLANE), 63, v(vTID))
    I("v_lshrrev_b32", v(5), 6, v(vTID))
    I("v_readfirstlane_b32", s(sW), v(5))
    I("v_lshlrev_b32", v(vKOFF), 4, v(vLANE)); I("v_lshl_add_u32", v(vKOFF), v(5), 12, v(vKOFF))
    I("v_mul_u32_u24", v(6), 18, v(vLANE))
    I("v_lshrrev_b32", v(7), 5, v(vTID))
    I("v_mul_u32_u24", v(7), 36*8192, v(7))
    I("v_and_b32", v(40), 31, v(vTID)); I("v_lshl_add_u32", v(7), v(40), 4, v(7))
    a.lgkm(0)
    stamp(40,41)
    I("s_cmp_eq_u32", s(sW), 7); I("s_cbranch_scc1", "K1_TK")
    I("s_and_b32", s(sT0), s(sW), 3)
    I("s_mul_i32", s(sT0), s(sT0), 1152); srd(S_X, P_X, s(sT0), 1152)
    X = list(range(16, 25))
    for k in range(9):
        I("buffer_load_ushort", v(X[k]), v(6), sr(S_X), 0, mod=f"offen offset:{2*k}"); a.vm_issue("x")
    I("v_add_u32", v(6), s(sT0), v(6))
    set_wq()
    I("s_bitcmp1_b32", "s2", OPT['gbit']); I("s_cbranch_scc1", "K1_GB")
    import copy
    save = (copy.deepcopy(a.vm), ts_n[0])
    body(0, X)
    a.label("K1_GB")
    a.vm = save[0]; ts_n[0] = save[1]
    body(1, X)
    a.label("K1_TK")
    a.vm = []
    srd(S_M2, P_DBG, None, 256)
    I("s_mov_b64", "exec", 1)
    I("s_mov_b32", s(sFLAG), 0)
    if OPT['dbgts']:
        I("s_memrealtime", "s[98:99]"); a.lgkm(0)
        I("s_not_b32", "s98", "s98"); I("v_mov_b32", v(42), "s98"); I("v_mov_b32", v(43), 16)
        I("buffer_atomic_umax", v(42), v(43), sr(S_M2), 0, mod="offen")
    a.label("K1_TKL")
    I("s_lshr_b32", s(sT0), s(sKVH), 1); I("s_lshl_b32", s(sT0), s(sT0), 5)
    I("s_and_b32", s(sT1), s(sKVH), 1); I("s_lshl_b32", s(sT1), s(sT1), 2); I("s_add_u32", s(sT0), s(sT0), s(sT1))
    I("v_mov_b32", v(41), s(sT0)); I("v_mov_b32", v(40), 1)
    I("buffer_atomic_add", v(40), v(41), sr(S_M2), 0, mod="offen sc0")
    I("s_waitcnt", "vmcnt(0)")
    I("v_readfirstlane_b32", s(sT0), v(40))
    a.nop(2)
    I("s_cmp_lt_u32", s(sT0), 16); I("s_cbranch_scc1", "K1_TKOK")
    I("s_add_u32", s(sKVH), s(sKVH), 1); I("s_and_b32", s(sKVH), s(sKVH), 15)
    I("s_add_u32", s(sFLAG), s(sFLAG), 1); I("s_cmp_lt_u32", s(sFLAG), 64); I("s_cbranch_scc1", "K1_TKL")
    I("s_and_b32", s(sT0), s(sT0), 15)
    a.label("K1_TKOK")
    I("s_lshl_b32", s(sITEM), s(sKVH), 4); I("s_or_b32", s(sITEM), s(sITEM), s(sT0))
    I("v_mov_b32", v(40), s(sITEM)); I("v_mov_b32", v(41), 0)
    I("ds_write_b32", v(41), v(40), mod=f"offset:{L_TK}")
    I("s_mov_b64", "exec", -1)
    a.lgkm(0)
    I("s_barrier")
    decode()
    if OPT['fused']:
        for k in range(4): I("v_mov_b32", v(40+k), -1)
        I("v_lshlrev_b32", v(5), 4, v(vLANE))
        for k in range(4): I("buffer_store_dwordx4", vr(40), v(5), sr(S_WS), 0, mod=f"offen offset:{1024*k} {STMOD}")
        I("s_movk_i32", s(sT0), 4096)
        I("buffer_store_dwordx4", vr(40), v(5), sr(S_WS), s(sT0), mod=f"offen {STMOD}")
        I("s_lshl_b32", s(sT0), s(sXCC), 5); I("s_add_u32", s(sT0), s(sT0), 8)
        I("v_mov_b32", v(45), s(sT0)); I("v_mov_b32", v(44), 1)
        I("s_waitcnt", "vmcnt(0)")
        I("s_mov_b64", "exec", 1)
        I("buffer_atomic_add", v(44), v(45), sr(S_M2), 0, mod="offen")
        I("s_mov_b64", "exec", -1)
    I("s_bitcmp1_b32", "s2", OPT['gbit']); I("s_cbranch_scc1", "K1_RQ2B")
    I("s_branch", "K1_RQ2A")
    a.label("K1_END")
    I("s_endpgm")

def body(G, X):
    O = dict(OPT); O.update(GOPT[G]); STAGE[0] = O['stage']
    sfx = "AB"[G]
    tl = (('K', 0), ('V', 0), ('K', 1), ('V', 1), ('K', 2), ('V', 2), ('K', 3), ('V', 3)) if O['stage'] else (('K', 0), ('V', 0), ('K', 1), ('V', 1))
    pend = [(k, n, i) for (k, n) in tl for i in range(4)]
    XN = list(range(25, 34)); T = list(range(34, 40))
    def do_ln():
        stamp(40,41)
        a.vm_wait("x")
        stamp(40,41)
        for k in range(9): I("v_lshlrev_b32", v(X[k]), 16, v(X[k]))
        layernorm(X, XN, T)
        for k in range(9):
            I("ds_write_b16_d16_hi", v(6), v(XN[k]), mod=f"offset:{L_XN+2*k}")
    if O['lnpos'] < 0: do_ln()
    for i in range(O['wqpre']):
        wq_load(i)
        if i == O['lnpos']: do_ln()
    assert O['lnpos'] < O['wqpre']
    a.lgkm(0)
    I("s_barrier")
    I("v_mov_b32", v(41), 0)
    I("ds_read_b32", v(40), v(41), mod=f"offset:{L_TK}")
    a.lgkm(0)
    I("v_readfirstlane_b32", s(sITEM), v(40))
    I("s_mov_b32", s(sFLAG), s(sKVH))
    a.nop(2)
    decode()
    I("s_cmp_eq_u32", s(sFLAG), s(sKVH)); I("s_cbranch_scc1", "K1_GO"+sfx)
    I("s_waitcnt", "vmcnt(0)")
    a.label("K1_RQ2"+sfx)
    import copy
    vmsave = copy.deepcopy(a.vm)
    a.vm = []
    set_wq()
    for i in range(O['wqpre']): wq_load(i)
    if not OPT['nowq']: assert a.vm == vmsave, (a.vm, vmsave)
    a.label("K1_GO"+sfx)
    stamp(40,41)
    for _ in range(O['kvfirst']):
        if pend: issue_one(*pend.pop(0))
    for i in range(O['wqpre'], 36): wq_load(i)
    for _ in range(O['kvafter']):
        if pend: issue_one(*pend.pop(0))
    I("s_mul_i32", s(sT0), s(sKVH), 256*1152); srd(S_WO, P_WO, s(sT0), 256*1152)
    srd(S_M1, P_W1, None, 9216); srd(S_M2, P_B1, None, 9216); srd(sM3, P_W2, None, 9216)
    I("v_lshrrev_b32", v(5), 5, v(vTID)); I("v_mul_u32_u24", v(5), 72, v(5))
    I("s_mul_i32", s(sT0), s(sB), 1152); I("v_add_u32", v(5), s(sT0), v(5))
    XP = 16
    for k in range(9):
        I("ds_read_b64", vr(XP+2*k, 2), v(5), mod=f"offset:{L_XN+8*k}")
    QA = 34
    stamp(40,41)
    PT = [42, 43, 44, 45, 46, 47]
    a.lgkm(0)
    for ip in range(18):
        a.vm_wait(f"wq{2*ip+1}")
        for _ in range(O['cred']):
            if pend: issue_one(*pend.pop(0))
        w0 = BIG+8*ip; w1 = w0+4
        for half in range(2):
            for r in (2*half, 2*half+1):
                t0, t1 = PT[2*(r & 1)], PT[2*(r & 1)+1]
                I("v_perm_b32", v(t0), v(w1+r), v(w0+r), s(sSELLO))
                I("v_perm_b32", v(t1), v(w1+r), v(w0+r), s(sSELHI))
            for r in (2*half, 2*half+1):
                t0, t1 = PT[2*(r & 1)], PT[2*(r & 1)+1]
                if ip == 0:
                    I("v_dot2_f32_bf16", v(QA+2*r), v(t0), v(XP+ip), 0)
                    I("v_dot2_f32_bf16", v(QA+2*r+1), v(t1), v(XP+ip), 0)
                else:
                    I("v_dot2_f32_bf16", v(QA+2*r), v(t0), v(XP+ip), v(QA+2*r))
                    I("v_dot2_f32_bf16", v(QA+2*r+1), v(t1), v(XP+ip), v(QA+2*r+1))
    stamp(5,6)
    GR = 128
    gW1r, gB1r, gW2r = GR, GR+4, GR+8
    gW1x, gB1x, gW2x = GR+12, GR+13, GR+14
    I("v_lshlrev_b32", v(5), 4, v(vTID)); I("v_lshlrev_b32", v(6), 1, v(vTID))
    for (dst, dx, sd) in ((gW1r, gW1x, S_M1), (gB1r, gB1x, S_M2), (gW2r, gW2x, sM3)):
        I("buffer_load_dwordx4", vr(dst), v(5), sr(sd), 0, mod="offen"); a.vm_issue("gw")
        I("s_movk_i32", s(sT0), 8192)
        I("buffer_load_ushort", v(dx), v(6), sr(sd), s(sT0), mod="offen"); a.vm_issue("gw")
    for k in range(4):
        I("v_permlane32_swap_b32", v(QA+k), v(QA+k+4))
    for k in range(4):
        I("v_add_f32", v(QA+k), v(QA+k), v(QA+k+4))
    I("v_and_b32", v(5), 31, v(vLANE)); I("v_lshlrev_b32", v(5), 5, v(5))
    I("v_lshrrev_b32", v(6), 5, v(vLANE)); I("v_lshl_add_u32", v(5), v(6), 4, v(5))
    I("s_lshl_b32", s(sT0), s(sW), 10); I("s_add_u32", s(sT0), s(sT0), L_QP); I("v_add_u32", v(5), s(sT0), v(5))
    I("ds_write_b128", v(5), vr(QA))
    if not O['pendlate']:
        while pend: issue_one(*pend.pop(0))
    a.lgkm(0)
    I("s_barrier")
    I("v_lshlrev_b32", v(5), 4, v(vLANE)); I("v_add_u32", v(5), L_QP, v(5))
    for w in range(8):
        I("ds_read_b128", vr(BIG+4*w), v(5), mod=f"offset:{1024*w}")
    a.lgkm(0)
    for st in (4, 2, 1):
        for w in range(st):
            for k in range(4):
                I("v_add_f32", v(BIG+4*w+k), v(BIG+4*w+k), v(BIG+4*(w+st)+k))
    I("v_cvt_pk_bf16_f32", v(BIG), v(BIG), v(BIG+1)); I("v_cvt_pk_bf16_f32", v(BIG+1), v(BIG+2), v(BIG+3))
    I("s_lshl_b32", s(sT0), s(sW), 9)
    I("v_lshlrev_b32", v(5), 3, v(vLANE)); I("v_add_u32", v(5), s(sT0), v(5))
    I("ds_write_b64", v(5), vr(BIG, 2), mod=f"offset:{L_QS}")
    I("v_and_b32", v(5), 15, v(vLANE)); I("v_lshlrev_b32", v(5), 4, v(5)); I("v_add_u32", v(5), s(sT0), v(5))
    a.lgkm(0)
    I("ds_read_b128", vr(vQ), v(5), mod=f"offset:{L_QS}")
    I("ds_read_b128", vr(vQ+4), v(5), mod=f"offset:{L_QS+256}")
    while pend: issue_one(*pend.pop(0))
    for k in range(16): I("v_mov_b32", v(vACC+k), 0)
    I("v_mov_b32", v(vM), f32(-1e30)); I("v_mov_b32", v(vL), 0)
    a.lgkm(0)

    stamp(5,6)
    gW1f = GR+16; gB1f = GR+25; gY = GR+34; gT = GR+43
    vC1 = GR+15
    def gate_prep():
        XX = [gW1f+i for i in range(9)]; HH = [gB1f+i for i in range(9)]
        I("v_mul_u32_u24", v(gT+12), 18, v(vLANE))
        I("s_mul_i32", s(sT0), s(sB), 1152); I("v_add_u32", v(gT+12), s(sT0), v(gT+12))
        for k in range(9): I("v_mov_b32", v(XX[k]), 0)
        for k in range(9): I("ds_read_u16_d16_hi", v(XX[k]), v(gT+12), mod=f"offset:{L_XN+2*k}")
        a.lgkm(0)
        layernorm(XX, HH, [gT+i for i in range(6)])
        for k in range(9): I("v_readlane_b32", s(sH+k), v(HH[k]), s(sP))
        a.vm_wait("gw")
        I("v_mov_b32", v(vC1), f32(C1))
        for q in range(4):
            I("v_lshlrev_b32", v(gW1f+2*q), 16, v(gW1r+q)); I("v_and_b32", v(gW1f+2*q+1), s(sMASK), v(gW1r+q))
            I("v_lshlrev_b32", v(gB1f+2*q), 16, v(gB1r+q)); I("v_and_b32", v(gB1f+2*q+1), s(sMASK), v(gB1r+q))
        I("v_lshlrev_b32", v(gW1f+8), 16, v(gW1x)); I("v_lshlrev_b32", v(gB1f+8), 16, v(gB1x))
        I("v_lshlrev_b32", v(gW2x), 16, v(gW2x))
    def gelu_list(U, TT):
        for u, t in zip(U, TT): I("v_mul_f32", v(t), v(u), v(u))
        for u, t in zip(U, TT): I("v_fmaak_f32", v(t), v(t), v(vC1), f32(C0))
        for u, t in zip(U, TT): I("v_mul_f32", v(t), v(t), v(u))
        for u, t in zip(U, TT): I("v_exp_f32", v(t), "-"+v(t))
        for u, t in zip(U, TT): I("v_add_f32", v(t), 1.0, v(t))
        for u, t in zip(U, TT): I("v_rcp_f32", v(t), v(t))
        for u, t in zip(U, TT): I("v_mul_f32", v(u), v(u), v(t))
    def gate_col(k):
        if OPT['nogate']: return
        for hh in range(2):
            U = [gT+i for i in range(4)]; TT = [gT+4+i for i in range(4)]; W = [gT+8, gT+9]
            for i in range(4): I("v_mul_f32", v(U[i]), s(sH+k), v(gW1f+4*hh+i))
            bfr2(U[0], U[1], W[0]); bfr2(U[2], U[3], W[1])
            for i in range(4): I("v_add_f32", v(U[i]), v(U[i]), v(gB1f+4*hh+i))
            bfr2(U[0], U[1], W[0]); bfr2(U[2], U[3], W[1])
            gelu_list(U, TT)
            I("v_cvt_pk_bf16_f32", v(W[0]), v(U[0]), v(U[1])); I("v_cvt_pk_bf16_f32", v(W[1]), v(U[2]), v(U[3]))
            I("v_dot2_f32_bf16", v(gY+k), v(W[0]), v(gW2r+2*hh), 0 if hh == 0 else v(gY+k))
            I("v_dot2_f32_bf16", v(gY+k), v(W[1]), v(gW2r+2*hh+1), v(gY+k))
    def gate_fin():
        for grp in ((0, 1, 2, 3), (4, 5, 6, 7), (8,)):
            n = len(grp)
            U = [gT+i for i in range(n)]; TT = [gT+4+i for i in range(n)]; W = [gT+8, gT+9]
            for i, k in enumerate(grp): I("v_mul_f32", v(U[i]), s(sH+k), v(gW1f+8))
            def rnd():
                if n == 4: bfr2(U[0], U[1], W[0]); bfr2(U[2], U[3], W[1])
                else: bfr1(U[0])
            rnd()
            for i in range(n): I("v_add_f32", v(U[i]), v(U[i]), v(gB1f+8))
            rnd()
            gelu_list(U, TT)
            rnd()
            for i, k in enumerate(grp): I("v_fmac_f32", v(gY+k), v(U[i]), v(gW2x))
        for n in (8, 4, 2, 1):
            for k in range(9):
                I("v_add_f32_dpp", v(gY+k), v(gY+k), v(gY+k), mod=f"row_ror:{n} {DPPALL}")
        for (sw) in ("v_permlane16_swap_b32", "v_permlane32_swap_b32"):
            for k in range(9): I("v_mov_b32", v(gT+k), v(gY+k))
            for k in range(9): I(sw, v(gY+k), v(gT+k))
            for k in range(9): I("v_add_f32", v(gY+k), v(gY+k), v(gT+k))
        I("s_lshl_b32", s(sT0), s(sW), 6); I("v_mov_b32", v(gT), s(sT0))
        for k in range(9):
            I("ds_write_b32", v(gT), v(gY+k), mod=f"offset:{L_GP+4*k}")

    wo_loads = [('m', k) for k in range(32)] + [('l', q) for q in range(4)]
    vWOM, vWOL = 46, 47
    def wo_addr():
        I("s_mul_i32", s(sT0), s(sW), 32*1152)
        I("v_lshlrev_b32", v(vWOM), 4, v(vLANE)); I("v_add_u32", v(vWOM), s(sT0), v(vWOM))
        I("v_lshrrev_b32", v(5), 3, v(vLANE)); I("v_mul_u32_u24", v(5), 4*1152, v(5))
        I("v_and_b32", v(6), 7, v(vLANE)); I("v_lshl_add_u32", v(5), v(6), 4, v(5))
        I("s_add_u32", s(sT0), s(sT0), 1024); I("v_add_u32", v(vWOL), s(sT0), v(5))
    def wo_issue(idx):
        kind, k = wo_loads[idx]
        if OPT['nowo']: return
        room()
        if kind == 'm':
            I("s_mov_b32", s(sT1), (k//3)*3456)
            I("buffer_load_dwordx4", vr(BIG+4*k), v(vWOM), sr(S_WO), s(sT1), mod=f"offen offset:{(k%3)*1152} {WOMOD}")
        else:
            I("buffer_load_dwordx4", vr(BIG+128+4*k), v(vWOL), sr(S_WO), 0, mod=f"offen offset:{k*1152} {WOMOD}")
        a.vm_issue(f"wo{idx}")
    WP = {}
    free = [45]
    def wo_perm(pair):
        a.vm_wait(f"wo{2*pair+1}")
        r0 = BIG+8*pair; r1 = r0+4
        for r in range(4):
            f = free.pop()
            I("v_perm_b32", v(f), v(r1+r), v(r0+r), s(sSELLO))
            I("v_perm_b32", v(r1+r), v(r1+r), v(r0+r), s(sSELHI))
            WP[(pair, 2*r)] = f; WP[(pair, 2*r+1)] = r1+r
            free.append(r0+r)
    wo_addr()

    gate_next = 0; wo_next = 0; perm_next = 0; wo_hist = {}
    gate_done = False
    PTm = [40, 41, 42, 43]; vPP = 44
    for n in range(16):
        kb = tile_regs('K', n); vb = tile_regs('V', n)
        if OPT['tbar'] and n >= 4 and n % OPT['tbar'] == 0: I("s_barrier")
        a.vm_wait(f"K{n}")
        stamp(5,6)
        if n == 15:
            srd(S_M1, P_B2, None, 2)
            I("v_mov_b32", v(7), 0)
            I("buffer_load_ushort", v(192), v(7), sr(S_M1), 0, mod="offen"); a.vm_issue("misc")
            if OPT['fused']:
                I("s_mul_i32", s(sT0), s(sBP), 18); srd(S_X, P_X, s(sT0), 18)
                I("v_lshlrev_b32", v(196), 1, v(vLANE))
                I("buffer_load_ushort", v(193), v(196), sr(S_X), 0, mod="offen"); a.vm_issue("misc")
                srd(S_M2, P_DBG, None, 256)
                I("v_lshlrev_b32", v(195), 2, v(vLANE))
                I("buffer_load_dword", v(194), v(195), sr(S_M2), 0, mod="offen sc1"); a.vm_issue("misc")
        nxt = (n+4 if n < 2 else (None if n < 4 else n+2)) if O['stage'] else n+2
        if nxt is not None and nxt >= 16: nxt = None
        if O['stage'] and n in (2, 3):
            I("s_lshl_b32", s(sT1), s(sW), 14); I("s_add_u32", s(sT1), s(sT1), L_ST)
            I("v_lshlrev_b32", v(7), 4, v(vLANE)); I("v_add_u32", v(7), s(sT1), v(7))
            read_tile_lds('K', n)
            a.vm_wait(f"V{n}")
            read_tile_lds('V', n)
            a.lgkm(4)
        for r in range(4):
            for i in range(4):
                for h in range(2):
                    d = vS+4*h+i
                    I("v_dot2_f32_bf16", v(d), v(kb+4*i+r), v(vQ+4*h+r), 0 if r == 0 else v(d))
        if nxt is not None: issue_tile('K', nxt)
        for h in range(2):
            for e in range(2):
                d = vS+4*h+e
                I("v_add_f32_dpp", v(d), v(d), v(d), mod="row_ror:8 row_mask:0xf bank_mask:0x3")
        for h in range(2):
            for e in range(2):
                d = vS+4*h+e; sft = vS+4*h+2+e
                I("v_add_f32_dpp", v(d), v(sft), v(sft), mod="row_ror:8 row_mask:0xf bank_mask:0xc")
        for e in range(2):
            d = vS+e
            I("v_add_f32_dpp", v(d), v(d), v(d), mod="row_shl:4 row_mask:0xf bank_mask:0x5")
        for e in range(2):
            d = vS+e; sft = vS+4+e
            I("v_add_f32_dpp", v(d), v(sft), v(sft), mod="row_shr:4 row_mask:0xf bank_mask:0xa")
        for qp in ("[1,0,3,2]", "[2,3,0,1]"):
            for e in range(2):
                d = vS+e
                I("v_add_f32_dpp", v(d), v(d), v(d), mod=f"quad_perm:{qp} {DPPALL}")
        A, B, W, TM, AL = vS, vS+1, vS+2, vS+3, vS+4
        bfr2(A, B, W)
        I("v_mul_f32", v(A), s(sSCALE), v(A)); I("v_mul_f32", v(B), s(sSCALE), v(B))
        bfr2(A, B, W)
        I("v_max_f32", v(TM), v(A), v(B))
        I("v_max_f32_dpp", v(TM), v(TM), v(TM), mod=f"row_ror:8 {DPPALL}")
        I("v_mul_f32", v(TM), s(sLOG2E), v(TM))
        I("v_max_f32", v(TM), v(TM), v(vM))
        I("v_sub_f32", v(AL), v(vM), v(TM))
        I("v_fma_f32", v(A), v(A), s(sLOG2E), "-"+v(TM))
        I("v_fma_f32", v(B), v(B), s(sLOG2E), "-"+v(TM))
        I("v_exp_f32", v(AL), v(AL)); I("v_exp_f32", v(A), v(A)); I("v_exp_f32", v(B), v(B))
        I("v_mov_b32", v(vM), v(TM))
        I("v_fma_f32", v(vL), v(vL), v(AL), v(A))
        I("v_cvt_pk_bf16_f32", v(vPP), v(A), v(B))
        I("v_add_f32", v(vL), v(vL), v(B))
        for h in range(2):
            for k in range(8):
                d = vACC+8*h+k
                I("v_mul_f32_dpp", v(d), v(AL), v(d), mod=f"row_newbcast:{4*h} {DPPALL}")
        a.vm_wait(f"V{n}")
        if O['stage'] and n in (2, 3): a.lgkm(0)
        for j in range(2):
            for rr in range(2):
                for r in (2*rr, 2*rr+1):
                    t0, t1 = PTm[2*(r & 1)], PTm[2*(r & 1)+1]
                    I("v_perm_b32", v(t0), v(vb+4*(2*j+1)+r), v(vb+4*(2*j)+r), s(sSELLO))
                    I("v_perm_b32", v(t1), v(vb+4*(2*j+1)+r), v(vb+4*(2*j)+r), s(sSELHI))
                for h in range(2):
                    for r in (2*rr, 2*rr+1):
                        t0, t1 = PTm[2*(r & 1)], PTm[2*(r & 1)+1]
                        I("v_dot2c_f32_bf16_dpp", v(vACC+8*h+2*r), v(vPP), v(t0), mod=f"row_newbcast:{4*(2*j+h)} {DPPALL}")
                        I("v_dot2c_f32_bf16_dpp", v(vACC+8*h+2*r+1), v(vPP), v(t1), mod=f"row_newbcast:{4*(2*j+h)} {DPPALL}")
        if nxt is not None: issue_tile('V', nxt)
        if n >= O['gate_start'] and not gate_done:
            if gate_next == 0: gate_prep()
            for _ in range(O['gate_per_tile']):
                if gate_next < 9:
                    gate_col(gate_next); gate_next += 1
            if gate_next == 9:
                gate_fin(); gate_done = True
        if n >= O['wo_start']:
            lim = wo_hist.get(n-2, 0)
            while perm_next < 18 and 2*perm_next+1 < lim:
                wo_perm(perm_next); perm_next += 1
            for _ in range(O['wo_per_tile']):
                if wo_next < 36 and (wo_next < 20 or gate_done) and (wo_next >= 16 or n >= 3 or not O['stage']):
                    wo_issue(wo_next); wo_next += 1
            wo_hist[n] = wo_next
            if n == 15:
                while perm_next < 18:
                    wo_perm(perm_next); perm_next += 1
    assert wo_next == 36 and perm_next == 18, (wo_next, perm_next)

    stamp(5,6)
    T0, T1, T2 = vS, vS+1, vS+2
    I("v_add_f32_dpp", v(vL), v(vL), v(vL), mod=f"row_ror:8 {DPPALL}")
    I("v_mov_b32", v(T0), v(vM))
    allred("v_max_f32", T0, T1, rows=False)
    I("v_sub_f32", v(T2), v(vM), v(T0)); I("v_exp_f32", v(T2), v(T2))
    I("v_mul_f32", v(vL), v(vL), v(T2))
    for h in range(2):
        for k in range(8):
            d = vACC+8*h+k
            I("v_mul_f32_dpp", v(d), v(T2), v(d), mod=f"row_newbcast:{4*h} {DPPALL}")
    allred("v_add_f32", vL, T1, rows=False)
    for k in range(8): I("v_permlane32_swap_b32", v(vACC+k), v(vACC+8+k))
    for k in range(8): I("v_add_f32", v(vACC+k), v(vACC+k), v(vACC+8+k))
    for k in range(4): I("v_permlane16_swap_b32", v(vACC+k), v(vACC+4+k))
    for k in range(4): I("v_add_f32", v(vACC+k), v(vACC+k), v(vACC+4+k))
    I("v_and_b32", v(5), 15, v(vLANE)); I("v_lshlrev_b32", v(5), 5, v(5))
    I("v_bfe_u32", v(6), v(vLANE), 4, 1); I("v_lshl_add_u32", v(5), v(6), 4, v(5))
    I("v_lshrrev_b32", v(6), 5, v(vLANE)); I("v_lshl_add_u32", v(5), v(6), 9, v(5))
    I("s_lshl_b32", s(sT0), s(sW), 10); I("s_add_u32", s(sT0), s(sT0), L_OP); I("v_add_u32", v(5), s(sT0), v(5))
    I("ds_write_b128", v(5), vr(vACC))
    I("v_bfe_u32", v(6), v(vLANE), 2, 1); I("v_lshlrev_b32", v(6), 5, v(6))
    I("s_lshl_b32", s(sT0), s(sW), 2); I("v_add_u32", v(6), s(sT0), v(6))
    I("ds_write_b32", v(6), v(T0), mod=f"offset:{L_ML}")
    I("ds_write_b32", v(6), v(vL), mod=f"offset:{L_ML+64}")
    a.lgkm(0)
    I("s_barrier")
    stamp(5,6)
    if OPT['dbgts']:
        I("s_memrealtime", "s[98:99]"); a.lgkm(0); I("s_mov_b32", "s3", "s98")
    R = 208
    I("v_lshrrev_b32", v(5), 3, v(vLANE)); I("v_lshlrev_b32", v(5), 4, v(5))
    I("s_lshl_b32", s(sT0), s(sW), 7); I("s_add_u32", s(sT0), s(sT0), L_OP); I("v_add_u32", v(5), s(sT0), v(5))
    I("s_lshr_b32", s(sT1), s(sW), 2); I("s_lshl_b32", s(sT1), s(sT1), 5); I("v_mov_b32", v(6), s(sT1))
    MM = R+32; LL = R+40
    I("ds_read_b128", vr(MM), v(6), mod=f"offset:{L_ML}"); I("ds_read_b128", vr(MM+4), v(6), mod=f"offset:{L_ML+16}")
    I("ds_read_b128", vr(LL), v(6), mod=f"offset:{L_ML+64}"); I("ds_read_b128", vr(LL+4), v(6), mod=f"offset:{L_ML+80}")
    for w in range(8):
        I("ds_read_b128", vr(R+4*w), v(5), mod=f"offset:{1024*w}")
    a.lgkm(10)
    MX = vS; LS = vS+1; O = vS+2
    I("v_max3_f32", v(MX), v(MM), v(MM+1), v(MM+2)); I("v_max3_f32", v(MX), v(MX), v(MM+3), v(MM+4))
    I("v_max3_f32", v(MX), v(MX), v(MM+5), v(MM+6)); I("v_max_f32", v(MX), v(MX), v(MM+7))
    for w in range(8): I("v_sub_f32", v(MM+w), v(MM+w), v(MX))
    for w in range(8): I("v_exp_f32", v(MM+w), v(MM+w))
    a.lgkm(8)
    I("v_mul_f32", v(LS), v(MM), v(LL))
    for w in range(1, 8): I("v_fmac_f32", v(LS), v(MM+w), v(LL+w))
    a.lgkm(0)
    for w in range(8):
        for q in range(4):
            if w == 0: I("v_mul_f32", v(O+q), v(MM), v(R+q))
            else: I("v_fmac_f32", v(O+q), v(MM+w), v(R+4*w+q))
    P01, P23 = vS+6, vS+7
    I("v_cvt_pk_bf16_f32", v(P01), v(O), v(O+1)); I("v_cvt_pk_bf16_f32", v(P23), v(O+2), v(O+3))
    for rr in range(8):
        I("v_readlane_b32", s(sH+2*rr), v(P01), 8*rr); I("v_readlane_b32", s(sH+2*rr+1), v(P23), 8*rr)
    I("s_lshr_b32", s(sT1), s(sW), 2); I("s_lshl_b32", s(sT1), s(sT1), 3); I("v_mov_b32", v(6), s(sT1))
    I("ds_write_b64", v(6), vr(MX, 2), mod=f"offset:{L_ML2}")
    TL = vACC+8; TMn = vACC
    for c in range(8): I("v_dot2_f32_bf16", v(TL+c), v(WP[(16, c)]), v(P01), 0)
    for c in range(8): I("v_dot2_f32_bf16", v(TL+c), v(WP[(17, c)]), v(P23), v(TL+c))
    for k in range(16):
        for c in range(8):
            I("v_dot2_f32_bf16", v(TMn+c), v(WP[(k, c)]), s(sH+k), 0 if k == 0 else v(TMn+c))
    for k in range(4): I("v_permlane32_swap_b32", v(TL+k), v(TL+4+k))
    for k in range(4): I("v_add_f32", v(TL+k), v(TL+k), v(TL+4+k))
    for k in range(2): I("v_permlane16_swap_b32", v(TL+k), v(TL+2+k))
    for k in range(2): I("v_add_f32", v(TL+k), v(TL+k), v(TL+2+k))
    I("v_add_f32_dpp", v(TL), v(TL), v(TL), mod="row_ror:8 row_mask:0xf bank_mask:0x3")
    I("v_add_f32_dpp", v(TL), v(TL+1), v(TL+1), mod="row_ror:8 row_mask:0xf bank_mask:0xc")
    I("s_mul_i32", s(sT0), s(sW), 2304)
    I("v_and_b32", v(5), 7, v(vLANE)); I("v_lshlrev_b32", v(5), 5, v(5))
    I("v_lshrrev_b32", v(6), 3, v(vLANE)); I("v_lshl_add_u32", v(5), v(6), 2, v(5)); I("v_add_u32", v(5), s(sT0), v(5))
    I("v_lshlrev_b32", v(6), 5, v(vLANE)); I("v_add_u32", v(6), s(sT0), v(6))
    I("ds_write_b128", v(6), vr(TMn), mod=f"offset:{L_TP}")
    I("ds_write_b128", v(6), vr(TMn+4), mod=f"offset:{L_TP+16}")
    I("ds_write_b32", v(5), v(TL), mod=f"offset:{L_TP+2048}")
    stamp(7,40)
    a.lgkm(0)
    I("s_barrier")
    stamp(5,6)
    I("s_cmp_ge_u32", s(sW), 5); I("s_cbranch_scc1", "K1_W5"+sfx)
    I("v_cmp_gt_u32", "vcc", 288, v(vTID)); I("s_and_saveexec_b64", "s[96:97]", "vcc")
    I("v_lshlrev_b32", v(5), 4, v(vTID))
    I("v_cmp_le_u32", "vcc", 144, v(vTID)); I("v_mov_b32", v(7), 6912); I("v_cndmask_b32", v(6), 0, v(7), "vcc")
    I("v_add_u32", v(6), v(6), v(5))
    for w in range(4): I("ds_read_b128", vr(R+4*w), v(6), mod=f"offset:{L_TP+2304*w}")
    a.lgkm(0)
    for k in range(4):
        I("v_add_f32", v(R+k), v(R+k), v(R+4+k)); I("v_add_f32", v(R+8+k), v(R+8+k), v(R+12+k))
    for k in range(4): I("v_add_f32", v(R+k), v(R+k), v(R+8+k))
    I("buffer_store_dwordx4", vr(R), v(5), sr(S_WS), 0, mod="offen "+(STMOD if OPT['fused'] else ""))
    I("s_branch", "K1_FIN"+sfx)
    a.label("K1_W5"+sfx)
    I("s_cmp_lg_u32", s(sW), 5); I("s_cbranch_scc1", "K1_W6"+sfx)
    I("s_mov_b64", "exec", 1)
    I("v_mov_b32", v(5), 0)
    I("ds_read_b128", vr(R), v(5), mod=f"offset:{L_ML2}")
    a.lgkm(0)
    I("s_movk_i32", s(sT0), 4608)
    I("buffer_store_dwordx4", vr(R), v(5), sr(S_WS), s(sT0), mod="offen "+(STMOD if OPT['fused'] else ""))
    I("s_branch", "K1_FIN"+sfx)
    a.label("K1_W6"+sfx)
    I("s_cmp_lg_u32", s(sW), 6); I("s_cbranch_scc1", "K1_FIN"+sfx)
    I("s_mov_b64", "exec", 0x1ff)
    I("v_lshlrev_b32", v(5), 2, v(vLANE))
    for w in range(8): I("ds_read_b32", v(R+w), v(5), mod=f"offset:{L_GP+64*w}")
    a.lgkm(0)
    for st in (4, 2, 1):
        for w in range(st): I("v_add_f32", v(R+w), v(R+w), v(R+w+st))
    bfr1(R)
    I("s_waitcnt", "vmcnt(0)")
    I("v_lshlrev_b32", v(R+8), 16, v(192))
    I("v_add_f32", v(R), v(R), v(R+8)); bfr1(R)
    I("v_mul_f32", v(R+1), s(sLOG2E), v(R)); I("v_exp_f32", v(R+1), "-"+v(R+1))
    I("v_add_f32", v(R+1), 1.0, v(R+1)); I("v_rcp_f32", v(R+2), v(R+1))
    I("v_mul_f32", v(R+3), v(R), v(R+2))
    I("v_fma_f32", v(R+4), "-"+v(R+3), v(R+1), v(R)); I("v_fma_f32", v(R+3), v(R+4), v(R+2), v(R+3))
    bfr1(R+3)
    if not OPT['fused']:
        I("s_mul_i32", s(sT0), s(sBP), 36); I("s_add_u32", s(sT0), s(sT0), G_OFF)
        srd(S_M2, P_WS, s(sT0), 36)
        I("buffer_store_dword", v(R+3), v(5), sr(S_M2), 0, mod="offen")
    else:
        I("v_mov_b32", v(197), v(R+3))
        I("s_mov_b64", "exec", -1)
        I("v_mul_u32_u24", v(5), TSTRIDE, v(vLANE))
        I("s_mul_i32", s(sT1), s(sP), 36); I("v_add_u32", v(6), s(sT1), v(5))
        I("s_mul_i32", s(sT0), s(sB), 64*TSTRIDE); srd(S_WS, P_WS, s(sT0), 64*TSTRIDE)
        I("s_mul_i32", s(sT0), s(sBP), 18); srd(S_M1, P_OUT, s(sT0), 18)
        I("v_and_b32", v(7), 7, v(vLANE)); I("v_cmp_eq_u32", "s[96:97]", 2, v(7))
        I("s_mov_b32", s(sFLAG), 0)
        a.label("K1_ST"+sfx)
        I("v_cndmask_b32", v(198), 0, v(194), "s[96:97]")
        allred("v_add_u32", 198, 199)
        I("v_readfirstlane_b32", s(sT0), v(198))
        a.nop(2)
        I("s_cmp_eq_u32", s(sT0), 256); I("s_cbranch_scc1", "K1_STOK"+sfx)
        I("s_add_u32", s(sFLAG), s(sFLAG), 1); I("s_cmp_gt_u32", s(sFLAG), 20000); I("s_cbranch_scc1", "K1_STOK"+sfx)
        I("s_sleep", 16)
        I("buffer_load_dword", v(194), v(195), sr(S_M2), 0, mod="offen sc1")
        I("s_waitcnt", "vmcnt(0)")
        I("s_branch", "K1_ST"+sfx)
        a.label("K1_STOK"+sfx)
        I("s_mov_b64", "s[96:97]", -1)
        I("s_movk_i32", s(sT1), 4608)
        a.label("K1_PL"+sfx)
        I("s_mov_b64", "exec", "s[96:97]")
        LM = "sc1"
        I("buffer_load_dwordx4", vr(R+24), v(5), sr(S_WS), s(sT1), mod=f"offen {LM}")
        I("buffer_load_dwordx4", vr(R), v(6), sr(S_WS), 0, mod=f"offen {LM}")
        I("buffer_load_dwordx4", vr(R+4), v(6), sr(S_WS), 0, mod=f"offen offset:16 {LM}")
        I("buffer_load_dword", v(R+8), v(6), sr(S_WS), 0, mod=f"offen offset:32 {LM}")
        I("buffer_load_dwordx4", vr(R+12), v(6), sr(S_WS), 0, mod=f"offen offset:2304 {LM}")
        I("buffer_load_dwordx4", vr(R+16), v(6), sr(S_WS), 0, mod=f"offen offset:2320 {LM}")
        I("buffer_load_dword", v(R+20), v(6), sr(S_WS), 0, mod=f"offen offset:2336 {LM}")
        I("s_waitcnt", "vmcnt(0)")
        regs = [R+k for k in range(9)] + [R+12+k for k in range(9)] + [R+24+k for k in range(4)]
        I("v_max3_u32", v(198), v(regs[0]), v(regs[1]), v(regs[2]))
        I("v_max3_u32", v(199), v(regs[3]), v(regs[4]), v(regs[5]))
        for k in range(6, 22, 4):
            I("v_max3_u32", v(198), v(198), v(regs[k]), v(regs[k+1]))
            I("v_max3_u32", v(199), v(199), v(regs[k+2]), v(regs[k+3]))
        I("v_max_u32", v(198), v(198), v(199))
        I("v_cmp_eq_u32", "s[96:97]", -1, v(198))
        a.nop(2)
        I("s_cmp_eq_u64", "s[96:97]", 0); I("s_cbranch_scc1", "K1_PD"+sfx)
        I("s_add_u32", s(sFLAG), s(sFLAG), 1); I("s_cmp_gt_u32", s(sFLAG), 20000); I("s_cbranch_scc1", "K1_PD"+sfx)
        I("s_bcnt1_i32_b64", s(sT0), "s[96:97]"); I("s_cmp_le_u32", s(sT0), OPT['thr']); I("s_cbranch_scc1", "K1_PS"+sfx)
        I("s_sleep", OPT['slp_l'])
        a.label("K1_PS"+sfx)
        if OPT['slp_s']: I("s_sleep", OPT['slp_s'])
        I("s_branch", "K1_PL"+sfx)
        a.label("K1_PD"+sfx)
        I("s_mov_b64", "exec", -1)
        stamp(198,199)
        fin_math(R, 197, 193, vLANE)
        I("s_mov_b64", "exec", 0x1ff)
        I("buffer_store_short", v(R), v(196), sr(S_M1), 0, mod="offen")
        if OPT['dbgts']:
            I("s_mov_b64", "exec", 1)
            I("s_memrealtime", "s[98:99]"); a.lgkm(0)
            I("v_mov_b32", v(198), "s98"); I("v_mov_b32", v(199), 20)
            I("buffer_atomic_umax", v(198), v(199), sr(S_M2), 0, mod="offen")
            I("v_mov_b32", v(200), "s3"); I("v_mov_b32", v(201), 24)
            I("buffer_atomic_umax", v(200), v(201), sr(S_M2), 0, mod="offen")
            I("s_not_b32", "s3", "s3")
            I("v_mov_b32", v(202), "s3"); I("v_mov_b32", v(203), 28)
            I("buffer_atomic_umax", v(202), v(203), sr(S_M2), 0, mod="offen")
    a.label("K1_FIN"+sfx)
    stamp(5,6)
    stamp_dump()
    I("s_endpgm")

def fin_math(R, G, XV, LN):
    ML = R+24; C = [R+32, R+33]; T = R+34
    for h in range(2):
        Mv, Lv = ML+2*h, ML+2*h+1
        I("v_max_f32_dpp", v(T), v(Mv), v(Mv), mod=f"quad_perm:[1,0,3,2] {DPPALL}")
        I("v_max_f32_dpp", v(T), v(T), v(T), mod=f"quad_perm:[2,3,0,1] {DPPALL}")
        I("v_sub_f32", v(T), v(Mv), v(T)); I("v_exp_f32", v(C[h]), v(T))
        I("v_mul_f32", v(T), v(C[h]), v(Lv))
        I("v_add_f32_dpp", v(T), v(T), v(T), mod=f"quad_perm:[1,0,3,2] {DPPALL}")
        I("v_add_f32_dpp", v(T), v(T), v(T), mod=f"quad_perm:[2,3,0,1] {DPPALL}")
        I("v_rcp_f32", v(T), v(T))
        I("v_mul_f32", v(C[h]), v(C[h]), v(T))
    for k in range(9): I("v_mul_f32", v(R+k), v(C[0]), v(R+k))
    for k in range(9): I("v_fmac_f32", v(R+k), v(C[1]), v(R+12+k))
    for n in (8, 4, 2, 1):
        for k in range(9): I("v_add_f32_dpp", v(R+k), v(R+k), v(R+k), mod=f"row_ror:{n} {DPPALL}")
    for sw in ("v_permlane16_swap_b32", "v_permlane32_swap_b32"):
        for k in range(9): I("v_mov_b32", v(R+12+k), v(R+k))
        for k in range(9): I(sw, v(R+k), v(R+12+k))
        for k in range(9): I("v_add_f32", v(R+k), v(R+k), v(R+12+k))
    for k in range(1, 9):
        I("v_cmp_eq_u32", "vcc", k, v(LN)); I("v_cndmask_b32", v(R), v(R), v(R+k), "vcc")
    bfr1(R)
    I("v_mul_f32", v(R), v(R), v(G)); bfr1(R)
    I("v_lshlrev_b32", v(XV), 16, v(XV))
    I("v_add_f32", v(R), v(R), v(XV))
    I("v_cvt_pk_bf16_f32", v(R), v(R), v(R))

def k2():
    a.raw(f".globl {K2}\n.p2align 8\n.type {K2},@function\n{K2}:")
    a.vm = []
    I("s_cmp_ge_u32", "s2", 256); I("s_cbranch_scc1", "K2_END")
    I("s_load_dwordx2", "s[36:37]", "s[0:1]", 0)
    I("s_load_dwordx2", "s[56:57]", "s[0:1]", 80)
    I("s_load_dwordx2", "s[60:61]", "s[0:1]", 96)
    I("s_mov_b32", s(sMASK), "0xffff0000")
    I("s_lshr_b32", s(sB), "s2", 6); I("s_and_b32", s(sP), "s2", 63)
    I("v_mul_u32_u24", v(5), TSTRIDE, v(0))
    I("s_mul_i32", s(sT1), s(sP), 36)
    I("v_add_u32", v(6), s(sT1), v(5))
    I("v_lshlrev_b32", v(7), 2, v(0)); I("v_lshlrev_b32", v(8), 1, v(0))
    a.lgkm(0)
    I("s_mul_i32", s(sT0), s(sB), 64*TSTRIDE); srd(S_WS, P_WS, s(sT0), 64*TSTRIDE)
    R = 16
    I("buffer_load_dwordx4", vr(R), v(6), sr(S_WS), 0, mod="offen")
    I("buffer_load_dwordx4", vr(R+4), v(6), sr(S_WS), 0, mod="offen offset:16")
    I("buffer_load_dword", v(R+8), v(6), sr(S_WS), 0, mod="offen offset:32")
    I("buffer_load_dwordx4", vr(R+12), v(6), sr(S_WS), 0, mod="offen offset:2304")
    I("buffer_load_dwordx4", vr(R+16), v(6), sr(S_WS), 0, mod="offen offset:2320")
    I("buffer_load_dword", v(R+20), v(6), sr(S_WS), 0, mod="offen offset:2336")
    I("s_movk_i32", s(sT0), 4608)
    I("buffer_load_dwordx4", vr(R+24), v(5), sr(S_WS), s(sT0), mod="offen")
    I("s_mul_i32", s(sT0), "s2", 36); I("s_add_u32", s(sT0), s(sT0), G_OFF); srd(S_M2, P_WS, s(sT0), 36)
    I("buffer_load_dword", v(R+28), v(7), sr(S_M2), 0, mod="offen")
    I("s_mul_i32", s(sT0), "s2", 18); srd(S_X, P_X, s(sT0), 18); srd(S_M1, P_OUT, s(sT0), 18)
    I("buffer_load_ushort", v(R+29), v(8), sr(S_X), 0, mod="offen")
    I("s_waitcnt", "vmcnt(0)")
    fin_math(R, R+28, R+29, 0)
    I("s_mov_b64", "exec", 0x1ff)
    I("buffer_store_short", v(R), v(8), sr(S_M1), 0, mod="offen")
    a.label("K2_END")
    I("s_endpgm")

hdr = open('cdna_kernels/'+name+'.s.ref').read().split('\n')
top = [l for l in hdr if l.startswith(';') and '@launch' not in l and 'Override' not in l and 'grid=ceil' not in l]
out = "\n".join(top)+"\n"
if OPT['fused']:
    K1 = name+"_kernel"
    out += f"; @launch grid=(256,1,1) block=(512,1,1) lds={LDS_SIZE}\n"
else:
    out += f"; @launch kernel={K1} grid=(256,1,1) block=(512,1,1) lds={LDS_SIZE}\n"
    out += f"; @launch kernel={K2} grid=(256,1,1) block=(64,1,1) lds=0\n"
out += '.amdgcn_target "amdgcn-amd-amdhsa--gfx950"\n.text\n'
k1()
if not OPT['fused']: k2()
out += a.text()
out += '.section .rodata,"a"\n'
for kn, nv in (((K1, 256),) if OPT['fused'] else ((K1, 256), (K2, 64))):
    out += f""".p2align 6
.amdhsa_kernel {kn}
  .amdhsa_next_free_vgpr {nv}
  .amdhsa_next_free_sgpr 102
  .amdhsa_accum_offset {nv}
  .amdhsa_group_segment_fixed_size 0
  .amdhsa_kernarg_size 104
  .amdhsa_user_sgpr_count 2
  .amdhsa_user_sgpr_kernarg_segment_ptr 1
  .amdhsa_system_sgpr_workgroup_id_x 1
.end_amdhsa_kernel
"""
open(sys.argv[1], 'w').write(out)
print("instrs", a.ninstr, "bytes", len(out))
```

```python
import sys, struct
sys.path.insert(0, 'gen')
from asmlib import Asm

def f32(x): return "0x%08x" % struct.unpack('<I', struct.pack('<f', x))[0]
LOG2E = 1.4426950408889634
SCALE = 0.08838834764831845
C0 = 2*0.7978845608028654*LOG2E
C1 = C0*0.044715

OPT = dict(gate_per_tile=2, gate_start=1, wo_start=6, wo_per_tile=6, nt_w=True, fused=False, ts=0, tbar=0, nowo=0, nogate=0, nowq=0, pwq=1, pwo=1, bar=1, rot=1, kv0=4, kvstep=3, kvpre=12, lnpos=24, cred=2, o1=8, o2=17, o3=26, d0=2, dstep=2)
GOPT = [dict(wqpre=36, kvfirst=8, kvafter=0, cred=0, stage=0, lnpos=24, wo_start=4, wo_per_tile=4, gate_start=1, gate_per_tile=2, pendlate=1),
        dict(wqpre=6, kvfirst=32, kvafter=0, cred=0, stage=1, lnpos=5, wo_start=4, wo_per_tile=4, gate_start=1, gate_per_tile=2, pendlate=1)]
OPT['gbit'] = 7; OPT['kbit'] = 6; OPT['fused'] = 1; OPT['slp_l'] = 24; OPT['slp_s'] = 4; OPT['thr'] = 8; OPT['pst'] = 2; OPT['badx'] = 0; OPT['dbgts'] = 0; OPT['pk'] = 1; OPT['pv'] = 1; OPT['sweep'] = 0; OPT['ilv'] = 0; OPT['rt'] = 0; OPT['desc'] = 0; OPT['vrt'] = 0
for arg in sys.argv[2:]:
    k, v = arg.split('=')
    if k[:2] in ('A_', 'B_'): GOPT[0 if k[0] == 'A' else 1][k[2:]] = int(v)
    else: OPT[k] = int(v)
STAGE = [0]

L_XN = 0; L_QS = 4608; L_GP = 8704; L_ML = 9216; L_ML2 = 9344; L_TK = 9408; L_TS = 15360
L_ST = 16384; L_TP = 16384; L_OP = 147456; L_QP = 147456
LDS_SIZE = 147456 + 8192
TSTRIDE = 5120
G_OFF = 0x200000

a = Asm()
I = a.I
S_K, S_V, S_WQ, S_WO, S_X, S_M1, S_WS, S_M2 = 4, 8, 12, 16, 20, 24, 28, 32
P_X, P_K, P_V, P_WQ, P_WO, P_W1, P_B1, P_W2, P_B2, P_OUT, P_DBG, P_WS = 36, 38, 40, 42, 44, 48, 50, 52, 54, 56, 58, 60
sKVH, sSPLIT, sB, sP, sW, sT0, sT1 = 62, 63, 80, 81, 82, 83, 84
sH = 64
sSELLO, sSELHI, sMASK, sSCALE, sLOG2E, sBP = 85, 86, 87, 88, 89, 90
sM3 = 92
sXCC, sITEM, sFLAG, sRO = 100, 101, 91, 96
def sr(n): return f"s[{n}:{n+3}]"
def vr(n, k=4): return f"v[{n}:{n+k-1}]"
def v(n): return f"v{n}"
def s(n): return f"s{n}"

def srd(dst, ptr, off, records):
    if off is None:
        I("s_mov_b32", s(dst), s(ptr)); I("s_mov_b32", s(dst+1), s(ptr+1))
    else:
        I("s_add_u32", s(dst), s(ptr), off); I("s_addc_u32", s(dst+1), s(ptr+1), 0)
    I("s_mov_b32", s(dst+2), records); I("s_mov_b32", s(dst+3), "0x20000")

DPPALL = "row_mask:0xf bank_mask:0xf"
def allred(op, x, t, rows=True):
    if rows:
        for n in (8, 4, 2, 1):
            I(op+"_dpp", v(x), v(x), v(x), mod=f"row_ror:{n} {DPPALL}")
    I("v_mov_b32", v(t), v(x)); I("v_permlane16_swap_b32", v(x), v(t)); I(op, v(x), v(x), v(t))
    I("v_mov_b32", v(t), v(x)); I("v_permlane32_swap_b32", v(x), v(t)); I(op, v(x), v(x), v(t))

def bfr1(x):
    I("v_cvt_pk_bf16_f32", v(x), v(x), v(x)); I("v_and_b32", v(x), s(sMASK), v(x))
def bfr2(x, y, w):
    I("v_cvt_pk_bf16_f32", v(w), v(x), v(y)); I("v_lshlrev_b32", v(x), 16, v(w)); I("v_and_b32", v(y), s(sMASK), v(w))

def layernorm(X, O, T):
    sm, tt, mean, var, den, rc = T[:6]
    I("v_add_f32", v(sm), v(X[0]), v(X[1]))
    for k in range(2, 9): I("v_add_f32", v(sm), v(sm), v(X[k]))
    allred("v_add_f32", sm, tt)
    I("v_mul_f32", v(mean), f32(1.0/576), v(sm))
    for k in range(9): I("v_sub_f32", v(O[k]), v(X[k]), v(mean))
    I("v_mul_f32", v(var), v(O[0]), v(O[0]))
    for k in range(1, 9): I("v_fmac_f32", v(var), v(O[k]), v(O[k]))
    allred("v_add_f32", var, tt)
    I("v_mul_f32", v(var), f32(1.0/576), v(var))
    bfr2(mean, var, tt)
    I("v_add_f32", v(var), f32(1e-5), v(var)); bfr1(var)
    I("v_sqrt_f32", v(den), v(var)); bfr1(den)
    I("v_rcp_f32", v(rc), v(den))
    for k in range(9): I("v_sub_f32", v(O[k]), v(X[k]), v(mean))
    for k in range(0, 8, 2): bfr2(O[k], O[k+1], tt)
    bfr1(O[8])
    for k in range(9):
        I("v_mul_f32", v(sm), v(O[k]), v(rc))
        I("v_fma_f32", v(tt), "-"+v(sm), v(den), v(O[k]))
        I("v_fma_f32", v(O[k]), v(tt), v(rc), v(sm))
    for k in range(0, 8, 2): bfr2(O[k], O[k+1], tt)
    bfr1(O[8])

vTID, vLANE, vKOFF, vM, vL = 0, 1, 2, 3, 4
vT = [5, 6, 7]
vQ = 8
vACC = 16
vS = 32
vP = 40
BIG = 48
KB = [192, 224]; VB = [208, 240]
NT = "nt"
POLS = ["", "nt", "sc1", "sc0", "sc0 sc1", "sc1 nt", "sc0 nt", "sc0 sc1 nt"]
WMOD = POLS[OPT['pwq']]; WOMOD = POLS[OPT['pwo']]
KVP = {'K': POLS[OPT['pk']], 'V': POLS[OPT['pv']]}

def toff(n):
    sw = OPT['sweep']
    if OPT['desc']: n = 15-n
    if sw == 0: return n*(131072 if OPT['ilv'] else 32768)
    bb = n >> 2
    if sw == 2: bb = 3-bb
    return (bb << 25) | ((n & 3) << 15)
def set_toff(n, kind):
    if OPT['rt']:
        I("s_add_u32", s(sT0), "s3", toff(n)); I("s_and_b32", s(sT0), s(sT0), (0x1fffff if OPT['ilv'] else 0x7ffff))
    else:
        I("s_mov_b32", s(sT0), toff(n))
def tile_regs(kind, n):
    if STAGE[0] and n in (2, 3): return BIG + 32*(n-2) + (0 if kind == 'K' else 16)
    return (KB if kind == 'K' else VB)[n & 1]
def issue_tile_lds(kind, n):
    srdn = S_K if kind == 'K' else S_V
    q = 2*(n-2) + (0 if kind == 'K' else 1)
    I("s_lshl_b32", s(sT1), s(sW), 14); I("s_add_u32", s(sT1), s(sT1), L_ST+q*4096)
    I("s_mov_b32", "m0", s(sT1))
    set_toff(n, kind)
    for i in range(4):
        a.raw(f"  buffer_load_dwordx4 {v(vKOFF)}, {sr(srdn)}, {s(sT0)} offen offset:{i*1024} {KVP[kind]} lds"); a.pos += 1
        a.vm_issue(f"{kind}{n}")
def room():
    if len(a.vm) >= 62:
        I("s_waitcnt", f"vmcnt({len(a.vm)-4})"); a.vm = a.vm[4:]
def issue_one(kind, n, i):
    srdn = S_K if kind == 'K' else S_V
    room()
    if STAGE[0] and n in (2, 3):
        q = 2*(n-2) + (0 if kind == 'K' else 1)
        I("s_lshl_b32", s(sT1), s(sW), 14); I("s_add_u32", s(sT1), s(sT1), L_ST+q*4096)
        I("s_mov_b32", "m0", s(sT1))
        set_toff(n, kind)
        a.raw(f"  buffer_load_dwordx4 {v(vKOFF)}, {sr(srdn)}, {s(sT0)} offen offset:{i*1024} {KVP[kind]} lds"); a.pos += 1
    else:
        base = tile_regs(kind, n)
        set_toff(n, kind)
        I("buffer_load_dwordx4", vr(base+4*i), v(vKOFF), sr(srdn), s(sT0), mod=f"offen offset:{i*1024} {KVP[kind]}")
    a.vm_issue(f"{kind}{n}")
def read_tile_lds(kind, n):
    q = 2*(n-2) + (0 if kind == 'K' else 1)
    base = tile_regs(kind, n)
    for i in range(4):
        I("ds_read_b128", vr(base+4*i), v(7), mod=f"offset:{q*4096+i*1024}")
def issue_tile(kind, n):
    base = tile_regs(kind, n)
    srdn = S_K if kind == 'K' else S_V
    set_toff(n, kind)
    for i in range(4):
        I("buffer_load_dwordx4", vr(base+4*i), v(vKOFF), sr(srdn), s(sT0), mod=f"offen offset:{i*1024} {KVP[kind]}")
        a.vm_issue(f"{kind}{n}")

ts_n = [0]
def stamp(ra, rb):
    if not OPT['ts']: return
    I("s_memrealtime", "s[98:99]"); a.lgkm(0)
    I("s_lshl_b32", "s99", s(sW), 7)
    I("v_mov_b32", v(ra), "s98"); I("v_mov_b32", v(rb), "s99")
    I("ds_write_b32", v(rb), v(ra), mod=f"offset:{L_TS+4*ts_n[0]}")
    ts_n[0] += 1
def stamp_dump():
    if not OPT['ts']: return
    I("s_mov_b64", "exec", -1)
    I("s_lshl_b32", "s99", s(sW), 7)
    I("v_and_b32", v(5), 31, v(vLANE)); I("v_lshlrev_b32", v(5), 2, v(5)); I("v_add_u32", v(5), "s99", v(5))
    a.lgkm(0)
    I("ds_read_b32", v(6), v(5), mod=f"offset:{L_TS}")
    I("s_lshl_b32", s(sT0), "s2", 10); I("s_add_u32", s(sT0), s(sT0), 0x400000)
    srd(S_M1, P_WS, s(sT0), 1024)
    a.lgkm(0)
    I("buffer_store_dword", v(6), v(5), sr(S_M1), 0, mod="offen")

name = "recurrent_scan__gqa_block_cached__mixer_token_mlp__decode"
K1 = "attn_main_kernel"; K2 = "attn_fin_kernel"

def set_wq():
    I("s_lshl_b32", s(sT0), s(sKVH), 9)
    I("s_sub_u32", s(sT1), 576*8192, s(sT0))
    I("s_add_u32", s(S_WQ), s(P_WQ), s(sT0)); I("s_addc_u32", s(S_WQ+1), s(P_WQ+1), 0)
    I("s_mov_b32", s(S_WQ+2), s(sT1)); I("s_mov_b32", s(S_WQ+3), "0x20000")
def decode():
    I("s_lshr_b32", s(sKVH), s(sITEM), 4); I("s_and_b32", s(sKVH), s(sKVH), 15)
    I("s_and_b32", s(sSPLIT), s(sITEM), 3)
    I("s_bfe_u32", s(sB), s(sITEM), (2 << 16) | 2)
    I("s_lshl_b32", s(sP), s(sKVH), 2); I("s_or_b32", s(sP), s(sP), s(sSPLIT))
    I("s_lshl_b32", s(sBP), s(sB), 6); I("s_or_b32", s(sBP), s(sBP), s(sP))
    if OPT['sweep']:
        I("s_lshl_b32", s(sT0), s(sITEM), 17)
        srd(S_K, P_K, s(sT0), (96 << 20) + (1 << 17)); srd(S_V, P_V, s(sT0), (96 << 20) + (1 << 17))
    elif OPT['ilv']:
        I("s_lshr_b32", s(sT0), s(sBP), 2); I("s_lshl_b32", s(sT0), s(sT0), 21)
        I("s_lshl_b32", s(sT1), s(sSPLIT), 15); I("s_add_u32", s(sT0), s(sT0), s(sT1))
        srd(S_K, P_K, s(sT0), (1 << 21) - 3*32768); srd(S_V, P_V, s(sT0), (1 << 21) - 3*32768)
    else:
        I("s_lshl_b32", s(sT0), s(sBP), 19)
        srd(S_K, P_K, s(sT0), 1 << 19); srd(S_V, P_V, s(sT0), 1 << 19)
    if OPT['rt']:
        I("s_lshr_b32", "s3", s(sITEM), OPT['rt']-1); I("s_lshr_b32", s(sT1), s(sITEM), 4); I("s_add_u32", "s3", "s3", s(sT1))
        I("s_and_b32", "s3", "s3", 15); I("s_lshl_b32", "s3", "s3", 17 if OPT['ilv'] else 15)
    I("s_mul_i32", s(sT0), s(sBP), TSTRIDE); srd(S_WS, P_WS, s(sT0), TSTRIDE)
def wq_load(i):
    if OPT['nowq']: return
    room()
    I("s_mov_b32", s(sRO), i*8192)
    I("buffer_load_dwordx4", vr(BIG+4*i), v(7), sr(S_WQ), s(sRO), mod=f"offen {WMOD}"); a.vm_issue(f"wq{i}")
STMOD = POLS[OPT['pst']]

def k1():
    a.raw(f".globl {K1}\n.p2align 8\n.type {K1},@function\n{K1}:")
    I("s_cmp_ge_u32", "s2", 256); I("s_cbranch_scc1", "K1_END")
    I("s_load_dwordx16", "s[36:51]", "s[0:1]", 0)
    I("s_load_dwordx8", "s[52:59]", "s[0:1]", 64)
    I("s_load_dwordx2", "s[60:61]", "s[0:1]", 96)
    I("s_getreg_b32", s(sXCC), "hwreg(HW_REG_XCC_ID, 0, 4)"); I("s_and_b32", s(sXCC), s(sXCC), 7)
    if OPT['badx'] == 1: I("s_mov_b32", s(sXCC), 3)
    if OPT['badx'] == 2: I("s_and_b32", s(sXCC), s(sXCC), 5)
    I("s_lshl_b32", s(sKVH), s(sXCC), 1)
    I("s_bfe_u32", s(sT0), "s2", (1 << 16) | OPT['kbit']); I("s_or_b32", s(sKVH), s(sKVH), s(sT0))
    I("s_mov_b32", s(sSELLO), "0x05040100"); I("s_mov_b32", s(sSELHI), "0x07060302")
    I("s_mov_b32", s(sMASK), "0xffff0000"); I("s_mov_b32", s(sSCALE), f32(SCALE)); I("s_mov_b32", s(sLOG2E), f32(LOG2E))
    I("v_and_b32", v(vLANE), 63, v(vTID))
    I("v_lshrrev_b32", v(5), 6, v(vTID))
    I("v_readfirstlane_b32", s(sW), v(5))
    I("v_lshlrev_b32", v(vKOFF), 4, v(vLANE)); I("v_lshl_add_u32", v(vKOFF), v(5), 12, v(vKOFF))
    I("v_mul_u32_u24", v(6), 18, v(vLANE))
    I("v_lshrrev_b32", v(7), 5, v(vTID))
    I("v_mul_u32_u24", v(7), 36*8192, v(7))
    I("v_and_b32", v(40), 31, v(vTID)); I("v_lshl_add_u32", v(7), v(40), 4, v(7))
    a.lgkm(0)
    stamp(40,41)
    I("s_cmp_eq_u32", s(sW), 7); I("s_cbranch_scc1", "K1_TK")
    I("s_and_b32", s(sT0), s(sW), 3)
    I("s_mul_i32", s(sT0), s(sT0), 1152); srd(S_X, P_X, s(sT0), 1152)
    X = list(range(16, 25))
    for k in range(9):
        I("buffer_load_ushort", v(X[k]), v(6), sr(S_X), 0, mod=f"offen offset:{2*k}"); a.vm_issue("x")
    I("v_add_u32", v(6), s(sT0), v(6))
    set_wq()
    I("s_bitcmp1_b32", "s2", OPT['gbit']); I("s_cbranch_scc1", "K1_GB")
    import copy
    save = (copy.deepcopy(a.vm), ts_n[0])
    body(0, X)
    a.label("K1_GB")
    a.vm = save[0]; ts_n[0] = save[1]
    body(1, X)
    a.label("K1_TK")
    a.vm = []
    srd(S_M2, P_DBG, None, 256)
    I("s_mov_b64", "exec", 1)
    I("s_mov_b32", s(sFLAG), 0)
    if OPT['dbgts']:
        I("s_memrealtime", "s[98:99]"); a.lgkm(0)
        I("s_not_b32", "s98", "s98"); I("v_mov_b32", v(42), "s98"); I("v_mov_b32", v(43), 16)
        I("buffer_atomic_umax", v(42), v(43), sr(S_M2), 0, mod="offen")
    a.label("K1_TKL")
    I("s_lshr_b32", s(sT0), s(sKVH), 1); I("s_lshl_b32", s(sT0), s(sT0), 5)
    I("s_and_b32", s(sT1), s(sKVH), 1); I("s_lshl_b32", s(sT1), s(sT1), 2); I("s_add_u32", s(sT0), s(sT0), s(sT1))
    I("v_mov_b32", v(41), s(sT0)); I("v_mov_b32", v(40), 1)
    I("buffer_atomic_add", v(40), v(41), sr(S_M2), 0, mod="offen sc0")
    I("s_waitcnt", "vmcnt(0)")
    I("v_readfirstlane_b32", s(sT0), v(40))
    a.nop(2)
    I("s_cmp_lt_u32", s(sT0), 16); I("s_cbranch_scc1", "K1_TKOK")
    I("s_add_u32", s(sKVH), s(sKVH), 1); I("s_and_b32", s(sKVH), s(sKVH), 15)
    I("s_add_u32", s(sFLAG), s(sFLAG), 1); I("s_cmp_lt_u32", s(sFLAG), 64); I("s_cbranch_scc1", "K1_TKL")
    I("s_and_b32", s(sT0), s(sT0), 15)
    a.label("K1_TKOK")
    I("s_lshl_b32", s(sITEM), s(sKVH), 4); I("s_or_b32", s(sITEM), s(sITEM), s(sT0))
    I("v_mov_b32", v(40), s(sITEM)); I("v_mov_b32", v(41), 0)
    I("ds_write_b32", v(41), v(40), mod=f"offset:{L_TK}")
    I("s_mov_b64", "exec", -1)
    a.lgkm(0)
    I("s_barrier")
    decode()
    if OPT['fused']:
        for k in range(4): I("v_mov_b32", v(40+k), -1)
        I("v_lshlrev_b32", v(5), 4, v(vLANE))
        for k in range(4): I("buffer_store_dwordx4", vr(40), v(5), sr(S_WS), 0, mod=f"offen offset:{1024*k} {STMOD}")
        I("s_movk_i32", s(sT0), 4096)
        I("buffer_store_dwordx4", vr(40), v(5), sr(S_WS), s(sT0), mod=f"offen {STMOD}")
        I("s_lshl_b32", s(sT0), s(sXCC), 5); I("s_add_u32", s(sT0), s(sT0), 8)
        I("v_mov_b32", v(45), s(sT0)); I("v_mov_b32", v(44), 1)
        I("s_waitcnt", "vmcnt(0)")
        I("s_mov_b64", "exec", 1)
        I("buffer_atomic_add", v(44), v(45), sr(S_M2), 0, mod="offen")
        I("s_mov_b64", "exec", -1)
    I("s_bitcmp1_b32", "s2", OPT['gbit']); I("s_cbranch_scc1", "K1_RQ2B")
    I("s_branch", "K1_RQ2A")
    a.label("K1_END")
    I("s_endpgm")

def body(G, X):
    O = dict(OPT); O.update(GOPT[G]); STAGE[0] = O['stage']
    sfx = "AB"[G]
    tl = (('K', 0), ('V', 0), ('K', 1), ('V', 1), ('K', 2), ('V', 2), ('K', 3), ('V', 3)) if O['stage'] else (('K', 0), ('V', 0), ('K', 1), ('V', 1))
    pend = [(k, n, i) for (k, n) in tl for i in range(4)]
    XN = list(range(25, 34)); T = list(range(34, 40))
    def do_ln():
        stamp(40,41)
        a.vm_wait("x")
        stamp(40,41)
        for k in range(9): I("v_lshlrev_b32", v(X[k]), 16, v(X[k]))
        layernorm(X, XN, T)
        for k in range(9):
            I("ds_write_b16_d16_hi", v(6), v(XN[k]), mod=f"offset:{L_XN+2*k}")
    if O['lnpos'] < 0: do_ln()
    for i in range(O['wqpre']):
        wq_load(i)
        if i == O['lnpos']: do_ln()
    assert O['lnpos'] < O['wqpre']
    a.lgkm(0)
    I("s_barrier")
    I("v_mov_b32", v(41), 0)
    I("ds_read_b32", v(40), v(41), mod=f"offset:{L_TK}")
    a.lgkm(0)
    I("v_readfirstlane_b32", s(sITEM), v(40))
    I("s_mov_b32", s(sFLAG), s(sKVH))
    a.nop(2)
    decode()
    I("s_cmp_eq_u32", s(sFLAG), s(sKVH)); I("s_cbranch_scc1", "K1_GO"+sfx)
    I("s_waitcnt", "vmcnt(0)")
    a.label("K1_RQ2"+sfx)
    import copy
    vmsave = copy.deepcopy(a.vm)
    a.vm = []
    set_wq()
    for i in range(O['wqpre']): wq_load(i)
    if not OPT['nowq']: assert a.vm == vmsave, (a.vm, vmsave)
    a.label("K1_GO"+sfx)
    stamp(40,41)
    for _ in range(O['kvfirst']):
        if pend: issue_one(*pend.pop(0))
    for i in range(O['wqpre'], 36): wq_load(i)
    for _ in range(O['kvafter']):
        if pend: issue_one(*pend.pop(0))
    I("s_mul_i32", s(sT0), s(sKVH), 256*1152); srd(S_WO, P_WO, s(sT0), 256*1152)
    srd(S_M1, P_W1, None, 9216); srd(S_M2, P_B1, None, 9216); srd(sM3, P_W2, None, 9216)
    I("v_lshrrev_b32", v(5), 5, v(vTID)); I("v_mul_u32_u24", v(5), 72, v(5))
    I("s_mul_i32", s(sT0), s(sB), 1152); I("v_add_u32", v(5), s(sT0), v(5))
    XP = 16
    for k in range(9):
        I("ds_read_b64", vr(XP+2*k, 2), v(5), mod=f"offset:{L_XN+8*k}")
    QA = 34
    stamp(40,41)
    PT = [42, 43, 44, 45, 46, 47]
    a.lgkm(0)
    for ip in range(18):
        a.vm_wait(f"wq{2*ip+1}")
        for _ in range(O['cred']):
            if pend: issue_one(*pend.pop(0))
        w0 = BIG+8*ip; w1 = w0+4
        for half in range(2):
            for r in (2*half, 2*half+1):
                t0, t1 = PT[2*(r & 1)], PT[2*(r & 1)+1]
                I("v_perm_b32", v(t0), v(w1+r), v(w0+r), s(sSELLO))
                I("v_perm_b32", v(t1), v(w1+r), v(w0+r), s(sSELHI))
            for r in (2*half, 2*half+1):
                t0, t1 = PT[2*(r & 1)], PT[2*(r & 1)+1]
                if ip == 0:
                    I("v_dot2_f32_bf16", v(QA+2*r), v(t0), v(XP+ip), 0)
                    I("v_dot2_f32_bf16", v(QA+2*r+1), v(t1), v(XP+ip), 0)
                else:
                    I("v_dot2_f32_bf16", v(QA+2*r), v(t0), v(XP+ip), v(QA+2*r))
                    I("v_dot2_f32_bf16", v(QA+2*r+1), v(t1), v(XP+ip), v(QA+2*r+1))
    stamp(5,6)
    GR = 128
    gW1r, gB1r, gW2r = GR, GR+4, GR+8
    gW1x, gB1x, gW2x = GR+12, GR+13, GR+14
    I("v_lshlrev_b32", v(5), 4, v(vTID)); I("v_lshlrev_b32", v(6), 1, v(vTID))
    for (dst, dx, sd) in ((gW1r, gW1x, S_M1), (gB1r, gB1x, S_M2), (gW2r, gW2x, sM3)):
        I("buffer_load_dwordx4", vr(dst), v(5), sr(sd), 0, mod="offen"); a.vm_issue("gw")
        I("s_movk_i32", s(sT0), 8192)
        I("buffer_load_ushort", v(dx), v(6), sr(sd), s(sT0), mod="offen"); a.vm_issue("gw")
    for k in range(4):
        I("v_permlane32_swap_b32", v(QA+k), v(QA+k+4))
    for k in range(4):
        I("v_add_f32", v(QA+k), v(QA+k), v(QA+k+4))
    I("v_and_b32", v(5), 31, v(vLANE)); I("v_lshlrev_b32", v(5), 5, v(5))
    I("v_lshrrev_b32", v(6), 5, v(vLANE)); I("v_lshl_add_u32", v(5), v(6), 4, v(5))
    I("s_lshl_b32", s(sT0), s(sW), 10); I("s_add_u32", s(sT0), s(sT0), L_QP); I("v_add_u32", v(5), s(sT0), v(5))
    I("ds_write_b128", v(5), vr(QA))
    if not O['pendlate']:
        while pend: issue_one(*pend.pop(0))
    a.lgkm(0)
    I("s_barrier")
    I("v_lshlrev_b32", v(5), 4, v(vLANE)); I("v_add_u32", v(5), L_QP, v(5))
    for w in range(8):
        I("ds_read_b128", vr(BIG+4*w), v(5), mod=f"offset:{1024*w}")
    a.lgkm(0)
    for st in (4, 2, 1):
        for w in range(st):
            for k in range(4):
                I("v_add_f32", v(BIG+4*w+k), v(BIG+4*w+k), v(BIG+4*(w+st)+k))
    I("v_cvt_pk_bf16_f32", v(BIG), v(BIG), v(BIG+1)); I("v_cvt_pk_bf16_f32", v(BIG+1), v(BIG+2), v(BIG+3))
    I("s_lshl_b32", s(sT0), s(sW), 9)
    I("v_lshlrev_b32", v(5), 3, v(vLANE)); I("v_add_u32", v(5), s(sT0), v(5))
    I("ds_write_b64", v(5), vr(BIG, 2), mod=f"offset:{L_QS}")
    I("v_and_b32", v(5), 15, v(vLANE)); I("v_lshlrev_b32", v(5), 4, v(5)); I("v_add_u32", v(5), s(sT0), v(5))
    a.lgkm(0)
    I("ds_read_b128", vr(vQ), v(5), mod=f"offset:{L_QS}")
    I("ds_read_b128", vr(vQ+4), v(5), mod=f"offset:{L_QS+256}")
    while pend: issue_one(*pend.pop(0))
    for k in range(16): I("v_mov_b32", v(vACC+k), 0)
    I("v_mov_b32", v(vM), f32(-1e30)); I("v_mov_b32", v(vL), 0)
    a.lgkm(0)

    stamp(5,6)
    gW1f = GR+16; gB1f = GR+25; gY = GR+34; gT = GR+43
    vC1 = GR+15
    def gate_prep():
        XX = [gW1f+i for i in range(9)]; HH = [gB1f+i for i in range(9)]
        I("v_mul_u32_u24", v(gT+12), 18, v(vLANE))
        I("s_mul_i32", s(sT0), s(sB), 1152); I("v_add_u32", v(gT+12), s(sT0), v(gT+12))
        for k in range(9): I("v_mov_b32", v(XX[k]), 0)
        for k in range(9): I("ds_read_u16_d16_hi", v(XX[k]), v(gT+12), mod=f"offset:{L_XN+2*k}")
        a.lgkm(0)
        layernorm(XX, HH, [gT+i for i in range(6)])
        for k in range(9): I("v_readlane_b32", s(sH+k), v(HH[k]), s(sP))
        a.vm_wait("gw")
        I("v_mov_b32", v(vC1), f32(C1))
        for q in range(4):
            I("v_lshlrev_b32", v(gW1f+2*q), 16, v(gW1r+q)); I("v_and_b32", v(gW1f+2*q+1), s(sMASK), v(gW1r+q))
            I("v_lshlrev_b32", v(gB1f+2*q), 16, v(gB1r+q)); I("v_and_b32", v(gB1f+2*q+1), s(sMASK), v(gB1r+q))
        I("v_lshlrev_b32", v(gW1f+8), 16, v(gW1x)); I("v_lshlrev_b32", v(gB1f+8), 16, v(gB1x))
        I("v_lshlrev_b32", v(gW2x), 16, v(gW2x))
    def gelu_list(U, TT):
        for u, t in zip(U, TT): I("v_mul_f32", v(t), v(u), v(u))
        for u, t in zip(U, TT): I("v_fmaak_f32", v(t), v(t), v(vC1), f32(C0))
        for u, t in zip(U, TT): I("v_mul_f32", v(t), v(t), v(u))
        for u, t in zip(U, TT): I("v_exp_f32", v(t), "-"+v(t))
        for u, t in zip(U, TT): I("v_add_f32", v(t), 1.0, v(t))
        for u, t in zip(U, TT): I("v_rcp_f32", v(t), v(t))
        for u, t in zip(U, TT): I("v_mul_f32", v(u), v(u), v(t))
    def gate_col(k):
        if OPT['nogate']: return
        for hh in range(2):
            U = [gT+i for i in range(4)]; TT = [gT+4+i for i in range(4)]; W = [gT+8, gT+9]
            for i in range(4): I("v_mul_f32", v(U[i]), s(sH+k), v(gW1f+4*hh+i))
            bfr2(U[0], U[1], W[0]); bfr2(U[2], U[3], W[1])
            for i in range(4): I("v_add_f32", v(U[i]), v(U[i]), v(gB1f+4*hh+i))
            bfr2(U[0], U[1], W[0]); bfr2(U[2], U[3], W[1])
            gelu_list(U, TT)
            I("v_cvt_pk_bf16_f32", v(W[0]), v(U[0]), v(U[1])); I("v_cvt_pk_bf16_f32", v(W[1]), v(U[2]), v(U[3]))
            I("v_dot2_f32_bf16", v(gY+k), v(W[0]), v(gW2r+2*hh), 0 if hh == 0 else v(gY+k))
            I("v_dot2_f32_bf16", v(gY+k), v(W[1]), v(gW2r+2*hh+1), v(gY+k))
    def gate_fin():
        for grp in ((0, 1, 2, 3), (4, 5, 6, 7), (8,)):
            n = len(grp)
            U = [gT+i for i in range(n)]; TT = [gT+4+i for i in range(n)]; W = [gT+8, gT+9]
            for i, k in enumerate(grp): I("v_mul_f32", v(U[i]), s(sH+k), v(gW1f+8))
            def rnd():
                if n == 4: bfr2(U[0], U[1], W[0]); bfr2(U[2], U[3], W[1])
                else: bfr1(U[0])
            rnd()
            for i in range(n): I("v_add_f32", v(U[i]), v(U[i]), v(gB1f+8))
            rnd()
            gelu_list(U, TT)
            rnd()
            for i, k in enumerate(grp): I("v_fmac_f32", v(gY+k), v(U[i]), v(gW2x))
        for n in (8, 4, 2, 1):
            for k in range(9):
                I("v_add_f32_dpp", v(gY+k), v(gY+k), v(gY+k), mod=f"row_ror:{n} {DPPALL}")
        for (sw) in ("v_permlane16_swap_b32", "v_permlane32_swap_b32"):
            for k in range(9): I("v_mov_b32", v(gT+k), v(gY+k))
            for k in range(9): I(sw, v(gY+k), v(gT+k))
            for k in range(9): I("v_add_f32", v(gY+k), v(gY+k), v(gT+k))
        I("s_lshl_b32", s(sT0), s(sW), 6); I("v_mov_b32", v(gT), s(sT0))
        for k in range(9):
            I("ds_write_b32", v(gT), v(gY+k), mod=f"offset:{L_GP+4*k}")

    wo_loads = [('m', k) for k in range(32)] + [('l', q) for q in range(4)]
    vWOM, vWOL = 46, 47
    def wo_addr():
        I("s_mul_i32", s(sT0), s(sW), 32*1152)
        I("v_lshlrev_b32", v(vWOM), 4, v(vLANE)); I("v_add_u32", v(vWOM), s(sT0), v(vWOM))
        I("v_lshrrev_b32", v(5), 3, v(vLANE)); I("v_mul_u32_u24", v(5), 4*1152, v(5))
        I("v_and_b32", v(6), 7, v(vLANE)); I("v_lshl_add_u32", v(5), v(6), 4, v(5))
        I("s_add_u32", s(sT0), s(sT0), 1024); I("v_add_u32", v(vWOL), s(sT0), v(5))
    def wo_issue(idx):
        kind, k = wo_loads[idx]
        if OPT['nowo']: return
        room()
        if kind == 'm':
            I("s_mov_b32", s(sT1), (k//3)*3456)
            I("buffer_load_dwordx4", vr(BIG+4*k), v(vWOM), sr(S_WO), s(sT1), mod=f"offen offset:{(k%3)*1152} {WOMOD}")
        else:
            I("buffer_load_dwordx4", vr(BIG+128+4*k), v(vWOL), sr(S_WO), 0, mod=f"offen offset:{k*1152} {WOMOD}")
        a.vm_issue(f"wo{idx}")
    WP = {}
    free = [45]
    def wo_perm(pair):
        a.vm_wait(f"wo{2*pair+1}")
        r0 = BIG+8*pair; r1 = r0+4
        for r in range(4):
            f = free.pop()
            I("v_perm_b32", v(f), v(r1+r), v(r0+r), s(sSELLO))
            I("v_perm_b32", v(r1+r), v(r1+r), v(r0+r), s(sSELHI))
            WP[(pair, 2*r)] = f; WP[(pair, 2*r+1)] = r1+r
            free.append(r0+r)
    wo_addr()

    gate_next = 0; wo_next = 0; perm_next = 0; wo_hist = {}
    gate_done = False
    PTm = [40, 41, 42, 43]; vPP = 44
    for n in range(16):
        kb = tile_regs('K', n); vb = tile_regs('V', n)
        if OPT['tbar'] and n >= 4 and n % OPT['tbar'] == 0: I("s_barrier")
        a.vm_wait(f"K{n}")
        stamp(5,6)
        if n == 15:
            srd(S_M1, P_B2, None, 2)
            I("v_mov_b32", v(7), 0)
            I("buffer_load_ushort", v(192), v(7), sr(S_M1), 0, mod="offen"); a.vm_issue("misc")
            if OPT['fused']:
                I("s_mul_i32", s(sT0), s(sBP), 18); srd(S_X, P_X, s(sT0), 18)
                I("v_lshlrev_b32", v(196), 1, v(vLANE))
                I("buffer_load_ushort", v(193), v(196), sr(S_X), 0, mod="offen"); a.vm_issue("misc")
                srd(S_M2, P_DBG, None, 256)
                I("v_lshlrev_b32", v(195), 2, v(vLANE))
                I("buffer_load_dword", v(194), v(195), sr(S_M2), 0, mod="offen sc1"); a.vm_issue("misc")
        nxt = (n+4 if n < 2 else (None if n < 4 else n+2)) if O['stage'] else n+2
        if nxt is not None and nxt >= 16: nxt = None
        if O['stage'] and n in (2, 3):
            I("s_lshl_b32", s(sT1), s(sW), 14); I("s_add_u32", s(sT1), s(sT1), L_ST)
            I("v_lshlrev_b32", v(7), 4, v(vLANE)); I("v_add_u32", v(7), s(sT1), v(7))
            read_tile_lds('K', n)
            a.vm_wait(f"V{n}")
            read_tile_lds('V', n)
            a.lgkm(4)
        for r in range(4):
            for i in range(4):
                for h in range(2):
                    d = vS+4*h+i
                    I("v_dot2_f32_bf16", v(d), v(kb+4*i+r), v(vQ+4*h+r), 0 if r == 0 else v(d))
        if nxt is not None: issue_tile('K', nxt)
        for h in range(2):
            for e in range(2):
                d = vS+4*h+e
                I("v_add_f32_dpp", v(d), v(d), v(d), mod="row_ror:8 row_mask:0xf bank_mask:0x3")
        for h in range(2):
            for e in range(2):
                d = vS+4*h+e; sft = vS+4*h+2+e
                I("v_add_f32_dpp", v(d), v(sft), v(sft), mod="row_ror:8 row_mask:0xf bank_mask:0xc")
        for e in range(2):
            d = vS+e
            I("v_add_f32_dpp", v(d), v(d), v(d), mod="row_shl:4 row_mask:0xf bank_mask:0x5")
        for e in range(2):
            d = vS+e; sft = vS+4+e
            I("v_add_f32_dpp", v(d), v(sft), v(sft), mod="row_shr:4 row_mask:0xf bank_mask:0xa")
        for qp in ("[1,0,3,2]", "[2,3,0,1]"):
            for e in range(2):
                d = vS+e
                I("v_add_f32_dpp", v(d), v(d), v(d), mod=f"quad_perm:{qp} {DPPALL}")
        A, B, W, TM, AL = vS, vS+1, vS+2, vS+3, vS+4
        bfr2(A, B, W)
        I("v_mul_f32", v(A), s(sSCALE), v(A)); I("v_mul_f32", v(B), s(sSCALE), v(B))
        bfr2(A, B, W)
        I("v_max_f32", v(TM), v(A), v(B))
        I("v_max_f32_dpp", v(TM), v(TM), v(TM), mod=f"row_ror:8 {DPPALL}")
        I("v_mul_f32", v(TM), s(sLOG2E), v(TM))
        I("v_max_f32", v(TM), v(TM), v(vM))
        I("v_sub_f32", v(AL), v(vM), v(TM))
        I("v_fma_f32", v(A), v(A), s(sLOG2E), "-"+v(TM))
        I("v_fma_f32", v(B), v(B), s(sLOG2E), "-"+v(TM))
        I("v_exp_f32", v(AL), v(AL)); I("v_exp_f32", v(A), v(A)); I("v_exp_f32", v(B), v(B))
        I("v_mov_b32", v(vM), v(TM))
        I("v_fma_f32", v(vL), v(vL), v(AL), v(A))
        I("v_cvt_pk_bf16_f32", v(vPP), v(A), v(B))
        I("v_add_f32", v(vL), v(vL), v(B))
        for h in range(2):
            for k in range(8):
                d = vACC+8*h+k
                I("v_mul_f32_dpp", v(d), v(AL), v(d), mod=f"row_newbcast:{4*h} {DPPALL}")
        a.vm_wait(f"V{n}")
        if O['stage'] and n in (2, 3): a.lgkm(0)
        for j in range(2):
            for rr in range(2):
                for r in (2*rr, 2*rr+1):
                    t0, t1 = PTm[2*(r & 1)], PTm[2*(r & 1)+1]
                    I("v_perm_b32", v(t0), v(vb+4*(2*j+1)+r), v(vb+4*(2*j)+r), s(sSELLO))
                    I("v_perm_b32", v(t1), v(vb+4*(2*j+1)+r), v(vb+4*(2*j)+r), s(sSELHI))
                for h in range(2):
                    for r in (2*rr, 2*rr+1):
                        t0, t1 = PTm[2*(r & 1)], PTm[2*(r & 1)+1]
                        I("v_dot2c_f32_bf16_dpp", v(vACC+8*h+2*r), v(vPP), v(t0), mod=f"row_newbcast:{4*(2*j+h)} {DPPALL}")
                        I("v_dot2c_f32_bf16_dpp", v(vACC+8*h+2*r+1), v(vPP), v(t1), mod=f"row_newbcast:{4*(2*j+h)} {DPPALL}")
        if nxt is not None: issue_tile('V', nxt)
        if n >= O['gate_start'] and not gate_done:
            if gate_next == 0: gate_prep()
            for _ in range(O['gate_per_tile']):
                if gate_next < 9:
                    gate_col(gate_next); gate_next += 1
            if gate_next == 9:
                gate_fin(); gate_done = True
        if n >= O['wo_start']:
            lim = wo_hist.get(n-2, 0)
            while perm_next < 18 and 2*perm_next+1 < lim:
                wo_perm(perm_next); perm_next += 1
            for _ in range(O['wo_per_tile']):
                if wo_next < 36 and (wo_next < 20 or gate_done) and (wo_next >= 16 or n >= 3 or not O['stage']):
                    wo_issue(wo_next); wo_next += 1
            wo_hist[n] = wo_next
            if n == 15:
                while perm_next < 18:
                    wo_perm(perm_next); perm_next += 1
    assert wo_next == 36 and perm_next == 18, (wo_next, perm_next)

    stamp(5,6)
    T0, T1, T2 = vS, vS+1, vS+2
    I("v_add_f32_dpp", v(vL), v(vL), v(vL), mod=f"row_ror:8 {DPPALL}")
    I("v_mov_b32", v(T0), v(vM))
    allred("v_max_f32", T0, T1, rows=False)
    I("v_sub_f32", v(T2), v(vM), v(T0)); I("v_exp_f32", v(T2), v(T2))
    I("v_mul_f32", v(vL), v(vL), v(T2))
    for h in range(2):
        for k in range(8):
            d = vACC+8*h+k
            I("v_mul_f32_dpp", v(d), v(T2), v(d), mod=f"row_newbcast:{4*h} {DPPALL}")
    allred("v_add_f32", vL, T1, rows=False)
    for k in range(8): I("v_permlane32_swap_b32", v(vACC+k), v(vACC+8+k))
    for k in range(8): I("v_add_f32", v(vACC+k), v(vACC+k), v(vACC+8+k))
    for k in range(4): I("v_permlane16_swap_b32", v(vACC+k), v(vACC+4+k))
    for k in range(4): I("v_add_f32", v(vACC+k), v(vACC+k), v(vACC+4+k))
    I("v_and_b32", v(5), 15, v(vLANE)); I("v_lshlrev_b32", v(5), 5, v(5))
    I("v_bfe_u32", v(6), v(vLANE), 4, 1); I("v_lshl_add_u32", v(5), v(6), 4, v(5))
    I("v_lshrrev_b32", v(6), 5, v(vLANE)); I("v_lshl_add_u32", v(5), v(6), 9, v(5))
    I("s_lshl_b32", s(sT0), s(sW), 10); I("s_add_u32", s(sT0), s(sT0), L_OP); I("v_add_u32", v(5), s(sT0), v(5))
    I("ds_write_b128", v(5), vr(vACC))
    I("v_bfe_u32", v(6), v(vLANE), 2, 1); I("v_lshlrev_b32", v(6), 5, v(6))
    I("s_lshl_b32", s(sT0), s(sW), 2); I("v_add_u32", v(6), s(sT0), v(6))
    I("ds_write_b32", v(6), v(T0), mod=f"offset:{L_ML}")
    I("ds_write_b32", v(6), v(vL), mod=f"offset:{L_ML+64}")
    a.lgkm(0)
    I("s_barrier")
    stamp(5,6)
    if OPT['dbgts']:
        I("s_memrealtime", "s[98:99]"); a.lgkm(0); I("s_mov_b32", "s3", "s98")
    R = 208
    I("v_lshrrev_b32", v(5), 3, v(vLANE)); I("v_lshlrev_b32", v(5), 4, v(5))
    I("s_lshl_b32", s(sT0), s(sW), 7); I("s_add_u32", s(sT0), s(sT0), L_OP); I("v_add_u32", v(5), s(sT0), v(5))
    I("s_lshr_b32", s(sT1), s(sW), 2); I("s_lshl_b32", s(sT1), s(sT1), 5); I("v_mov_b32", v(6), s(sT1))
    MM = R+32; LL = R+40
    I("ds_read_b128", vr(MM), v(6), mod=f"offset:{L_ML}"); I("ds_read_b128", vr(MM+4), v(6), mod=f"offset:{L_ML+16}")
    I("ds_read_b128", vr(LL), v(6), mod=f"offset:{L_ML+64}"); I("ds_read_b128", vr(LL+4), v(6), mod=f"offset:{L_ML+80}")
    for w in range(8):
        I("ds_read_b128", vr(R+4*w), v(5), mod=f"offset:{1024*w}")
    a.lgkm(10)
    MX = vS; LS = vS+1; O = vS+2
    I("v_max3_f32", v(MX), v(MM), v(MM+1), v(MM+2)); I("v_max3_f32", v(MX), v(MX), v(MM+3), v(MM+4))
    I("v_max3_f32", v(MX), v(MX), v(MM+5), v(MM+6)); I("v_max_f32", v(MX), v(MX), v(MM+7))
    for w in range(8): I("v_sub_f32", v(MM+w), v(MM+w), v(MX))
    for w in range(8): I("v_exp_f32", v(MM+w), v(MM+w))
    a.lgkm(8)
    I("v_mul_f32", v(LS), v(MM), v(LL))
    for w in range(1, 8): I("v_fmac_f32", v(LS), v(MM+w), v(LL+w))
    a.lgkm(0)
    for w in range(8):
        for q in range(4):
            if w == 0: I("v_mul_f32", v(O+q), v(MM), v(R+q))
            else: I("v_fmac_f32", v(O+q), v(MM+w), v(R+4*w+q))
    P01, P23 = vS+6, vS+7
    I("v_cvt_pk_bf16_f32", v(P01), v(O), v(O+1)); I("v_cvt_pk_bf16_f32", v(P23), v(O+2), v(O+3))
    for rr in range(8):
        I("v_readlane_b32", s(sH+2*rr), v(P01), 8*rr); I("v_readlane_b32", s(sH+2*rr+1), v(P23), 8*rr)
    I("s_lshr_b32", s(sT1), s(sW), 2); I("s_lshl_b32", s(sT1), s(sT1), 3); I("v_mov_b32", v(6), s(sT1))
    I("ds_write_b64", v(6), vr(MX, 2), mod=f"offset:{L_ML2}")
    TL = vACC+8; TMn = vACC
    for c in range(8): I("v_dot2_f32_bf16", v(TL+c), v(WP[(16, c)]), v(P01), 0)
    for c in range(8): I("v_dot2_f32_bf16", v(TL+c), v(WP[(17, c)]), v(P23), v(TL+c))
    for k in range(16):
        for c in range(8):
            I("v_dot2_f32_bf16", v(TMn+c), v(WP[(k, c)]), s(sH+k), 0 if k == 0 else v(TMn+c))
    for k in range(4): I("v_permlane32_swap_b32", v(TL+k), v(TL+4+k))
    for k in range(4): I("v_add_f32", v(TL+k), v(TL+k), v(TL+4+k))
    for k in range(2): I("v_permlane16_swap_b32", v(TL+k), v(TL+2+k))
    for k in range(2): I("v_add_f32", v(TL+k), v(TL+k), v(TL+2+k))
    I("v_add_f32_dpp", v(TL), v(TL), v(TL), mod="row_ror:8 row_mask:0xf bank_mask:0x3")
    I("v_add_f32_dpp", v(TL), v(TL+1), v(TL+1), mod="row_ror:8 row_mask:0xf bank_mask:0xc")
    I("s_mul_i32", s(sT0), s(sW), 2304)
    I("v_and_b32", v(5), 7, v(vLANE)); I("v_lshlrev_b32", v(5), 5, v(5))
    I("v_lshrrev_b32", v(6), 3, v(vLANE)); I("v_lshl_add_u32", v(5), v(6), 2, v(5)); I("v_add_u32", v(5), s(sT0), v(5))
    I("v_lshlrev_b32", v(6), 5, v(vLANE)); I("v_add_u32", v(6), s(sT0), v(6))
    I("ds_write_b128", v(6), vr(TMn), mod=f"offset:{L_TP}")
    I("ds_write_b128", v(6), vr(TMn+4), mod=f"offset:{L_TP+16}")
    I("ds_write_b32", v(5), v(TL), mod=f"offset:{L_TP+2048}")
    stamp(7,40)
    a.lgkm(0)
    I("s_barrier")
    stamp(5,6)
    I("s_cmp_ge_u32", s(sW), 5); I("s_cbranch_scc1", "K1_W5"+sfx)
    I("v_cmp_gt_u32", "vcc", 288, v(vTID)); I("s_and_saveexec_b64", "s[96:97]", "vcc")
    I("v_lshlrev_b32", v(5), 4, v(vTID))
    I("v_cmp_le_u32", "vcc", 144, v(vTID)); I("v_mov_b32", v(7), 6912); I("v_cndmask_b32", v(6), 0, v(7), "vcc")
    I("v_add_u32", v(6), v(6), v(5))
    for w in range(4): I("ds_read_b128", vr(R+4*w), v(6), mod=f"offset:{L_TP+2304*w}")
    a.lgkm(0)
    for k in range(4):
        I("v_add_f32", v(R+k), v(R+k), v(R+4+k)); I("v_add_f32", v(R+8+k), v(R+8+k), v(R+12+k))
    for k in range(4): I("v_add_f32", v(R+k), v(R+k), v(R+8+k))
    I("buffer_store_dwordx4", vr(R), v(5), sr(S_WS), 0, mod="offen "+(STMOD if OPT['fused'] else ""))
    I("s_branch", "K1_FIN"+sfx)
    a.label("K1_W5"+sfx)
    I("s_cmp_lg_u32", s(sW), 5); I("s_cbranch_scc1", "K1_W6"+sfx)
    I("s_mov_b64", "exec", 1)
    I("v_mov_b32", v(5), 0)
    I("ds_read_b128", vr(R), v(5), mod=f"offset:{L_ML2}")
    a.lgkm(0)
    I("s_movk_i32", s(sT0), 4608)
    I("buffer_store_dwordx4", vr(R), v(5), sr(S_WS), s(sT0), mod="offen "+(STMOD if OPT['fused'] else ""))
    I("s_branch", "K1_FIN"+sfx)
    a.label("K1_W6"+sfx)
    I("s_cmp_lg_u32", s(sW), 6); I("s_cbranch_scc1", "K1_FIN"+sfx)
    I("s_mov_b64", "exec", 0x1ff)
    I("v_lshlrev_b32", v(5), 2, v(vLANE))
    for w in range(8): I("ds_read_b32", v(R+w), v(5), mod=f"offset:{L_GP+64*w}")
    a.lgkm(0)
    for st in (4, 2, 1):
        for w in range(st): I("v_add_f32", v(R+w), v(R+w), v(R+w+st))
    bfr1(R)
    I("s_waitcnt", "vmcnt(0)")
    I("v_lshlrev_b32", v(R+8), 16, v(192))
    I("v_add_f32", v(R), v(R), v(R+8)); bfr1(R)
    I("v_mul_f32", v(R+1), s(sLOG2E), v(R)); I("v_exp_f32", v(R+1), "-"+v(R+1))
    I("v_add_f32", v(R+1), 1.0, v(R+1)); I("v_rcp_f32", v(R+2), v(R+1))
    I("v_mul_f32", v(R+3), v(R), v(R+2))
    I("v_fma_f32", v(R+4), "-"+v(R+3), v(R+1), v(R)); I("v_fma_f32", v(R+3), v(R+4), v(R+2), v(R+3))
    bfr1(R+3)
    if not OPT['fused']:
        I("s_mul_i32", s(sT0), s(sBP), 36); I("s_add_u32", s(sT0), s(sT0), G_OFF)
        srd(S_M2, P_WS, s(sT0), 36)
        I("buffer_store_dword", v(R+3), v(5), sr(S_M2), 0, mod="offen")
    else:
        I("v_mov_b32", v(197), v(R+3))
        I("s_mov_b64", "exec", -1)
        I("v_mul_u32_u24", v(5), TSTRIDE, v(vLANE))
        I("s_mul_i32", s(sT1), s(sP), 36); I("v_add_u32", v(6), s(sT1), v(5))
        I("s_mul_i32", s(sT0), s(sB), 64*TSTRIDE); srd(S_WS, P_WS, s(sT0), 64*TSTRIDE)
        I("s_mul_i32", s(sT0), s(sBP), 18); srd(S_M1, P_OUT, s(sT0), 18)
        I("v_and_b32", v(7), 7, v(vLANE)); I("v_cmp_eq_u32", "s[96:97]", 2, v(7))
        I("s_mov_b32", s(sFLAG), 0)
        a.label("K1_ST"+sfx)
        I("v_cndmask_b32", v(198), 0, v(194), "s[96:97]")
        allred("v_add_u32", 198, 199)
        I("v_readfirstlane_b32", s(sT0), v(198))
        a.nop(2)
        I("s_cmp_eq_u32", s(sT0), 256); I("s_cbranch_scc1", "K1_STOK"+sfx)
        I("s_add_u32", s(sFLAG), s(sFLAG), 1); I("s_cmp_gt_u32", s(sFLAG), 20000); I("s_cbranch_scc1", "K1_STOK"+sfx)
        I("s_sleep", 16)
        I("buffer_load_dword", v(194), v(195), sr(S_M2), 0, mod="offen sc1")
        I("s_waitcnt", "vmcnt(0)")
        I("s_branch", "K1_ST"+sfx)
        a.label("K1_STOK"+sfx)
        I("s_mov_b64", "s[96:97]", -1)
        I("s_movk_i32", s(sT1), 4608)
        a.label("K1_PL"+sfx)
        I("s_mov_b64", "exec", "s[96:97]")
        LM = "sc1"
        I("buffer_load_dwordx4", vr(R+24), v(5), sr(S_WS), s(sT1), mod=f"offen {LM}")
        I("buffer_load_dwordx4", vr(R), v(6), sr(S_WS), 0, mod=f"offen {LM}")
        I("buffer_load_dwordx4", vr(R+4), v(6), sr(S_WS), 0, mod=f"offen offset:16 {LM}")
        I("buffer_load_dword", v(R+8), v(6), sr(S_WS), 0, mod=f"offen offset:32 {LM}")
        I("buffer_load_dwordx4", vr(R+12), v(6), sr(S_WS), 0, mod=f"offen offset:2304 {LM}")
        I("buffer_load_dwordx4", vr(R+16), v(6), sr(S_WS), 0, mod=f"offen offset:2320 {LM}")
        I("buffer_load_dword", v(R+20), v(6), sr(S_WS), 0, mod=f"offen offset:2336 {LM}")
        I("s_waitcnt", "vmcnt(0)")
        regs = [R+k for k in range(9)] + [R+12+k for k in range(9)] + [R+24+k for k in range(4)]
        I("v_max3_u32", v(198), v(regs[0]), v(regs[1]), v(regs[2]))
        I("v_max3_u32", v(199), v(regs[3]), v(regs[4]), v(regs[5]))
        for k in range(6, 22, 4):
            I("v_max3_u32", v(198), v(198), v(regs[k]), v(regs[k+1]))
            I("v_max3_u32", v(199), v(199), v(regs[k+2]), v(regs[k+3]))
        I("v_max_u32", v(198), v(198), v(199))
        I("v_cmp_eq_u32", "s[96:97]", -1, v(198))
        a.nop(2)
        I("s_cmp_eq_u64", "s[96:97]", 0); I("s_cbranch_scc1", "K1_PD"+sfx)
        I("s_add_u32", s(sFLAG), s(sFLAG), 1); I("s_cmp_gt_u32", s(sFLAG), 20000); I("s_cbranch_scc1", "K1_PD"+sfx)
        I("s_bcnt1_i32_b64", s(sT0), "s[96:97]"); I("s_cmp_le_u32", s(sT0), OPT['thr']); I("s_cbranch_scc1", "K1_PS"+sfx)
        I("s_sleep", OPT['slp_l'])
        a.label("K1_PS"+sfx)
        if OPT['slp_s']: I("s_sleep", OPT['slp_s'])
        I("s_branch", "K1_PL"+sfx)
        a.label("K1_PD"+sfx)
        I("s_mov_b64", "exec", -1)
        stamp(198,199)
        fin_math(R, 197, 193, vLANE)
        I("s_mov_b64", "exec", 0x1ff)
        I("buffer_store_short", v(R), v(196), sr(S_M1), 0, mod="offen")
        if OPT['dbgts']:
            I("s_mov_b64", "exec", 1)
            I("s_memrealtime", "s[98:99]"); a.lgkm(0)
            I("v_mov_b32", v(198), "s98"); I("v_mov_b32", v(199), 20)
            I("buffer_atomic_umax", v(198), v(199), sr(S_M2), 0, mod="offen")
            I("v_mov_b32", v(200), "s3"); I("v_mov_b32", v(201), 24)
            I("buffer_atomic_umax", v(200), v(201), sr(S_M2), 0, mod="offen")
            I("s_not_b32", "s3", "s3")
            I("v_mov_b32", v(202), "s3"); I("v_mov_b32", v(203), 28)
            I("buffer_atomic_umax", v(202), v(203), sr(S_M2), 0, mod="offen")
    a.label("K1_FIN"+sfx)
    stamp(5,6)
    stamp_dump()
    I("s_endpgm")

def fin_math(R, G, XV, LN):
    ML = R+24; C = [R+32, R+33]; T = R+34
    for h in range(2):
        Mv, Lv = ML+2*h, ML+2*h+1
        I("v_max_f32_dpp", v(T), v(Mv), v(Mv), mod=f"quad_perm:[1,0,3,2] {DPPALL}")
        I("v_max_f32_dpp", v(T), v(T), v(T), mod=f"quad_perm:[2,3,0,1] {DPPALL}")
        I("v_sub_f32", v(T), v(Mv), v(T)); I("v_exp_f32", v(C[h]), v(T))
        I("v_mul_f32", v(T), v(C[h]), v(Lv))
        I("v_add_f32_dpp", v(T), v(T), v(T), mod=f"quad_perm:[1,0,3,2] {DPPALL}")
        I("v_add_f32_dpp", v(T), v(T), v(T), mod=f"quad_perm:[2,3,0,1] {DPPALL}")
        I("v_rcp_f32", v(T), v(T))
        I("v_mul_f32", v(C[h]), v(C[h]), v(T))
    for k in range(9): I("v_mul_f32", v(R+k), v(C[0]), v(R+k))
    for k in range(9): I("v_fmac_f32", v(R+k), v(C[1]), v(R+12+k))
    for n in (8, 4, 2, 1):
        for k in range(9): I("v_add_f32_dpp", v(R+k), v(R+k), v(R+k), mod=f"row_ror:{n} {DPPALL}")
    for sw in ("v_permlane16_swap_b32", "v_permlane32_swap_b32"):
        for k in range(9): I("v_mov_b32", v(R+12+k), v(R+k))
        for k in range(9): I(sw, v(R+k), v(R+12+k))
        for k in range(9): I("v_add_f32", v(R+k), v(R+k), v(R+12+k))
    for k in range(1, 9):
        I("v_cmp_eq_u32", "vcc", k, v(LN)); I("v_cndmask_b32", v(R), v(R), v(R+k), "vcc")
    bfr1(R)
    I("v_mul_f32", v(R), v(R), v(G)); bfr1(R)
    I("v_lshlrev_b32", v(XV), 16, v(XV))
    I("v_add_f32", v(R), v(R), v(XV))
    I("v_cvt_pk_bf16_f32", v(R), v(R), v(R))

def k2():
    a.raw(f".globl {K2}\n.p2align 8\n.type {K2},@function\n{K2}:")
    a.vm = []
    I("s_cmp_ge_u32", "s2", 256); I("s_cbranch_scc1", "K2_END")
    I("s_load_dwordx2", "s[36:37]", "s[0:1]", 0)
    I("s_load_dwordx2", "s[56:57]", "s[0:1]", 80)
    I("s_load_dwordx2", "s[60:61]", "s[0:1]", 96)
    I("s_mov_b32", s(sMASK), "0xffff0000")
    I("s_lshr_b32", s(sB), "s2", 6); I("s_and_b32", s(sP), "s2", 63)
    I("v_mul_u32_u24", v(5), TSTRIDE, v(0))
    I("s_mul_i32", s(sT1), s(sP), 36)
    I("v_add_u32", v(6), s(sT1), v(5))
    I("v_lshlrev_b32", v(7), 2, v(0)); I("v_lshlrev_b32", v(8), 1, v(0))
    a.lgkm(0)
    I("s_mul_i32", s(sT0), s(sB), 64*TSTRIDE); srd(S_WS, P_WS, s(sT0), 64*TSTRIDE)
    R = 16
    I("buffer_load_dwordx4", vr(R), v(6), sr(S_WS), 0, mod="offen")
    I("buffer_load_dwordx4", vr(R+4), v(6), sr(S_WS), 0, mod="offen offset:16")
    I("buffer_load_dword", v(R+8), v(6), sr(S_WS), 0, mod="offen offset:32")
    I("buffer_load_dwordx4", vr(R+12), v(6), sr(S_WS), 0, mod="offen offset:2304")
    I("buffer_load_dwordx4", vr(R+16), v(6), sr(S_WS), 0, mod="offen offset:2320")
    I("buffer_load_dword", v(R+20), v(6), sr(S_WS), 0, mod="offen offset:2336")
    I("s_movk_i32", s(sT0), 4608)
    I("buffer_load_dwordx4", vr(R+24), v(5), sr(S_WS), s(sT0), mod="offen")
    I("s_mul_i32", s(sT0), "s2", 36); I("s_add_u32", s(sT0), s(sT0), G_OFF); srd(S_M2, P_WS, s(sT0), 36)
    I("buffer_load_dword", v(R+28), v(7), sr(S_M2), 0, mod="offen")
    I("s_mul_i32", s(sT0), "s2", 18); srd(S_X, P_X, s(sT0), 18); srd(S_M1, P_OUT, s(sT0), 18)
    I("buffer_load_ushort", v(R+29), v(8), sr(S_X), 0, mod="offen")
    I("s_waitcnt", "vmcnt(0)")
    fin_math(R, R+28, R+29, 0)
    I("s_mov_b64", "exec", 0x1ff)
    I("buffer_store_short", v(R), v(8), sr(S_M1), 0, mod="offen")
    a.label("K2_END")
    I("s_endpgm")

hdr = open('cdna_kernels/'+name+'.s.ref').read().split('\n')
top = [l for l in hdr if l.startswith(';') and '@launch' not in l and 'Override' not in l and 'grid=ceil' not in l]
out = "\n".join(top)+"\n"
if OPT['fused']:
    K1 = name+"_kernel"
    out += f"; @launch grid=(256,1,1) block=(512,1,1) lds={LDS_SIZE}\n"
else:
    out += f"; @launch kernel={K1} grid=(256,1,1) block=(512,1,1) lds={LDS_SIZE}\n"
    out += f"; @launch kernel={K2} grid=(256,1,1) block=(64,1,1) lds=0\n"
out += '.amdgcn_target "amdgcn-amd-amdhsa--gfx950"\n.text\n'
k1()
if not OPT['fused']: k2()
out += a.text()
out += '.section .rodata,"a"\n'
for kn, nv in (((K1, 256),) if OPT['fused'] else ((K1, 256), (K2, 64))):
    out += f""".p2align 6
.amdhsa_kernel {kn}
  .amdhsa_next_free_vgpr {nv}
  .amdhsa_next_free_sgpr 102
  .amdhsa_accum_offset {nv}
  .amdhsa_group_segment_fixed_size 0
  .amdhsa_kernarg_size 104
  .amdhsa_user_sgpr_count 2
  .amdhsa_user_sgpr_kernarg_segment_ptr 1
  .amdhsa_system_sgpr_workgroup_id_x 1
.end_amdhsa_kernel
"""
open(sys.argv[1], 'w').write(out)
print("instrs", a.ninstr, "bytes", len(out))
```

```python
import sys, struct
sys.path.insert(0, 'gen')
from asmlib import Asm

def f32(x): return "0x%08x" % struct.unpack('<I', struct.pack('<f', x))[0]
LOG2E = 1.4426950408889634
SCALE = 0.08838834764831845
C0 = 2*0.7978845608028654*LOG2E
C1 = C0*0.044715

OPT = dict(gate_per_tile=2, gate_start=1, wo_start=6, wo_per_tile=6, nt_w=True, fused=False, ts=0, tbar=0, nowo=0, nogate=0, nowq=0, pwq=1, pwo=1, bar=1, rot=1, kv0=4, kvstep=3, kvpre=12, lnpos=24, cred=2, o1=8, o2=17, o3=26, d0=2, dstep=2)
GOPT = [dict(wqpre=36, kvfirst=8, kvafter=0, cred=0, stage=0, lnpos=24, wo_start=4, wo_per_tile=4, gate_start=1, gate_per_tile=2, pendlate=1),
        dict(wqpre=6, kvfirst=32, kvafter=0, cred=0, stage=1, lnpos=5, wo_start=4, wo_per_tile=4, gate_start=1, gate_per_tile=2, pendlate=1)]
OPT['gbit'] = 7; OPT['kbit'] = 6; OPT['fused'] = 1; OPT['slp_l'] = 24; OPT['slp_s'] = 4; OPT['thr'] = 8; OPT['pst'] = 2; OPT['badx'] = 0; OPT['dbgts'] = 0; OPT['pk'] = 1; OPT['pv'] = 1
OPT['perm'] = 'i0i1w0w1w2n0n1n2n3s0s1'; OPT['rk'] = 0; OPT['rb'] = 0; OPT['rs'] = 0; OPT['vx'] = 0
for arg in sys.argv[2:]:
    k, v = arg.split('=')
    if k == 'perm': OPT[k] = v; continue
    if k[:2] in ('A_', 'B_'): GOPT[0 if k[0] == 'A' else 1][k[2:]] = int(v)
    else: OPT[k] = int(v)
STAGE = [0]

L_XN = 0; L_QS = 4608; L_GP = 8704; L_ML = 9216; L_ML2 = 9344; L_TK = 9408; L_TS = 15360
L_ST = 16384; L_TP = 16384; L_OP = 147456; L_QP = 147456
LDS_SIZE = 147456 + 8192
TSTRIDE = 5120
G_OFF = 0x200000

a = Asm()
I = a.I
S_K, S_V, S_WQ, S_WO, S_X, S_M1, S_WS, S_M2 = 4, 8, 12, 16, 20, 24, 28, 32
P_X, P_K, P_V, P_WQ, P_WO, P_W1, P_B1, P_W2, P_B2, P_OUT, P_DBG, P_WS = 36, 38, 40, 42, 44, 48, 50, 52, 54, 56, 58, 60
sKVH, sSPLIT, sB, sP, sW, sT0, sT1 = 62, 63, 80, 81, 82, 83, 84
sH = 64
sSELLO, sSELHI, sMASK, sSCALE, sLOG2E, sBP = 85, 86, 87, 88, 89, 90
sM3 = 92
sXCC, sITEM, sFLAG, sRO = 100, 101, 91, 96
def sr(n): return f"s[{n}:{n+3}]"
def vr(n, k=4): return f"v[{n}:{n+k-1}]"
def v(n): return f"v{n}"
def s(n): return f"s{n}"

def srd(dst, ptr, off, records):
    if off is None:
        I("s_mov_b32", s(dst), s(ptr)); I("s_mov_b32", s(dst+1), s(ptr+1))
    else:
        I("s_add_u32", s(dst), s(ptr), off); I("s_addc_u32", s(dst+1), s(ptr+1), 0)
    I("s_mov_b32", s(dst+2), records); I("s_mov_b32", s(dst+3), "0x20000")

DPPALL = "row_mask:0xf bank_mask:0xf"
def allred(op, x, t, rows=True):
    if rows:
        for n in (8, 4, 2, 1):
            I(op+"_dpp", v(x), v(x), v(x), mod=f"row_ror:{n} {DPPALL}")
    I("v_mov_b32", v(t), v(x)); I("v_permlane16_swap_b32", v(x), v(t)); I(op, v(x), v(x), v(t))
    I("v_mov_b32", v(t), v(x)); I("v_permlane32_swap_b32", v(x), v(t)); I(op, v(x), v(x), v(t))

def bfr1(x):
    I("v_cvt_pk_bf16_f32", v(x), v(x), v(x)); I("v_and_b32", v(x), s(sMASK), v(x))
def bfr2(x, y, w):
    I("v_cvt_pk_bf16_f32", v(w), v(x), v(y)); I("v_lshlrev_b32", v(x), 16, v(w)); I("v_and_b32", v(y), s(sMASK), v(w))

def layernorm(X, O, T):
    sm, tt, mean, var, den, rc = T[:6]
    I("v_add_f32", v(sm), v(X[0]), v(X[1]))
    for k in range(2, 9): I("v_add_f32", v(sm), v(sm), v(X[k]))
    allred("v_add_f32", sm, tt)
    I("v_mul_f32", v(mean), f32(1.0/576), v(sm))
    for k in range(9): I("v_sub_f32", v(O[k]), v(X[k]), v(mean))
    I("v_mul_f32", v(var), v(O[0]), v(O[0]))
    for k in range(1, 9): I("v_fmac_f32", v(var), v(O[k]), v(O[k]))
    allred("v_add_f32", var, tt)
    I("v_mul_f32", v(var), f32(1.0/576), v(var))
    bfr2(mean, var, tt)
    I("v_add_f32", v(var), f32(1e-5), v(var)); bfr1(var)
    I("v_sqrt_f32", v(den), v(var)); bfr1(den)
    I("v_rcp_f32", v(rc), v(den))
    for k in range(9): I("v_sub_f32", v(O[k]), v(X[k]), v(mean))
    for k in range(0, 8, 2): bfr2(O[k], O[k+1], tt)
    bfr1(O[8])
    for k in range(9):
        I("v_mul_f32", v(sm), v(O[k]), v(rc))
        I("v_fma_f32", v(tt), "-"+v(sm), v(den), v(O[k]))
        I("v_fma_f32", v(O[k]), v(tt), v(rc), v(sm))
    for k in range(0, 8, 2): bfr2(O[k], O[k+1], tt)
    bfr1(O[8])

vTID, vLANE, vKOFF, vM, vL = 0, 1, 2, 3, 4
vT = [5, 6, 7]
vQ = 8
vACC = 16
vS = 32
vP = 40
BIG = 48
KB = [192, 224]; VB = [208, 240]
NT = "nt"
POLS = ["", "nt", "sc1", "sc0", "sc0 sc1", "sc1 nt", "sc0 nt", "sc0 sc1 nt"]
WMOD = POLS[OPT['pwq']]; WOMOD = POLS[OPT['pwo']]
KVP = {'K': POLS[OPT['pk']], 'V': POLS[OPT['pv']]}

PERM = [OPT['perm'][2*j:2*j+2] for j in range(11)]
assert sorted(PERM) == sorted(['i0','i1','w0','w1','w2','n0','n1','n2','n3','s0','s1'])
POS = {p: 10+j for j, p in enumerate(PERM)}
ROT = OPT['rk'] or OPT['rb'] or OPT['rs']
def place(sym, val, nb): return sum(((val >> j) & 1) << POS[f"{sym}{j}"] for j in range(nb))
def taddr(n, i):
    ci = place('i', i, 2); imm = ci & 0xC00
    return place('n', n, 4) | (ci & ~0xC00), imm
LASTSO = [None]
def set_so(so):
    if LASTSO[0] == so: return
    LASTSO[0] = so
    if ROT: I("s_xor_b32", s(sT0), "s3", so)
    else: I("s_mov_b32", s(sT0), so)
def splace(dst, src, sym, nb, tmp):
    for j in range(nb):
        I("s_bfe_u32", s(tmp), s(src), (1 << 16) | j); I("s_lshl_b32", s(tmp), s(tmp), POS[f"{sym}{j}"])
        if j == 0: I("s_mov_b32", dst, s(tmp))
        else: I("s_or_b32", dst, dst, s(tmp))
def tile_regs(kind, n):
    if STAGE[0] and n in (2, 3): return BIG + 32*(n-2) + (0 if kind == 'K' else 16)
    return (KB if kind == 'K' else VB)[n & 1]
def issue_tile_lds(kind, n):
    srdn = S_K if kind == 'K' else S_V
    q = 2*(n-2) + (0 if kind == 'K' else 1)
    I("s_lshl_b32", s(sT1), s(sW), 14); I("s_add_u32", s(sT1), s(sT1), L_ST+q*4096)
    I("s_mov_b32", "m0", s(sT1))
    I("s_mov_b32", s(sT0), n*32768)
    for i in range(4):
        a.raw(f"  buffer_load_dwordx4 {v(vKOFF)}, {sr(srdn)}, {s(sT0)} offen offset:{i*1024} {KVP[kind]} lds"); a.pos += 1
        a.vm_issue(f"{kind}{n}")
def room():
    if len(a.vm) >= 62:
        I("s_waitcnt", f"vmcnt({len(a.vm)-4})"); a.vm = a.vm[4:]
def issue_one(kind, n, i):
    srdn = S_K if kind == 'K' else S_V
    room()
    so, imm = taddr(n, i); LASTSO[0] = None
    if STAGE[0] and n in (2, 3):
        q = 2*(n-2) + (0 if kind == 'K' else 1)
        I("s_lshl_b32", s(sT1), s(sW), 14); I("s_add_u32", s(sT1), s(sT1), L_ST+q*4096+i*1024-imm)
        I("s_mov_b32", "m0", s(sT1))
        set_so(so)
        a.raw(f"  buffer_load_dwordx4 {v(vKOFF)}, {sr(srdn)}, {s(sT0)} offen offset:{imm} {KVP[kind]} lds"); a.pos += 1
    else:
        base = tile_regs(kind, n)
        set_so(so)
        I("buffer_load_dwordx4", vr(base+4*i), v(vKOFF), sr(srdn), s(sT0), mod=f"offen offset:{imm} {KVP[kind]}")
    a.vm_issue(f"{kind}{n}")
def read_tile_lds(kind, n):
    q = 2*(n-2) + (0 if kind == 'K' else 1)
    base = tile_regs(kind, n)
    for i in range(4):
        I("ds_read_b128", vr(base+4*i), v(7), mod=f"offset:{q*4096+i*1024}")
def issue_tile(kind, n):
    base = tile_regs(kind, n)
    srdn = S_K if kind == 'K' else S_V
    LASTSO[0] = None
    for i in range(4):
        so, imm = taddr(n, i); set_so(so)
        I("buffer_load_dwordx4", vr(base+4*i), v(vKOFF), sr(srdn), s(sT0), mod=f"offen offset:{imm} {KVP[kind]}")
        a.vm_issue(f"{kind}{n}")

ts_n = [0]
def stamp(ra, rb):
    if not OPT['ts']: return
    I("s_memrealtime", "s[98:99]"); a.lgkm(0)
    I("s_lshl_b32", "s99", s(sW), 7)
    I("v_mov_b32", v(ra), "s98"); I("v_mov_b32", v(rb), "s99")
    I("ds_write_b32", v(rb), v(ra), mod=f"offset:{L_TS+4*ts_n[0]}")
    ts_n[0] += 1
def stamp_dump():
    if not OPT['ts']: return
    I("s_mov_b64", "exec", -1)
    I("s_lshl_b32", "s99", s(sW), 7)
    I("v_and_b32", v(5), 31, v(vLANE)); I("v_lshlrev_b32", v(5), 2, v(5)); I("v_add_u32", v(5), "s99", v(5))
    a.lgkm(0)
    I("ds_read_b32", v(6), v(5), mod=f"offset:{L_TS}")
    I("s_lshl_b32", s(sT0), "s2", 10); I("s_add_u32", s(sT0), s(sT0), 0x400000)
    srd(S_M1, P_WS, s(sT0), 1024)
    a.lgkm(0)
    I("buffer_store_dword", v(6), v(5), sr(S_M1), 0, mod="offen")

name = "recurrent_scan__gqa_block_cached__mixer_token_mlp__decode"
K1 = "attn_main_kernel"; K2 = "attn_fin_kernel"

def set_wq():
    I("s_lshl_b32", s(sT0), s(sKVH), 9)
    I("s_sub_u32", s(sT1), 576*8192, s(sT0))
    I("s_add_u32", s(S_WQ), s(P_WQ), s(sT0)); I("s_addc_u32", s(S_WQ+1), s(P_WQ+1), 0)
    I("s_mov_b32", s(S_WQ+2), s(sT1)); I("s_mov_b32", s(S_WQ+3), "0x20000")
def decode():
    I("s_lshr_b32", s(sKVH), s(sITEM), 4); I("s_and_b32", s(sKVH), s(sKVH), 15)
    I("s_and_b32", s(sSPLIT), s(sITEM), 3)
    I("s_bfe_u32", s(sB), s(sITEM), (2 << 16) | 2)
    I("s_lshl_b32", s(sP), s(sKVH), 2); I("s_or_b32", s(sP), s(sP), s(sSPLIT))
    I("s_lshl_b32", s(sBP), s(sB), 6); I("s_or_b32", s(sBP), s(sBP), s(sP))
    splace("s3", sSPLIT, 's', 2, sT0)
    I("s_lshr_b32", s(sT0), s(sBP), 2); I("s_lshl_b32", s(sT0), s(sT0), 21); I("s_add_u32", s(sT0), s(sT0), "s3")
    I("s_sub_u32", s(sT1), 1 << 21, "s3")
    srd(S_K, P_K, s(sT0), s(sT1)); srd(S_V, P_V, s(sT0), s(sT1))
    if ROT:
        I("s_mul_i32", s(sT1), s(sKVH), OPT['rk']); I("s_mul_i32", s(sT0), s(sB), OPT['rb']); I("s_add_u32", s(sT1), s(sT1), s(sT0))
        I("s_mul_i32", s(sT0), s(sSPLIT), OPT['rs']); I("s_add_u32", s(sT1), s(sT1), s(sT0))
        splace("s3", sT1, 'n', 4, sT0)
    I("s_mul_i32", s(sT0), s(sBP), TSTRIDE); srd(S_WS, P_WS, s(sT0), TSTRIDE)
def wq_load(i):
    if OPT['nowq']: return
    room()
    I("s_mov_b32", s(sRO), i*8192)
    I("buffer_load_dwordx4", vr(BIG+4*i), v(7), sr(S_WQ), s(sRO), mod=f"offen {WMOD}"); a.vm_issue(f"wq{i}")
STMOD = POLS[OPT['pst']]

def k1():
    a.raw(f".globl {K1}\n.p2align 8\n.type {K1},@function\n{K1}:")
    I("s_cmp_ge_u32", "s2", 256); I("s_cbranch_scc1", "K1_END")
    I("s_load_dwordx16", "s[36:51]", "s[0:1]", 0)
    I("s_load_dwordx8", "s[52:59]", "s[0:1]", 64)
    I("s_load_dwordx2", "s[60:61]", "s[0:1]", 96)
    I("s_getreg_b32", s(sXCC), "hwreg(HW_REG_XCC_ID, 0, 4)"); I("s_and_b32", s(sXCC), s(sXCC), 7)
    if OPT['badx'] == 1: I("s_mov_b32", s(sXCC), 3)
    if OPT['badx'] == 2: I("s_and_b32", s(sXCC), s(sXCC), 5)
    I("s_lshl_b32", s(sKVH), s(sXCC), 1)
    I("s_bfe_u32", s(sT0), "s2", (1 << 16) | OPT['kbit']); I("s_or_b32", s(sKVH), s(sKVH), s(sT0))
    I("s_mov_b32", s(sSELLO), "0x05040100"); I("s_mov_b32", s(sSELHI), "0x07060302")
    I("s_mov_b32", s(sMASK), "0xffff0000"); I("s_mov_b32", s(sSCALE), f32(SCALE)); I("s_mov_b32", s(sLOG2E), f32(LOG2E))
    I("v_and_b32", v(vLANE), 63, v(vTID))
    I("v_lshrrev_b32", v(5), 6, v(vTID))
    I("v_readfirstlane_b32", s(sW), v(5))
    I("v_lshlrev_b32", v(vKOFF), 4, v(vLANE))
    for j in range(3):
        I("v_bfe_u32", v(6), v(5), j, 1); I("v_lshl_add_u32", v(vKOFF), v(6), POS[f"w{j}"], v(vKOFF))
    I("v_mul_u32_u24", v(6), 18, v(vLANE))
    I("v_lshrrev_b32", v(7), 5, v(vTID))
    I("v_mul_u32_u24", v(7), 36*8192, v(7))
    I("v_and_b32", v(40), 31, v(vTID)); I("v_lshl_add_u32", v(7), v(40), 4, v(7))
    a.lgkm(0)
    stamp(40,41)
    I("s_cmp_eq_u32", s(sW), 7); I("s_cbranch_scc1", "K1_TK")
    I("s_and_b32", s(sT0), s(sW), 3)
    I("s_mul_i32", s(sT0), s(sT0), 1152); srd(S_X, P_X, s(sT0), 1152)
    X = list(range(16, 25))
    for k in range(9):
        I("buffer_load_ushort", v(X[k]), v(6), sr(S_X), 0, mod=f"offen offset:{2*k}"); a.vm_issue("x")
    I("v_add_u32", v(6), s(sT0), v(6))
    set_wq()
    I("s_bitcmp1_b32", "s2", OPT['gbit']); I("s_cbranch_scc1", "K1_GB")
    import copy
    save = (copy.deepcopy(a.vm), ts_n[0])
    body(0, X)
    a.label("K1_GB")
    a.vm = save[0]; ts_n[0] = save[1]
    body(1, X)
    a.label("K1_TK")
    a.vm = []
    srd(S_M2, P_DBG, None, 256)
    I("s_mov_b64", "exec", 1)
    I("s_mov_b32", s(sFLAG), 0)
    if OPT['dbgts']:
        I("s_memrealtime", "s[98:99]"); a.lgkm(0)
        I("s_not_b32", "s98", "s98"); I("v_mov_b32", v(42), "s98"); I("v_mov_b32", v(43), 16)
        I("buffer_atomic_umax", v(42), v(43), sr(S_M2), 0, mod="offen")
    a.label("K1_TKL")
    I("s_lshr_b32", s(sT0), s(sKVH), 1); I("s_lshl_b32", s(sT0), s(sT0), 5)
    I("s_and_b32", s(sT1), s(sKVH), 1); I("s_lshl_b32", s(sT1), s(sT1), 2); I("s_add_u32", s(sT0), s(sT0), s(sT1))
    I("v_mov_b32", v(41), s(sT0)); I("v_mov_b32", v(40), 1)
    I("buffer_atomic_add", v(40), v(41), sr(S_M2), 0, mod="offen sc0")
    I("s_waitcnt", "vmcnt(0)")
    I("v_readfirstlane_b32", s(sT0), v(40))
    a.nop(2)
    I("s_cmp_lt_u32", s(sT0), 16); I("s_cbranch_scc1", "K1_TKOK")
    I("s_add_u32", s(sKVH), s(sKVH), 1); I("s_and_b32", s(sKVH), s(sKVH), 15)
    I("s_add_u32", s(sFLAG), s(sFLAG), 1); I("s_cmp_lt_u32", s(sFLAG), 64); I("s_cbranch_scc1", "K1_TKL")
    I("s_and_b32", s(sT0), s(sT0), 15)
    a.label("K1_TKOK")
    I("s_lshl_b32", s(sITEM), s(sKVH), 4); I("s_or_b32", s(sITEM), s(sITEM), s(sT0))
    I("v_mov_b32", v(40), s(sITEM)); I("v_mov_b32", v(41), 0)
    I("ds_write_b32", v(41), v(40), mod=f"offset:{L_TK}")
    I("s_mov_b64", "exec", -1)
    a.lgkm(0)
    I("s_barrier")
    decode()
    if OPT['fused']:
        for k in range(4): I("v_mov_b32", v(40+k), -1)
        I("v_lshlrev_b32", v(5), 4, v(vLANE))
        for k in range(4): I("buffer_store_dwordx4", vr(40), v(5), sr(S_WS), 0, mod=f"offen offset:{1024*k} {STMOD}")
        I("s_movk_i32", s(sT0), 4096)
        I("buffer_store_dwordx4", vr(40), v(5), sr(S_WS), s(sT0), mod=f"offen {STMOD}")
        I("s_lshl_b32", s(sT0), s(sXCC), 5); I("s_add_u32", s(sT0), s(sT0), 8)
        I("v_mov_b32", v(45), s(sT0)); I("v_mov_b32", v(44), 1)
        I("s_waitcnt", "vmcnt(0)")
        I("s_mov_b64", "exec", 1)
        I("buffer_atomic_add", v(44), v(45), sr(S_M2), 0, mod="offen")
        I("s_mov_b64", "exec", -1)
    I("s_bitcmp1_b32", "s2", OPT['gbit']); I("s_cbranch_scc1", "K1_RQ2B")
    I("s_branch", "K1_RQ2A")
    a.label("K1_END")
    I("s_endpgm")

def body(G, X):
    O = dict(OPT); O.update(GOPT[G]); STAGE[0] = O['stage']
    sfx = "AB"[G]
    tl = (('K', 0), ('V', 0), ('K', 1), ('V', 1), ('K', 2), ('V', 2), ('K', 3), ('V', 3)) if O['stage'] else (('K', 0), ('V', 0), ('K', 1), ('V', 1))
    pend = [(k, n, i) for (k, n) in tl for i in range(4)]
    XN = list(range(25, 34)); T = list(range(34, 40))
    def do_ln():
        stamp(40,41)
        a.vm_wait("x")
        stamp(40,41)
        for k in range(9): I("v_lshlrev_b32", v(X[k]), 16, v(X[k]))
        layernorm(X, XN, T)
        for k in range(9):
            I("ds_write_b16_d16_hi", v(6), v(XN[k]), mod=f"offset:{L_XN+2*k}")
    if O['lnpos'] < 0: do_ln()
    for i in range(O['wqpre']):
        wq_load(i)
        if i == O['lnpos']: do_ln()
    assert O['lnpos'] < O['wqpre']
    a.lgkm(0)
    I("s_barrier")
    I("v_mov_b32", v(41), 0)
    I("ds_read_b32", v(40), v(41), mod=f"offset:{L_TK}")
    a.lgkm(0)
    I("v_readfirstlane_b32", s(sITEM), v(40))
    I("s_mov_b32", s(sFLAG), s(sKVH))
    a.nop(2)
    decode()
    I("s_cmp_eq_u32", s(sFLAG), s(sKVH)); I("s_cbranch_scc1", "K1_GO"+sfx)
    I("s_waitcnt", "vmcnt(0)")
    a.label("K1_RQ2"+sfx)
    import copy
    vmsave = copy.deepcopy(a.vm)
    a.vm = []
    set_wq()
    for i in range(O['wqpre']): wq_load(i)
    if not OPT['nowq']: assert a.vm == vmsave, (a.vm, vmsave)
    a.label("K1_GO"+sfx)
    stamp(40,41)
    for _ in range(O['kvfirst']):
        if pend: issue_one(*pend.pop(0))
    for i in range(O['wqpre'], 36): wq_load(i)
    for _ in range(O['kvafter']):
        if pend: issue_one(*pend.pop(0))
    I("s_mul_i32", s(sT0), s(sKVH), 256*1152); srd(S_WO, P_WO, s(sT0), 256*1152)
    srd(S_M1, P_W1, None, 9216); srd(S_M2, P_B1, None, 9216); srd(sM3, P_W2, None, 9216)
    I("v_lshrrev_b32", v(5), 5, v(vTID)); I("v_mul_u32_u24", v(5), 72, v(5))
    I("s_mul_i32", s(sT0), s(sB), 1152); I("v_add_u32", v(5), s(sT0), v(5))
    XP = 16
    for k in range(9):
        I("ds_read_b64", vr(XP+2*k, 2), v(5), mod=f"offset:{L_XN+8*k}")
    QA = 34
    stamp(40,41)
    PT = [42, 43, 44, 45, 46, 47]
    a.lgkm(0)
    for ip in range(18):
        a.vm_wait(f"wq{2*ip+1}")
        for _ in range(O['cred']):
            if pend: issue_one(*pend.pop(0))
        w0 = BIG+8*ip; w1 = w0+4
        for half in range(2):
            for r in (2*half, 2*half+1):
                t0, t1 = PT[2*(r & 1)], PT[2*(r & 1)+1]
                I("v_perm_b32", v(t0), v(w1+r), v(w0+r), s(sSELLO))
                I("v_perm_b32", v(t1), v(w1+r), v(w0+r), s(sSELHI))
            for r in (2*half, 2*half+1):
                t0, t1 = PT[2*(r & 1)], PT[2*(r & 1)+1]
                if ip == 0:
                    I("v_dot2_f32_bf16", v(QA+2*r), v(t0), v(XP+ip), 0)
                    I("v_dot2_f32_bf16", v(QA+2*r+1), v(t1), v(XP+ip), 0)
                else:
                    I("v_dot2_f32_bf16", v(QA+2*r), v(t0), v(XP+ip), v(QA+2*r))
                    I("v_dot2_f32_bf16", v(QA+2*r+1), v(t1), v(XP+ip), v(QA+2*r+1))
    stamp(5,6)
    GR = 128
    gW1r, gB1r, gW2r = GR, GR+4, GR+8
    gW1x, gB1x, gW2x = GR+12, GR+13, GR+14
    I("v_lshlrev_b32", v(5), 4, v(vTID)); I("v_lshlrev_b32", v(6), 1, v(vTID))
    for (dst, dx, sd) in ((gW1r, gW1x, S_M1), (gB1r, gB1x, S_M2), (gW2r, gW2x, sM3)):
        I("buffer_load_dwordx4", vr(dst), v(5), sr(sd), 0, mod="offen"); a.vm_issue("gw")
        I("s_movk_i32", s(sT0), 8192)
        I("buffer_load_ushort", v(dx), v(6), sr(sd), s(sT0), mod="offen"); a.vm_issue("gw")
    for k in range(4):
        I("v_permlane32_swap_b32", v(QA+k), v(QA+k+4))
    for k in range(4):
        I("v_add_f32", v(QA+k), v(QA+k), v(QA+k+4))
    I("v_and_b32", v(5), 31, v(vLANE)); I("v_lshlrev_b32", v(5), 5, v(5))
    I("v_lshrrev_b32", v(6), 5, v(vLANE)); I("v_lshl_add_u32", v(5), v(6), 4, v(5))
    I("s_lshl_b32", s(sT0), s(sW), 10); I("s_add_u32", s(sT0), s(sT0), L_QP); I("v_add_u32", v(5), s(sT0), v(5))
    I("ds_write_b128", v(5), vr(QA))
    if not O['pendlate']:
        while pend: issue_one(*pend.pop(0))
    a.lgkm(0)
    I("s_barrier")
    I("v_lshlrev_b32", v(5), 4, v(vLANE)); I("v_add_u32", v(5), L_QP, v(5))
    for w in range(8):
        I("ds_read_b128", vr(BIG+4*w), v(5), mod=f"offset:{1024*w}")
    a.lgkm(0)
    for st in (4, 2, 1):
        for w in range(st):
            for k in range(4):
                I("v_add_f32", v(BIG+4*w+k), v(BIG+4*w+k), v(BIG+4*(w+st)+k))
    I("v_cvt_pk_bf16_f32", v(BIG), v(BIG), v(BIG+1)); I("v_cvt_pk_bf16_f32", v(BIG+1), v(BIG+2), v(BIG+3))
    I("s_lshl_b32", s(sT0), s(sW), 9)
    I("v_lshlrev_b32", v(5), 3, v(vLANE)); I("v_add_u32", v(5), s(sT0), v(5))
    I("ds_write_b64", v(5), vr(BIG, 2), mod=f"offset:{L_QS}")
    I("v_and_b32", v(5), 15, v(vLANE)); I("v_lshlrev_b32", v(5), 4, v(5)); I("v_add_u32", v(5), s(sT0), v(5))
    a.lgkm(0)
    I("ds_read_b128", vr(vQ), v(5), mod=f"offset:{L_QS}")
    I("ds_read_b128", vr(vQ+4), v(5), mod=f"offset:{L_QS+256}")
    while pend: issue_one(*pend.pop(0))
    for k in range(16): I("v_mov_b32", v(vACC+k), 0)
    I("v_mov_b32", v(vM), f32(-1e30)); I("v_mov_b32", v(vL), 0)
    a.lgkm(0)

    stamp(5,6)
    gW1f = GR+16; gB1f = GR+25; gY = GR+34; gT = GR+43
    vC1 = GR+15
    def gate_prep():
        XX = [gW1f+i for i in range(9)]; HH = [gB1f+i for i in range(9)]
        I("v_mul_u32_u24", v(gT+12), 18, v(vLANE))
        I("s_mul_i32", s(sT0), s(sB), 1152); I("v_add_u32", v(gT+12), s(sT0), v(gT+12))
        for k in range(9): I("v_mov_b32", v(XX[k]), 0)
        for k in range(9): I("ds_read_u16_d16_hi", v(XX[k]), v(gT+12), mod=f"offset:{L_XN+2*k}")
        a.lgkm(0)
        layernorm(XX, HH, [gT+i for i in range(6)])
        for k in range(9): I("v_readlane_b32", s(sH+k), v(HH[k]), s(sP))
        a.vm_wait("gw")
        I("v_mov_b32", v(vC1), f32(C1))
        for q in range(4):
            I("v_lshlrev_b32", v(gW1f+2*q), 16, v(gW1r+q)); I("v_and_b32", v(gW1f+2*q+1), s(sMASK), v(gW1r+q))
            I("v_lshlrev_b32", v(gB1f+2*q), 16, v(gB1r+q)); I("v_and_b32", v(gB1f+2*q+1), s(sMASK), v(gB1r+q))
        I("v_lshlrev_b32", v(gW1f+8), 16, v(gW1x)); I("v_lshlrev_b32", v(gB1f+8), 16, v(gB1x))
        I("v_lshlrev_b32", v(gW2x), 16, v(gW2x))
    def gelu_list(U, TT):
        for u, t in zip(U, TT): I("v_mul_f32", v(t), v(u), v(u))
        for u, t in zip(U, TT): I("v_fmaak_f32", v(t), v(t), v(vC1), f32(C0))
        for u, t in zip(U, TT): I("v_mul_f32", v(t), v(t), v(u))
        for u, t in zip(U, TT): I("v_exp_f32", v(t), "-"+v(t))
        for u, t in zip(U, TT): I("v_add_f32", v(t), 1.0, v(t))
        for u, t in zip(U, TT): I("v_rcp_f32", v(t), v(t))
        for u, t in zip(U, TT): I("v_mul_f32", v(u), v(u), v(t))
    def gate_col(k):
        if OPT['nogate']: return
        for hh in range(2):
            U = [gT+i for i in range(4)]; TT = [gT+4+i for i in range(4)]; W = [gT+8, gT+9]
            for i in range(4): I("v_mul_f32", v(U[i]), s(sH+k), v(gW1f+4*hh+i))
            bfr2(U[0], U[1], W[0]); bfr2(U[2], U[3], W[1])
            for i in range(4): I("v_add_f32", v(U[i]), v(U[i]), v(gB1f+4*hh+i))
            bfr2(U[0], U[1], W[0]); bfr2(U[2], U[3], W[1])
            gelu_list(U, TT)
            I("v_cvt_pk_bf16_f32", v(W[0]), v(U[0]), v(U[1])); I("v_cvt_pk_bf16_f32", v(W[1]), v(U[2]), v(U[3]))
            I("v_dot2_f32_bf16", v(gY+k), v(W[0]), v(gW2r+2*hh), 0 if hh == 0 else v(gY+k))
            I("v_dot2_f32_bf16", v(gY+k), v(W[1]), v(gW2r+2*hh+1), v(gY+k))
    def gate_fin():
        for grp in ((0, 1, 2, 3), (4, 5, 6, 7), (8,)):
            n = len(grp)
            U = [gT+i for i in range(n)]; TT = [gT+4+i for i in range(n)]; W = [gT+8, gT+9]
            for i, k in enumerate(grp): I("v_mul_f32", v(U[i]), s(sH+k), v(gW1f+8))
            def rnd():
                if n == 4: bfr2(U[0], U[1], W[0]); bfr2(U[2], U[3], W[1])
                else: bfr1(U[0])
            rnd()
            for i in range(n): I("v_add_f32", v(U[i]), v(U[i]), v(gB1f+8))
            rnd()
            gelu_list(U, TT)
            rnd()
            for i, k in enumerate(grp): I("v_fmac_f32", v(gY+k), v(U[i]), v(gW2x))
        for n in (8, 4, 2, 1):
            for k in range(9):
                I("v_add_f32_dpp", v(gY+k), v(gY+k), v(gY+k), mod=f"row_ror:{n} {DPPALL}")
        for (sw) in ("v_permlane16_swap_b32", "v_permlane32_swap_b32"):
            for k in range(9): I("v_mov_b32", v(gT+k), v(gY+k))
            for k in range(9): I(sw, v(gY+k), v(gT+k))
            for k in range(9): I("v_add_f32", v(gY+k), v(gY+k), v(gT+k))
        I("s_lshl_b32", s(sT0), s(sW), 6); I("v_mov_b32", v(gT), s(sT0))
        for k in range(9):
            I("ds_write_b32", v(gT), v(gY+k), mod=f"offset:{L_GP+4*k}")

    wo_loads = [('m', k) for k in range(32)] + [('l', q) for q in range(4)]
    vWOM, vWOL = 46, 47
    def wo_addr():
        I("s_mul_i32", s(sT0), s(sW), 32*1152)
        I("v_lshlrev_b32", v(vWOM), 4, v(vLANE)); I("v_add_u32", v(vWOM), s(sT0), v(vWOM))
        I("v_lshrrev_b32", v(5), 3, v(vLANE)); I("v_mul_u32_u24", v(5), 4*1152, v(5))
        I("v_and_b32", v(6), 7, v(vLANE)); I("v_lshl_add_u32", v(5), v(6), 4, v(5))
        I("s_add_u32", s(sT0), s(sT0), 1024); I("v_add_u32", v(vWOL), s(sT0), v(5))
    def wo_issue(idx):
        kind, k = wo_loads[idx]
        if OPT['nowo']: return
        room()
        if kind == 'm':
            I("s_mov_b32", s(sT1), (k//3)*3456)
            I("buffer_load_dwordx4", vr(BIG+4*k), v(vWOM), sr(S_WO), s(sT1), mod=f"offen offset:{(k%3)*1152} {WOMOD}")
        else:
            I("buffer_load_dwordx4", vr(BIG+128+4*k), v(vWOL), sr(S_WO), 0, mod=f"offen offset:{k*1152} {WOMOD}")
        a.vm_issue(f"wo{idx}")
    WP = {}
    free = [45]
    def wo_perm(pair):
        a.vm_wait(f"wo{2*pair+1}")
        r0 = BIG+8*pair; r1 = r0+4
        for r in range(4):
            f = free.pop()
            I("v_perm_b32", v(f), v(r1+r), v(r0+r), s(sSELLO))
            I("v_perm_b32", v(r1+r), v(r1+r), v(r0+r), s(sSELHI))
            WP[(pair, 2*r)] = f; WP[(pair, 2*r+1)] = r1+r
            free.append(r0+r)
    wo_addr()

    gate_next = 0; wo_next = 0; perm_next = 0; wo_hist = {}
    gate_done = False
    PTm = [40, 41, 42, 43]; vPP = 44
    for n in range(16):
        kb = tile_regs('K', n); vb = tile_regs('V', n)
        if OPT['tbar'] and n >= 4 and n % OPT['tbar'] == 0: I("s_barrier")
        a.vm_wait(f"K{n}")
        stamp(5,6)
        if n == 15:
            srd(S_M1, P_B2, None, 2)
            I("v_mov_b32", v(7), 0)
            I("buffer_load_ushort", v(192), v(7), sr(S_M1), 0, mod="offen"); a.vm_issue("misc")
            if OPT['fused']:
                I("s_mul_i32", s(sT0), s(sBP), 18); srd(S_X, P_X, s(sT0), 18)
                I("v_lshlrev_b32", v(196), 1, v(vLANE))
                I("buffer_load_ushort", v(193), v(196), sr(S_X), 0, mod="offen"); a.vm_issue("misc")
                srd(S_M2, P_DBG, None, 256)
                I("v_lshlrev_b32", v(195), 2, v(vLANE))
                I("buffer_load_dword", v(194), v(195), sr(S_M2), 0, mod="offen sc1"); a.vm_issue("misc")
        nxt = (n+4 if n < 2 else (None if n < 4 else n+2)) if O['stage'] else n+2
        if nxt is not None and nxt >= 16: nxt = None
        if O['stage'] and n in (2, 3):
            I("s_lshl_b32", s(sT1), s(sW), 14); I("s_add_u32", s(sT1), s(sT1), L_ST)
            I("v_lshlrev_b32", v(7), 4, v(vLANE)); I("v_add_u32", v(7), s(sT1), v(7))
            read_tile_lds('K', n)
            a.vm_wait(f"V{n}")
            read_tile_lds('V', n)
            a.lgkm(4)
        for r in range(4):
            for i in range(4):
                for h in range(2):
                    d = vS+4*h+i
                    I("v_dot2_f32_bf16", v(d), v(kb+4*i+r), v(vQ+4*h+r), 0 if r == 0 else v(d))
        if nxt is not None: issue_tile('K', nxt)
        for h in range(2):
            for e in range(2):
                d = vS+4*h+e
                I("v_add_f32_dpp", v(d), v(d), v(d), mod="row_ror:8 row_mask:0xf bank_mask:0x3")
        for h in range(2):
            for e in range(2):
                d = vS+4*h+e; sft = vS+4*h+2+e
                I("v_add_f32_dpp", v(d), v(sft), v(sft), mod="row_ror:8 row_mask:0xf bank_mask:0xc")
        for e in range(2):
            d = vS+e
            I("v_add_f32_dpp", v(d), v(d), v(d), mod="row_shl:4 row_mask:0xf bank_mask:0x5")
        for e in range(2):
            d = vS+e; sft = vS+4+e
            I("v_add_f32_dpp", v(d), v(sft), v(sft), mod="row_shr:4 row_mask:0xf bank_mask:0xa")
        for qp in ("[1,0,3,2]", "[2,3,0,1]"):
            for e in range(2):
                d = vS+e
                I("v_add_f32_dpp", v(d), v(d), v(d), mod=f"quad_perm:{qp} {DPPALL}")
        A, B, W, TM, AL = vS, vS+1, vS+2, vS+3, vS+4
        bfr2(A, B, W)
        I("v_mul_f32", v(A), s(sSCALE), v(A)); I("v_mul_f32", v(B), s(sSCALE), v(B))
        bfr2(A, B, W)
        I("v_max_f32", v(TM), v(A), v(B))
        I("v_max_f32_dpp", v(TM), v(TM), v(TM), mod=f"row_ror:8 {DPPALL}")
        I("v_mul_f32", v(TM), s(sLOG2E), v(TM))
        I("v_max_f32", v(TM), v(TM), v(vM))
        I("v_sub_f32", v(AL), v(vM), v(TM))
        I("v_fma_f32", v(A), v(A), s(sLOG2E), "-"+v(TM))
        I("v_fma_f32", v(B), v(B), s(sLOG2E), "-"+v(TM))
        I("v_exp_f32", v(AL), v(AL)); I("v_exp_f32", v(A), v(A)); I("v_exp_f32", v(B), v(B))
        I("v_mov_b32", v(vM), v(TM))
        I("v_fma_f32", v(vL), v(vL), v(AL), v(A))
        I("v_cvt_pk_bf16_f32", v(vPP), v(A), v(B))
        I("v_add_f32", v(vL), v(vL), v(B))
        for h in range(2):
            for k in range(8):
                d = vACC+8*h+k
                I("v_mul_f32_dpp", v(d), v(AL), v(d), mod=f"row_newbcast:{4*h} {DPPALL}")
        a.vm_wait(f"V{n}")
        if O['stage'] and n in (2, 3): a.lgkm(0)
        for j in range(2):
            for rr in range(2):
                for r in (2*rr, 2*rr+1):
                    t0, t1 = PTm[2*(r & 1)], PTm[2*(r & 1)+1]
                    I("v_perm_b32", v(t0), v(vb+4*(2*j+1)+r), v(vb+4*(2*j)+r), s(sSELLO))
                    I("v_perm_b32", v(t1), v(vb+4*(2*j+1)+r), v(vb+4*(2*j)+r), s(sSELHI))
                for h in range(2):
                    for r in (2*rr, 2*rr+1):
                        t0, t1 = PTm[2*(r & 1)], PTm[2*(r & 1)+1]
                        I("v_dot2c_f32_bf16_dpp", v(vACC+8*h+2*r), v(vPP), v(t0), mod=f"row_newbcast:{4*(2*j+h)} {DPPALL}")
                        I("v_dot2c_f32_bf16_dpp", v(vACC+8*h+2*r+1), v(vPP), v(t1), mod=f"row_newbcast:{4*(2*j+h)} {DPPALL}")
        if nxt is not None: issue_tile('V', nxt)
        if n >= O['gate_start'] and not gate_done:
            if gate_next == 0: gate_prep()
            for _ in range(O['gate_per_tile']):
                if gate_next < 9:
                    gate_col(gate_next); gate_next += 1
            if gate_next == 9:
                gate_fin(); gate_done = True
        if n >= O['wo_start']:
            lim = wo_hist.get(n-2, 0)
            while perm_next < 18 and 2*perm_next+1 < lim:
                wo_perm(perm_next); perm_next += 1
            for _ in range(O['wo_per_tile']):
                if wo_next < 36 and (wo_next < 20 or gate_done) and (wo_next >= 16 or n >= 3 or not O['stage']):
                    wo_issue(wo_next); wo_next += 1
            wo_hist[n] = wo_next
            if n == 15:
                while perm_next < 18:
                    wo_perm(perm_next); perm_next += 1
    assert wo_next == 36 and perm_next == 18, (wo_next, perm_next)

    stamp(5,6)
    T0, T1, T2 = vS, vS+1, vS+2
    I("v_add_f32_dpp", v(vL), v(vL), v(vL), mod=f"row_ror:8 {DPPALL}")
    I("v_mov_b32", v(T0), v(vM))
    allred("v_max_f32", T0, T1, rows=False)
    I("v_sub_f32", v(T2), v(vM), v(T0)); I("v_exp_f32", v(T2), v(T2))
    I("v_mul_f32", v(vL), v(vL), v(T2))
    for h in range(2):
        for k in range(8):
            d = vACC+8*h+k
            I("v_mul_f32_dpp", v(d), v(T2), v(d), mod=f"row_newbcast:{4*h} {DPPALL}")
    allred("v_add_f32", vL, T1, rows=False)
    for k in range(8): I("v_permlane32_swap_b32", v(vACC+k), v(vACC+8+k))
    for k in range(8): I("v_add_f32", v(vACC+k), v(vACC+k), v(vACC+8+k))
    for k in range(4): I("v_permlane16_swap_b32", v(vACC+k), v(vACC+4+k))
    for k in range(4): I("v_add_f32", v(vACC+k), v(vACC+k), v(vACC+4+k))
    I("v_and_b32", v(5), 15, v(vLANE)); I("v_lshlrev_b32", v(5), 5, v(5))
    I("v_bfe_u32", v(6), v(vLANE), 4, 1); I("v_lshl_add_u32", v(5), v(6), 4, v(5))
    I("v_lshrrev_b32", v(6), 5, v(vLANE)); I("v_lshl_add_u32", v(5), v(6), 9, v(5))
    I("s_lshl_b32", s(sT0), s(sW), 10); I("s_add_u32", s(sT0), s(sT0), L_OP); I("v_add_u32", v(5), s(sT0), v(5))
    I("ds_write_b128", v(5), vr(vACC))
    I("v_bfe_u32", v(6), v(vLANE), 2, 1); I("v_lshlrev_b32", v(6), 5, v(6))
    I("s_lshl_b32", s(sT0), s(sW), 2); I("v_add_u32", v(6), s(sT0), v(6))
    I("ds_write_b32", v(6), v(T0), mod=f"offset:{L_ML}")
    I("ds_write_b32", v(6), v(vL), mod=f"offset:{L_ML+64}")
    a.lgkm(0)
    I("s_barrier")
    stamp(5,6)
    if OPT['dbgts']:
        I("s_memrealtime", "s[98:99]"); a.lgkm(0); I("s_mov_b32", "s3", "s98")
    R = 208
    I("v_lshrrev_b32", v(5), 3, v(vLANE)); I("v_lshlrev_b32", v(5), 4, v(5))
    I("s_lshl_b32", s(sT0), s(sW), 7); I("s_add_u32", s(sT0), s(sT0), L_OP); I("v_add_u32", v(5), s(sT0), v(5))
    I("s_lshr_b32", s(sT1), s(sW), 2); I("s_lshl_b32", s(sT1), s(sT1), 5); I("v_mov_b32", v(6), s(sT1))
    MM = R+32; LL = R+40
    I("ds_read_b128", vr(MM), v(6), mod=f"offset:{L_ML}"); I("ds_read_b128", vr(MM+4), v(6), mod=f"offset:{L_ML+16}")
    I("ds_read_b128", vr(LL), v(6), mod=f"offset:{L_ML+64}"); I("ds_read_b128", vr(LL+4), v(6), mod=f"offset:{L_ML+80}")
    for w in range(8):
        I("ds_read_b128", vr(R+4*w), v(5), mod=f"offset:{1024*w}")
    a.lgkm(10)
    MX = vS; LS = vS+1; O = vS+2
    I("v_max3_f32", v(MX), v(MM), v(MM+1), v(MM+2)); I("v_max3_f32", v(MX), v(MX), v(MM+3), v(MM+4))
    I("v_max3_f32", v(MX), v(MX), v(MM+5), v(MM+6)); I("v_max_f32", v(MX), v(MX), v(MM+7))
    for w in range(8): I("v_sub_f32", v(MM+w), v(MM+w), v(MX))
    for w in range(8): I("v_exp_f32", v(MM+w), v(MM+w))
    a.lgkm(8)
    I("v_mul_f32", v(LS), v(MM), v(LL))
    for w in range(1, 8): I("v_fmac_f32", v(LS), v(MM+w), v(LL+w))
    a.lgkm(0)
    for w in range(8):
        for q in range(4):
            if w == 0: I("v_mul_f32", v(O+q), v(MM), v(R+q))
            else: I("v_fmac_f32", v(O+q), v(MM+w), v(R+4*w+q))
    P01, P23 = vS+6, vS+7
    I("v_cvt_pk_bf16_f32", v(P01), v(O), v(O+1)); I("v_cvt_pk_bf16_f32", v(P23), v(O+2), v(O+3))
    for rr in range(8):
        I("v_readlane_b32", s(sH+2*rr), v(P01), 8*rr); I("v_readlane_b32", s(sH+2*rr+1), v(P23), 8*rr)
    I("s_lshr_b32", s(sT1), s(sW), 2); I("s_lshl_b32", s(sT1), s(sT1), 3); I("v_mov_b32", v(6), s(sT1))
    I("ds_write_b64", v(6), vr(MX, 2), mod=f"offset:{L_ML2}")
    TL = vACC+8; TMn = vACC
    for c in range(8): I("v_dot2_f32_bf16", v(TL+c), v(WP[(16, c)]), v(P01), 0)
    for c in range(8): I("v_dot2_f32_bf16", v(TL+c), v(WP[(17, c)]), v(P23), v(TL+c))
    for k in range(16):
        for c in range(8):
            I("v_dot2_f32_bf16", v(TMn+c), v(WP[(k, c)]), s(sH+k), 0 if k == 0 else v(TMn+c))
    for k in range(4): I("v_permlane32_swap_b32", v(TL+k), v(TL+4+k))
    for k in range(4): I("v_add_f32", v(TL+k), v(TL+k), v(TL+4+k))
    for k in range(2): I("v_permlane16_swap_b32", v(TL+k), v(TL+2+k))
    for k in range(2): I("v_add_f32", v(TL+k), v(TL+k), v(TL+2+k))
    I("v_add_f32_dpp", v(TL), v(TL), v(TL), mod="row_ror:8 row_mask:0xf bank_mask:0x3")
    I("v_add_f32_dpp", v(TL), v(TL+1), v(TL+1), mod="row_ror:8 row_mask:0xf bank_mask:0xc")
    I("s_mul_i32", s(sT0), s(sW), 2304)
    I("v_and_b32", v(5), 7, v(vLANE)); I("v_lshlrev_b32", v(5), 5, v(5))
    I("v_lshrrev_b32", v(6), 3, v(vLANE)); I("v_lshl_add_u32", v(5), v(6), 2, v(5)); I("v_add_u32", v(5), s(sT0), v(5))
    I("v_lshlrev_b32", v(6), 5, v(vLANE)); I("v_add_u32", v(6), s(sT0), v(6))
    I("ds_write_b128", v(6), vr(TMn), mod=f"offset:{L_TP}")
    I("ds_write_b128", v(6), vr(TMn+4), mod=f"offset:{L_TP+16}")
    I("ds_write_b32", v(5), v(TL), mod=f"offset:{L_TP+2048}")
    stamp(7,40)
    a.lgkm(0)
    I("s_barrier")
    stamp(5,6)
    I("s_cmp_ge_u32", s(sW), 5); I("s_cbranch_scc1", "K1_W5"+sfx)
    I("v_cmp_gt_u32", "vcc", 288, v(vTID)); I("s_and_saveexec_b64", "s[96:97]", "vcc")
    I("v_lshlrev_b32", v(5), 4, v(vTID))
    I("v_cmp_le_u32", "vcc", 144, v(vTID)); I("v_mov_b32", v(7), 6912); I("v_cndmask_b32", v(6), 0, v(7), "vcc")
    I("v_add_u32", v(6), v(6), v(5))
    for w in range(4): I("ds_read_b128", vr(R+4*w), v(6), mod=f"offset:{L_TP+2304*w}")
    a.lgkm(0)
    for k in range(4):
        I("v_add_f32", v(R+k), v(R+k), v(R+4+k)); I("v_add_f32", v(R+8+k), v(R+8+k), v(R+12+k))
    for k in range(4): I("v_add_f32", v(R+k), v(R+k), v(R+8+k))
    I("buffer_store_dwordx4", vr(R), v(5), sr(S_WS), 0, mod="offen "+(STMOD if OPT['fused'] else ""))
    I("s_branch", "K1_FIN"+sfx)
    a.label("K1_W5"+sfx)
    I("s_cmp_lg_u32", s(sW), 5); I("s_cbranch_scc1", "K1_W6"+sfx)
    I("s_mov_b64", "exec", 1)
    I("v_mov_b32", v(5), 0)
    I("ds_read_b128", vr(R), v(5), mod=f"offset:{L_ML2}")
    a.lgkm(0)
    I("s_movk_i32", s(sT0), 4608)
    I("buffer_store_dwordx4", vr(R), v(5), sr(S_WS), s(sT0), mod="offen "+(STMOD if OPT['fused'] else ""))
    I("s_branch", "K1_FIN"+sfx)
    a.label("K1_W6"+sfx)
    I("s_cmp_lg_u32", s(sW), 6); I("s_cbranch_scc1", "K1_FIN"+sfx)
    I("s_mov_b64", "exec", 0x1ff)
    I("v_lshlrev_b32", v(5), 2, v(vLANE))
    for w in range(8): I("ds_read_b32", v(R+w), v(5), mod=f"offset:{L_GP+64*w}")
    a.lgkm(0)
    for st in (4, 2, 1):
        for w in range(st): I("v_add_f32", v(R+w), v(R+w), v(R+w+st))
    bfr1(R)
    I("s_waitcnt", "vmcnt(0)")
    I("v_lshlrev_b32", v(R+8), 16, v(192))
    I("v_add_f32", v(R), v(R), v(R+8)); bfr1(R)
    I("v_mul_f32", v(R+1), s(sLOG2E), v(R)); I("v_exp_f32", v(R+1), "-"+v(R+1))
    I("v_add_f32", v(R+1), 1.0, v(R+1)); I("v_rcp_f32", v(R+2), v(R+1))
    I("v_mul_f32", v(R+3), v(R), v(R+2))
    I("v_fma_f32", v(R+4), "-"+v(R+3), v(R+1), v(R)); I("v_fma_f32", v(R+3), v(R+4), v(R+2), v(R+3))
    bfr1(R+3)
    if not OPT['fused']:
        I("s_mul_i32", s(sT0), s(sBP), 36); I("s_add_u32", s(sT0), s(sT0), G_OFF)
        srd(S_M2, P_WS, s(sT0), 36)
        I("buffer_store_dword", v(R+3), v(5), sr(S_M2), 0, mod="offen")
    else:
        I("v_mov_b32", v(197), v(R+3))
        I("s_mov_b64", "exec", -1)
        I("v_mul_u32_u24", v(5), TSTRIDE, v(vLANE))
        I("s_mul_i32", s(sT1), s(sP), 36); I("v_add_u32", v(6), s(sT1), v(5))
        I("s_mul_i32", s(sT0), s(sB), 64*TSTRIDE); srd(S_WS, P_WS, s(sT0), 64*TSTRIDE)
        I("s_mul_i32", s(sT0), s(sBP), 18); srd(S_M1, P_OUT, s(sT0), 18)
        I("v_and_b32", v(7), 7, v(vLANE)); I("v_cmp_eq_u32", "s[96:97]", 2, v(7))
        I("s_mov_b32", s(sFLAG), 0)
        a.label("K1_ST"+sfx)
        I("v_cndmask_b32", v(198), 0, v(194), "s[96:97]")
        allred("v_add_u32", 198, 199)
        I("v_readfirstlane_b32", s(sT0), v(198))
        a.nop(2)
        I("s_cmp_eq_u32", s(sT0), 256); I("s_cbranch_scc1", "K1_STOK"+sfx)
        I("s_add_u32", s(sFLAG), s(sFLAG), 1); I("s_cmp_gt_u32", s(sFLAG), 20000); I("s_cbranch_scc1", "K1_STOK"+sfx)
        I("s_sleep", 16)
        I("buffer_load_dword", v(194), v(195), sr(S_M2), 0, mod="offen sc1")
        I("s_waitcnt", "vmcnt(0)")
        I("s_branch", "K1_ST"+sfx)
        a.label("K1_STOK"+sfx)
        I("s_mov_b64", "s[96:97]", -1)
        I("s_movk_i32", s(sT1), 4608)
        a.label("K1_PL"+sfx)
        I("s_mov_b64", "exec", "s[96:97]")
        LM = "sc1"
        I("buffer_load_dwordx4", vr(R+24), v(5), sr(S_WS), s(sT1), mod=f"offen {LM}")
        I("buffer_load_dwordx4", vr(R), v(6), sr(S_WS), 0, mod=f"offen {LM}")
        I("buffer_load_dwordx4", vr(R+4), v(6), sr(S_WS), 0, mod=f"offen offset:16 {LM}")
        I("buffer_load_dword", v(R+8), v(6), sr(S_WS), 0, mod=f"offen offset:32 {LM}")
        I("buffer_load_dwordx4", vr(R+12), v(6), sr(S_WS), 0, mod=f"offen offset:2304 {LM}")
        I("buffer_load_dwordx4", vr(R+16), v(6), sr(S_WS), 0, mod=f"offen offset:2320 {LM}")
        I("buffer_load_dword", v(R+20), v(6), sr(S_WS), 0, mod=f"offen offset:2336 {LM}")
        I("s_waitcnt", "vmcnt(0)")
        regs = [R+k for k in range(9)] + [R+12+k for k in range(9)] + [R+24+k for k in range(4)]
        I("v_max3_u32", v(198), v(regs[0]), v(regs[1]), v(regs[2]))
        I("v_max3_u32", v(199), v(regs[3]), v(regs[4]), v(regs[5]))
        for k in range(6, 22, 4):
            I("v_max3_u32", v(198), v(198), v(regs[k]), v(regs[k+1]))
            I("v_max3_u32", v(199), v(199), v(regs[k+2]), v(regs[k+3]))
        I("v_max_u32", v(198), v(198), v(199))
        I("v_cmp_eq_u32", "s[96:97]", -1, v(198))
        a.nop(2)
        I("s_cmp_eq_u64", "s[96:97]", 0); I("s_cbranch_scc1", "K1_PD"+sfx)
        I("s_add_u32", s(sFLAG), s(sFLAG), 1); I("s_cmp_gt_u32", s(sFLAG), 20000); I("s_cbranch_scc1", "K1_PD"+sfx)
        I("s_bcnt1_i32_b64", s(sT0), "s[96:97]"); I("s_cmp_le_u32", s(sT0), OPT['thr']); I("s_cbranch_scc1", "K1_PS"+sfx)
        I("s_sleep", OPT['slp_l'])
        a.label("K1_PS"+sfx)
        if OPT['slp_s']: I("s_sleep", OPT['slp_s'])
        I("s_branch", "K1_PL"+sfx)
        a.label("K1_PD"+sfx)
        I("s_mov_b64", "exec", -1)
        stamp(198,199)
        fin_math(R, 197, 193, vLANE)
        I("s_mov_b64", "exec", 0x1ff)
        I("buffer_store_short", v(R), v(196), sr(S_M1), 0, mod="offen")
        if OPT['dbgts']:
            I("s_mov_b64", "exec", 1)
            I("s_memrealtime", "s[98:99]"); a.lgkm(0)
            I("v_mov_b32", v(198), "s98"); I("v_mov_b32", v(199), 20)
            I("buffer_atomic_umax", v(198), v(199), sr(S_M2), 0, mod="offen")
            I("v_mov_b32", v(200), "s3"); I("v_mov_b32", v(201), 24)
            I("buffer_atomic_umax", v(200), v(201), sr(S_M2), 0, mod="offen")
            I("s_not_b32", "s3", "s3")
            I("v_mov_b32", v(202), "s3"); I("v_mov_b32", v(203), 28)
            I("buffer_atomic_umax", v(202), v(203), sr(S_M2), 0, mod="offen")
    a.label("K1_FIN"+sfx)
    stamp(5,6)
    stamp_dump()
    I("s_endpgm")

def fin_math(R, G, XV, LN):
    ML = R+24; C = [R+32, R+33]; T = R+34
    for h in range(2):
        Mv, Lv = ML+2*h, ML+2*h+1
        I("v_max_f32_dpp", v(T), v(Mv), v(Mv), mod=f"quad_perm:[1,0,3,2] {DPPALL}")
        I("v_max_f32_dpp", v(T), v(T), v(T), mod=f"quad_perm:[2,3,0,1] {DPPALL}")
        I("v_sub_f32", v(T), v(Mv), v(T)); I("v_exp_f32", v(C[h]), v(T))
        I("v_mul_f32", v(T), v(C[h]), v(Lv))
        I("v_add_f32_dpp", v(T), v(T), v(T), mod=f"quad_perm:[1,0,3,2] {DPPALL}")
        I("v_add_f32_dpp", v(T), v(T), v(T), mod=f"quad_perm:[2,3,0,1] {DPPALL}")
        I("v_rcp_f32", v(T), v(T))
        I("v_mul_f32", v(C[h]), v(C[h]), v(T))
    for k in range(9): I("v_mul_f32", v(R+k), v(C[0]), v(R+k))
    for k in range(9): I("v_fmac_f32", v(R+k), v(C[1]), v(R+12+k))
    for n in (8, 4, 2, 1):
        for k in range(9): I("v_add_f32_dpp", v(R+k), v(R+k), v(R+k), mod=f"row_ror:{n} {DPPALL}")
    for sw in ("v_permlane16_swap_b32", "v_permlane32_swap_b32"):
        for k in range(9): I("v_mov_b32", v(R+12+k), v(R+k))
        for k in range(9): I(sw, v(R+k), v(R+12+k))
        for k in range(9): I("v_add_f32", v(R+k), v(R+k), v(R+12+k))
    for k in range(1, 9):
        I("v_cmp_eq_u32", "vcc", k, v(LN)); I("v_cndmask_b32", v(R), v(R), v(R+k), "vcc")
    bfr1(R)
    I("v_mul_f32", v(R), v(R), v(G)); bfr1(R)
    I("v_lshlrev_b32", v(XV), 16, v(XV))
    I("v_add_f32", v(R), v(R), v(XV))
    I("v_cvt_pk_bf16_f32", v(R), v(R), v(R))

def k2():
    a.raw(f".globl {K2}\n.p2align 8\n.type {K2},@function\n{K2}:")
    a.vm = []
    I("s_cmp_ge_u32", "s2", 256); I("s_cbranch_scc1", "K2_END")
    I("s_load_dwordx2", "s[36:37]", "s[0:1]", 0)
    I("s_load_dwordx2", "s[56:57]", "s[0:1]", 80)
    I("s_load_dwordx2", "s[60:61]", "s[0:1]", 96)
    I("s_mov_b32", s(sMASK), "0xffff0000")
    I("s_lshr_b32", s(sB), "s2", 6); I("s_and_b32", s(sP), "s2", 63)
    I("v_mul_u32_u24", v(5), TSTRIDE, v(0))
    I("s_mul_i32", s(sT1), s(sP), 36)
    I("v_add_u32", v(6), s(sT1), v(5))
    I("v_lshlrev_b32", v(7), 2, v(0)); I("v_lshlrev_b32", v(8), 1, v(0))
    a.lgkm(0)
    I("s_mul_i32", s(sT0), s(sB), 64*TSTRIDE); srd(S_WS, P_WS, s(sT0), 64*TSTRIDE)
    R = 16
    I("buffer_load_dwordx4", vr(R), v(6), sr(S_WS), 0, mod="offen")
    I("buffer_load_dwordx4", vr(R+4), v(6), sr(S_WS), 0, mod="offen offset:16")
    I("buffer_load_dword", v(R+8), v(6), sr(S_WS), 0, mod="offen offset:32")
    I("buffer_load_dwordx4", vr(R+12), v(6), sr(S_WS), 0, mod="offen offset:2304")
    I("buffer_load_dwordx4", vr(R+16), v(6), sr(S_WS), 0, mod="offen offset:2320")
    I("buffer_load_dword", v(R+20), v(6), sr(S_WS), 0, mod="offen offset:2336")
    I("s_movk_i32", s(sT0), 4608)
    I("buffer_load_dwordx4", vr(R+24), v(5), sr(S_WS), s(sT0), mod="offen")
    I("s_mul_i32", s(sT0), "s2", 36); I("s_add_u32", s(sT0), s(sT0), G_OFF); srd(S_M2, P_WS, s(sT0), 36)
    I("buffer_load_dword", v(R+28), v(7), sr(S_M2), 0, mod="offen")
    I("s_mul_i32", s(sT0), "s2", 18); srd(S_X, P_X, s(sT0), 18); srd(S_M1, P_OUT, s(sT0), 18)
    I("buffer_load_ushort", v(R+29), v(8), sr(S_X), 0, mod="offen")
    I("s_waitcnt", "vmcnt(0)")
    fin_math(R, R+28, R+29, 0)
    I("s_mov_b64", "exec", 0x1ff)
    I("buffer_store_short", v(R), v(8), sr(S_M1), 0, mod="offen")
    a.label("K2_END")
    I("s_endpgm")

hdr = open('cdna_kernels/'+name+'.s.ref').read().split('\n')
top = [l for l in hdr if l.startswith(';') and '@launch' not in l and 'Override' not in l and 'grid=ceil' not in l]
out = "\n".join(top)+"\n"
if OPT['fused']:
    K1 = name+"_kernel"
    out += f"; @launch grid=(256,1,1) block=(512,1,1) lds={LDS_SIZE}\n"
else:
    out += f"; @launch kernel={K1} grid=(256,1,1) block=(512,1,1) lds={LDS_SIZE}\n"
    out += f"; @launch kernel={K2} grid=(256,1,1) block=(64,1,1) lds=0\n"
out += '.amdgcn_target "amdgcn-amd-amdhsa--gfx950"\n.text\n'
k1()
if not OPT['fused']: k2()
out += a.text()
out += '.section .rodata,"a"\n'
for kn, nv in (((K1, 256),) if OPT['fused'] else ((K1, 256), (K2, 64))):
    out += f""".p2align 6
.amdhsa_kernel {kn}
  .amdhsa_next_free_vgpr {nv}
  .amdhsa_next_free_sgpr 102
  .amdhsa_accum_offset {nv}
  .amdhsa_group_segment_fixed_size 0
  .amdhsa_kernarg_size 104
  .amdhsa_user_sgpr_count 2
  .amdhsa_user_sgpr_kernarg_segment_ptr 1
  .amdhsa_system_sgpr_workgroup_id_x 1
.end_amdhsa_kernel
"""
open(sys.argv[1], 'w').write(out)
print("instrs", a.ninstr, "bytes", len(out))
```

```python
import sys, struct
sys.path.insert(0, 'gen')
from asmlib import Asm

def f32(x): return "0x%08x" % struct.unpack('<I', struct.pack('<f', x))[0]
LOG2E = 1.4426950408889634
SCALE = 0.08838834764831845
C0 = 2*0.7978845608028654*LOG2E
C1 = C0*0.044715

OPT = dict(gate_per_tile=2, gate_start=1, wo_start=6, wo_per_tile=6, nt_w=True, fused=False, ts=0, tbar=0, nowo=0, nogate=0, nowq=0, pwq=1, pwo=1, bar=1, rot=1, kv0=4, kvstep=3, kvpre=12, lnpos=24, cred=2, o1=8, o2=17, o3=26, d0=2, dstep=2)
GOPT = [dict(wqpre=36, kvfirst=8, kvafter=0, cred=0, stage=0, lnpos=24, wo_start=4, wo_per_tile=4, gate_start=1, gate_per_tile=2, pendlate=1),
        dict(wqpre=6, kvfirst=32, kvafter=0, cred=0, stage=1, lnpos=5, wo_start=4, wo_per_tile=4, gate_start=1, gate_per_tile=2, pendlate=1)]
OPT['gbit'] = 7; OPT['kbit'] = 6; OPT['fused'] = 1; OPT['slp_l'] = 24; OPT['slp_s'] = 4; OPT['thr'] = 8; OPT['pst'] = 2; OPT['badx'] = 0; OPT['dbgts'] = 0; OPT['pk'] = 1; OPT['pv'] = 1
OPT['perm'] = 'i0i1w0w1w2n0n1n2n3s0s1'; OPT['rk'] = 0; OPT['rb'] = 0; OPT['rs'] = 0; OPT['vx'] = 0; OPT['prio'] = 0; OPT['otouch'] = 0; OPT['gsel'] = 0; OPT['stt'] = 1; OPT['badh'] = 0
for g in GOPT: g['kvpre'] = 0
GOPT[1].update(kvpre=8, kvmid=8, stage=0)
OPT.update(tb0=4, nl=4, pqs=2, win=500, sw=1, hold=4, qto=400)
for arg in sys.argv[2:]:
    k, v = arg.split('=')
    if k == 'perm': OPT[k] = v; continue
    if k[:2] in ('A_', 'B_'): GOPT[0 if k[0] == 'A' else 1][k[2:]] = int(v)
    else: OPT[k] = int(v)
STAGE = [0]

L_XN = 0; L_QS = 4608; L_GP = 8704; L_ML = 9216; L_ML2 = 9344; L_TK = 9408; L_TS = 15360
L_ST = 16384; L_TP = 16384; L_OP = 147456; L_QP = 147456
LDS_SIZE = 147456 + 8192
TSTRIDE = 5120
G_OFF = 0x200000
QX_OFF = 0x180000; L_XF = 16384; sTM = 46
KT = [(0x5a17c3e9 + t*0x3b9d4f21) & 0xffffffff for t in range(4)]; KH = 0x2c6e91b5

a = Asm()
I = a.I
NVM = [0]
_vi = a.vm_issue
def _vmi(tag):
    NVM[0] += 1; _vi(tag)
a.vm_issue = _vmi
S_K, S_V, S_WQ, S_WO, S_X, S_M1, S_WS, S_M2 = 4, 8, 12, 16, 20, 24, 28, 32
P_X, P_K, P_V, P_WQ, P_WO, P_W1, P_B1, P_W2, P_B2, P_OUT, P_DBG, P_WS = 36, 38, 40, 42, 44, 48, 50, 52, 54, 56, 58, 60
sKVH, sSPLIT, sB, sP, sW, sT0, sT1 = 62, 63, 80, 81, 82, 83, 84
sH = 64
sSELLO, sSELHI, sMASK, sSCALE, sLOG2E, sBP = 85, 86, 87, 88, 89, 90
sM3 = 92
sXCC, sITEM, sFLAG, sRO = 100, 101, 91, 96
def sr(n): return f"s[{n}:{n+3}]"
def vr(n, k=4): return f"v[{n}:{n+k-1}]"
def v(n): return f"v{n}"
def s(n): return f"s{n}"

def srd(dst, ptr, off, records):
    if off is None:
        I("s_mov_b32", s(dst), s(ptr)); I("s_mov_b32", s(dst+1), s(ptr+1))
    else:
        I("s_add_u32", s(dst), s(ptr), off); I("s_addc_u32", s(dst+1), s(ptr+1), 0)
    I("s_mov_b32", s(dst+2), records); I("s_mov_b32", s(dst+3), "0x20000")

DPPALL = "row_mask:0xf bank_mask:0xf"
def allred(op, x, t, rows=True):
    if rows:
        for n in (8, 4, 2, 1):
            I(op+"_dpp", v(x), v(x), v(x), mod=f"row_ror:{n} {DPPALL}")
    I("v_mov_b32", v(t), v(x)); I("v_permlane16_swap_b32", v(x), v(t)); I(op, v(x), v(x), v(t))
    I("v_mov_b32", v(t), v(x)); I("v_permlane32_swap_b32", v(x), v(t)); I(op, v(x), v(x), v(t))

def bfr1(x):
    I("v_cvt_pk_bf16_f32", v(x), v(x), v(x)); I("v_and_b32", v(x), s(sMASK), v(x))
def bfr2(x, y, w):
    I("v_cvt_pk_bf16_f32", v(w), v(x), v(y)); I("v_lshlrev_b32", v(x), 16, v(w)); I("v_and_b32", v(y), s(sMASK), v(w))

def layernorm(X, O, T):
    sm, tt, mean, var, den, rc = T[:6]
    I("v_add_f32", v(sm), v(X[0]), v(X[1]))
    for k in range(2, 9): I("v_add_f32", v(sm), v(sm), v(X[k]))
    allred("v_add_f32", sm, tt)
    I("v_mul_f32", v(mean), f32(1.0/576), v(sm))
    for k in range(9): I("v_sub_f32", v(O[k]), v(X[k]), v(mean))
    I("v_mul_f32", v(var), v(O[0]), v(O[0]))
    for k in range(1, 9): I("v_fmac_f32", v(var), v(O[k]), v(O[k]))
    allred("v_add_f32", var, tt)
    I("v_mul_f32", v(var), f32(1.0/576), v(var))
    bfr2(mean, var, tt)
    I("v_add_f32", v(var), f32(1e-5), v(var)); bfr1(var)
    I("v_sqrt_f32", v(den), v(var)); bfr1(den)
    I("v_rcp_f32", v(rc), v(den))
    for k in range(9): I("v_sub_f32", v(O[k]), v(X[k]), v(mean))
    for k in range(0, 8, 2): bfr2(O[k], O[k+1], tt)
    bfr1(O[8])
    for k in range(9):
        I("v_mul_f32", v(sm), v(O[k]), v(rc))
        I("v_fma_f32", v(tt), "-"+v(sm), v(den), v(O[k]))
        I("v_fma_f32", v(O[k]), v(tt), v(rc), v(sm))
    for k in range(0, 8, 2): bfr2(O[k], O[k+1], tt)
    bfr1(O[8])

vTID, vLANE, vKOFF, vM, vL = 0, 1, 2, 3, 4
vT = [5, 6, 7]
vQ = 8
vACC = 16
vS = 32
vP = 40
BIG = 48
KB = [192, 224]; VB = [208, 240]
NT = "nt"
POLS = ["", "nt", "sc1", "sc0", "sc0 sc1", "sc1 nt", "sc0 nt", "sc0 sc1 nt"]
WMOD = POLS[OPT['pwq']]; WOMOD = POLS[OPT['pwo']]
KVP = {'K': POLS[OPT['pk']], 'V': POLS[OPT['pv']]}

PERM = [OPT['perm'][2*j:2*j+2] for j in range(11)]
assert sorted(PERM) == sorted(['i0','i1','w0','w1','w2','n0','n1','n2','n3','s0','s1'])
POS = {p: 10+j for j, p in enumerate(PERM)}
ROT = OPT['rk'] or OPT['rb'] or OPT['rs']
def place(sym, val, nb): return sum(((val >> j) & 1) << POS[f"{sym}{j}"] for j in range(nb))
def taddr(n, i):
    ci = place('i', i, 2); imm = ci & 0xC00
    return place('n', n, 4) | (ci & ~0xC00), imm
LASTSO = [None]
def set_so(so):
    if LASTSO[0] == so: return
    LASTSO[0] = so
    if ROT: I("s_xor_b32", s(sT0), "s3", so)
    else: I("s_mov_b32", s(sT0), so)
def splace(dst, src, sym, nb, tmp):
    for j in range(nb):
        I("s_bfe_u32", s(tmp), s(src), (1 << 16) | j); I("s_lshl_b32", s(tmp), s(tmp), POS[f"{sym}{j}"])
        if j == 0: I("s_mov_b32", dst, s(tmp))
        else: I("s_or_b32", dst, dst, s(tmp))
def tile_regs(kind, n):
    if STAGE[0] and n in (2, 3): return BIG + 32*(n-2) + (0 if kind == 'K' else 16)
    return (KB if kind == 'K' else VB)[n & 1]
def issue_tile_lds(kind, n):
    srdn = S_K if kind == 'K' else S_V
    q = 2*(n-2) + (0 if kind == 'K' else 1)
    I("s_lshl_b32", s(sT1), s(sW), 14); I("s_add_u32", s(sT1), s(sT1), L_ST+q*4096)
    I("s_mov_b32", "m0", s(sT1))
    I("s_mov_b32", s(sT0), n*32768)
    for i in range(4):
        a.raw(f"  buffer_load_dwordx4 {v(vKOFF)}, {sr(srdn)}, {s(sT0)} offen offset:{i*1024} {KVP[kind]} lds"); a.pos += 1
        a.vm_issue(f"{kind}{n}")
def room():
    if len(a.vm) >= 62:
        I("s_waitcnt", f"vmcnt({len(a.vm)-4})"); a.vm = a.vm[4:]
def issue_one(kind, n, i):
    srdn = S_K if kind == 'K' else S_V
    room()
    so, imm = taddr(n, i); LASTSO[0] = None
    if STAGE[0] == 1 and n in (2, 3):
        q = 2*(n-2) + (0 if kind == 'K' else 1)
        I("s_lshl_b32", s(sT1), s(sW), 14); I("s_add_u32", s(sT1), s(sT1), L_ST+q*4096+i*1024-imm)
        I("s_mov_b32", "m0", s(sT1))
        set_so(so)
        a.raw(f"  buffer_load_dwordx4 {v(vKOFF)}, {sr(srdn)}, {s(sT0)} offen offset:{imm} {KVP[kind]} lds"); a.pos += 1
    else:
        base = tile_regs(kind, n)
        set_so(so)
        I("buffer_load_dwordx4", vr(base+4*i), v(vKOFF), sr(srdn), s(sT0), mod=f"offen offset:{imm} {KVP[kind]}")
    a.vm_issue(f"{kind}{n}")
def read_tile_lds(kind, n):
    q = 2*(n-2) + (0 if kind == 'K' else 1)
    base = tile_regs(kind, n)
    for i in range(4):
        I("ds_read_b128", vr(base+4*i), v(7), mod=f"offset:{q*4096+i*1024}")
def issue_tile(kind, n):
    base = tile_regs(kind, n)
    srdn = S_K if kind == 'K' else S_V
    LASTSO[0] = None
    for i in range(4):
        so, imm = taddr(n, i); set_so(so)
        I("buffer_load_dwordx4", vr(base+4*i), v(vKOFF), sr(srdn), s(sT0), mod=f"offen offset:{imm} {KVP[kind]}")
        a.vm_issue(f"{kind}{n}")

ts_n = [0]
def stamp(ra, rb):
    if not OPT['ts']: return
    I("s_memrealtime", "s[98:99]"); a.lgkm(0)
    I("s_lshl_b32", "s99", s(sW), 7)
    I("v_mov_b32", v(ra), "s98"); I("v_mov_b32", v(rb), "s99")
    I("ds_write_b32", v(rb), v(ra), mod=f"offset:{L_TS+4*ts_n[0]}")
    ts_n[0] += 1
def stamp_dump():
    if not OPT['ts']: return
    I("s_mov_b64", "exec", -1)
    I("s_lshl_b32", "s99", s(sW), 7)
    I("v_and_b32", v(5), 31, v(vLANE)); I("v_lshlrev_b32", v(5), 2, v(5)); I("v_add_u32", v(5), "s99", v(5))
    a.lgkm(0)
    I("ds_read_b32", v(6), v(5), mod=f"offset:{L_TS}")
    I("s_lshl_b32", s(sT0), "s2", 10); I("s_add_u32", s(sT0), s(sT0), 0x400000)
    srd(S_M1, P_WS, s(sT0), 1024)
    a.lgkm(0)
    I("buffer_store_dword", v(6), v(5), sr(S_M1), 0, mod="offen")

name = "recurrent_scan__gqa_block_cached__mixer_token_mlp__decode"
K1 = "attn_main_kernel"; K2 = "attn_fin_kernel"

def set_wq():
    I("s_lshl_b32", s(sT0), s(sKVH), 9)
    I("s_sub_u32", s(sT1), 576*8192, s(sT0))
    I("s_add_u32", s(S_WQ), s(P_WQ), s(sT0)); I("s_addc_u32", s(S_WQ+1), s(P_WQ+1), 0)
    I("s_mov_b32", s(S_WQ+2), s(sT1)); I("s_mov_b32", s(S_WQ+3), "0x20000")
def decode():
    I("s_lshr_b32", s(sKVH), s(sITEM), 4); I("s_and_b32", s(sKVH), s(sKVH), 15)
    I("s_and_b32", s(sSPLIT), s(sITEM), 3)
    I("s_bfe_u32", s(sB), s(sITEM), (2 << 16) | 2)
    I("s_lshl_b32", s(sP), s(sKVH), 2); I("s_or_b32", s(sP), s(sP), s(sSPLIT))
    I("s_lshl_b32", s(sBP), s(sB), 6); I("s_or_b32", s(sBP), s(sBP), s(sP))
    splace("s3", sSPLIT, 's', 2, sT0)
    I("s_lshr_b32", s(sT0), s(sBP), 2); I("s_lshl_b32", s(sT0), s(sT0), 21); I("s_add_u32", s(sT0), s(sT0), "s3")
    I("s_sub_u32", s(sT1), 1 << 21, "s3")
    srd(S_K, P_K, s(sT0), s(sT1)); srd(S_V, P_V, s(sT0), s(sT1))
    if ROT:
        I("s_mul_i32", s(sT1), s(sKVH), OPT['rk']); I("s_mul_i32", s(sT0), s(sB), OPT['rb']); I("s_add_u32", s(sT1), s(sT1), s(sT0))
        I("s_mul_i32", s(sT0), s(sSPLIT), OPT['rs']); I("s_add_u32", s(sT1), s(sT1), s(sT0))
        splace("s3", sT1, 'n', 4, sT0)
    I("s_mul_i32", s(sT0), s(sBP), TSTRIDE); srd(S_WS, P_WS, s(sT0), TSTRIDE)
def wq_load(i):
    if OPT['nowq']: return
    room()
    I("s_mov_b32", s(sRO), i*8192)
    I("buffer_load_dwordx4", vr(BIG+4*i), v(7), sr(S_WQ), s(sRO), mod=f"offen {WMOD}"); a.vm_issue(f"wq{i}")
STMOD = POLS[OPT['pst']]

def k1():
    a.raw(f".globl {K1}\n.p2align 8\n.type {K1},@function\n{K1}:")
    I("s_cmp_ge_u32", "s2", 256); I("s_cbranch_scc1", "K1_END")
    I("s_load_dwordx16", "s[36:51]", "s[0:1]", 0)
    I("s_load_dwordx8", "s[52:59]", "s[0:1]", 64)
    I("s_load_dwordx2", "s[60:61]", "s[0:1]", 96)
    I("s_getreg_b32", s(sXCC), "hwreg(HW_REG_XCC_ID, 0, 4)"); I("s_and_b32", s(sXCC), s(sXCC), 7)
    I("s_getreg_b32", s(sT0), "hwreg(HW_REG_HW_ID, 8, 4)")
    I("s_getreg_b32", s(sT1), "hwreg(HW_REG_HW_ID, 13, 2)")
    if OPT['badx'] == 1: I("s_mov_b32", s(sXCC), 3)
    if OPT['badx'] == 2: I("s_and_b32", s(sXCC), s(sXCC), 5)
    if OPT['badh'] == 1: I("s_and_b32", s(sT0), s(sT0), 5)
    if OPT['badh'] == 2: I("s_mov_b32", s(sT0), 8)
    if OPT['badh'] == 3: I("s_xor_b32", s(sT1), s(sT1), 1)
    I("s_lshl_b32", s(sITEM), s(sXCC), 2); I("s_or_b32", s(sITEM), s(sITEM), s(sT1)); I("s_lshl_b32", s(sITEM), s(sITEM), 3)
    I("s_and_b32", s(sP), s(sT0), 7); I("s_or_b32", s(sITEM), s(sITEM), s(sP))
    I("s_and_b32", s(sT1), s(sT1), 1); I("s_sub_u32", s(sT0), s(sT0), s(sT1))
    I("s_cmp_gt_u32", s(sT0), 7); I("s_cselect_b32", s(sFLAG), 1, 0)
    I("s_mov_b32", s(sSELLO), "0x05040100"); I("s_mov_b32", s(sSELHI), "0x07060302")
    I("s_mov_b32", s(sMASK), "0xffff0000"); I("s_mov_b32", s(sSCALE), f32(SCALE)); I("s_mov_b32", s(sLOG2E), f32(LOG2E))
    I("v_and_b32", v(vLANE), 63, v(vTID))
    I("v_lshrrev_b32", v(5), 6, v(vTID))
    I("v_readfirstlane_b32", s(sW), v(5))
    I("v_lshlrev_b32", v(vKOFF), 4, v(vLANE))
    for j in range(3):
        I("v_bfe_u32", v(6), v(5), j, 1); I("v_lshl_add_u32", v(vKOFF), v(6), POS[f"w{j}"], v(vKOFF))
    a.lgkm(0)
    I("s_memrealtime", f"s[{sTM}:{sTM+1}]")
    stamp(40,41)
    a.label("K1_START")
    I("v_mul_u32_u24", v(6), 18, v(vLANE))
    I("v_lshrrev_b32", v(7), 5, v(vTID))
    I("v_mul_u32_u24", v(7), 36*8192, v(7))
    I("v_and_b32", v(40), 31, v(vTID)); I("v_lshl_add_u32", v(7), v(40), 4, v(7))
    I("s_and_b32", s(sT0), s(sW), 3)
    I("s_mul_i32", s(sT0), s(sT0), 1152); srd(S_X, P_X, s(sT0), 1152)
    X = list(range(16, 25))
    I("s_cmp_lg_u32", s(sFLAG), 0); I("s_cbranch_scc1", "K1_XL0")
    I("s_cmp_ge_u32", s(sW), OPT['nl']); I("s_cbranch_scc1", "K1_XL1")
    a.label("K1_XL0")
    for k in range(9):
        I("buffer_load_ushort", v(X[k]), v(6), sr(S_X), 0, mod=f"offen offset:{2*k}"); a.vm_issue("x")
    a.label("K1_XL1")
    I("v_add_u32", v(6), s(sT0), v(6))
    decode()
    set_wq()
    srd(S_M2, P_DBG, None, 256)
    I("s_or_b32", s(sT0), s(sW), s(sFLAG)); I("s_cmp_lg_u32", s(sT0), 0); I("s_cbranch_scc1", "K1_NC")
    claim()
    a.label("K1_NC")
    a.lgkm(0)
    I("s_cmp_lg_u32", s(sFLAG), 2); I("s_cbranch_scc1", "K1_GB")
    a.label("K1_GA")
    import copy
    save = (copy.deepcopy(a.vm), ts_n[0])
    body(0, X)
    a.label("K1_GB")
    a.vm = save[0]; ts_n[0] = save[1]
    body(1, X)
    a.label("K1_REDO2")
    I("s_cmp_lg_u32", s(sT0), 0); I("s_cbranch_scc1", "K1_REDO")
    I("s_mov_b32", s(sT0), s(sITEM))
    a.label("K1_REDO")
    I("s_waitcnt", "vmcnt(0) lgkmcnt(0)")
    I("s_and_b32", s(sITEM), s(sT0), 255); I("s_mov_b32", s(sFLAG), 2)
    I("s_branch", "K1_START")
    a.label("K1_END")
    I("s_endpgm")

def claim(SD=32):
    I("s_lshr_b32", s(sT0), s(sITEM), 5); I("s_lshl_b32", s(sT0), s(sT0), 5)
    I("s_lshl_b32", s(sT1), 1, s(sITEM))
    I("v_mov_b32", v(9), s(sT0)); I("v_mov_b32", v(8), s(sT1))
    I("s_mov_b64", "exec", 1)
    I("buffer_atomic_or", v(8), v(9), sr(SD), 0, mod="offen sc0")
    I("s_mov_b64", "exec", -1)
def peek(word, SD=32):
    I("s_lshl_b32", s(sT0), s(word), 5)
    I("v_mov_b32", v(9), s(sT0)); I("v_mov_b32", v(8), 0)
    I("s_mov_b64", "exec", 1)
    I("buffer_atomic_or", v(8), v(9), sr(SD), 0, mod="offen sc0")
    I("s_mov_b64", "exec", -1)
    I("s_waitcnt", "vmcnt(0)")
    I("v_readfirstlane_b32", s(sT0), v(8))
    a.nop(2)

def body(G, X):
    O = dict(OPT); O.update(GOPT[G]); STAGE[0] = O['stage']
    sfx = "AB"[G]
    tl = (('K', 0), ('V', 0), ('K', 1), ('V', 1), ('K', 2), ('V', 2), ('K', 3), ('V', 3)) if O['stage'] else (('K', 0), ('V', 0), ('K', 1), ('V', 1))
    pend = [(k, n, i) for (k, n) in tl for i in range(4)]
    XN = list(range(25, 34)); T = list(range(34, 40))
    def do_ln():
        stamp(40,41)
        a.vm_wait("x")
        stamp(40,41)
        for k in range(9): I("v_lshlrev_b32", v(X[k]), 16, v(X[k]))
        layernorm(X, XN, T)
        for k in range(9):
            I("ds_write_b16_d16_hi", v(6), v(XN[k]), mod=f"offset:{L_XN+2*k}")
    GR = 128
    gW1r, gB1r, gW2r = GR, GR+4, GR+8
    gW1x, gB1x, gW2x = GR+12, GR+13, GR+14
    def gate_loads():
        I("v_lshlrev_b32", v(5), 4, v(vTID)); I("v_lshlrev_b32", v(6), 1, v(vTID))
        for (dst, dx, sd) in ((gW1r, gW1x, S_M1), (gB1r, gB1x, S_M2), (gW2r, gW2x, sM3)):
            I("buffer_load_dwordx4", vr(dst), v(5), sr(sd), 0, mod="offen"); a.vm_issue("gw")
            I("s_movk_i32", s(sT0), 8192)
            I("buffer_load_ushort", v(dx), v(6), sr(sd), s(sT0), mod="offen"); a.vm_issue("gw")
    def verdict():
        srd(S_X, P_DBG, None, 256)
        I("s_cmp_lg_u32", s(sW), 0); I("s_cbranch_scc1", "K1_V9"+sfx)
        I("s_cmp_eq_u32", s(sFLAG), 2); I("s_cbranch_scc1", "K1_VOK"+sfx)
        I("s_waitcnt", f"vmcnt({min(NVM[0], len(a.vm))})")
        I("v_readfirstlane_b32", s(sT0), v(8))
        a.nop(2)
        I("s_bitcmp0_b32", s(sT0), s(sITEM)); I("s_cbranch_scc1", "K1_VOK"+sfx)
        I("s_mov_b32", s(sP), s(sXCC)); I("s_mov_b32", s(sB), 0)
        a.label("K1_VL"+sfx)
        I("s_add_u32", s(sB), s(sB), 1); I("s_cmp_gt_u32", s(sB), 3000); I("s_cbranch_scc1", "K1_VF"+sfx)
        peek(sP, S_X)
        I("s_cmp_lg_u32", s(sT0), -1); I("s_cbranch_scc1", "K1_VT"+sfx)
        I("s_add_u32", s(sP), s(sP), 1); I("s_and_b32", s(sP), s(sP), 7)
        I("s_branch", "K1_VL"+sfx)
        a.label("K1_VT"+sfx)
        I("s_ff0_i32_b32", s(sT0), s(sT0)); I("s_lshl_b32", s(sITEM), s(sP), 5); I("s_or_b32", s(sITEM), s(sITEM), s(sT0))
        claim(S_X)
        I("s_waitcnt", "vmcnt(0)")
        I("v_readfirstlane_b32", s(sT0), v(8))
        a.nop(2)
        I("s_bitcmp1_b32", s(sT0), s(sITEM)); I("s_cbranch_scc1", "K1_VL"+sfx)
        a.label("K1_VF"+sfx)
        I("s_or_b32", s(sT0), s(sITEM), 256)
        I("v_mov_b32", v(10), s(sT0))
        I("s_branch", "K1_VW"+sfx)
        a.label("K1_VOK"+sfx)
        for k in range(4): I("v_mov_b32", v(12+k), -1)
        I("v_lshlrev_b32", v(10), 4, v(vLANE))
        for k in range(4): I("buffer_store_dwordx4", vr(12), v(10), sr(S_WS), 0, mod=f"offen offset:{1024*k} {STMOD}")
        I("s_movk_i32", s(sT0), 4096)
        I("buffer_store_dwordx4", vr(12), v(10), sr(S_WS), s(sT0), mod=f"offen {STMOD}")
        a.nop(2)
        I("v_mov_b32", v(10), 0)
        a.label("K1_VW"+sfx)
        I("v_mov_b32", v(11), 0)
        I("ds_write_b32", v(11), v(10), mod=f"offset:{L_TK+4}")
        a.label("K1_V9"+sfx)
    def pro_self():
        for _ in range(O['kvpre']):
            if pend: issue_one(*pend.pop(0))
        assert G == 1 or O['kvpre'] == 0
        if O['lnpos'] < 0: do_ln()
        for i in range(O['wqpre']):
            wq_load(i)
            if i == O['lnpos']: do_ln()
        assert O['lnpos'] < O['wqpre']
        if G == 0:
            I("s_cmp_lg_u32", s(sFLAG), 1); I("s_cbranch_scc1", "K1_X1")
            I("s_cmp_lg_u32", s(sW), 0); I("s_cbranch_scc1", "K1_X1")
            I("s_mov_b32", s(sP), 0)
            I("s_bfe_u32", s(sB), s(sITEM), (2 << 16) | 3); I("s_lshl_b32", s(sB), s(sB), 3)
            a.label("K1_XL")
            peek(sXCC)
            I("s_lshr_b32", s(sT0), s(sT0), s(sB)); I("s_and_b32", s(sT0), s(sT0), 255)
            I("s_bcnt1_i32_b32", s(sT1), s(sT0)); I("s_cmp_ge_u32", s(sT1), 7); I("s_cbranch_scc1", "K1_XF")
            I("s_add_u32", s(sP), s(sP), 1); I("s_cmp_lt_u32", s(sP), 8); I("s_cbranch_scc1", "K1_XL")
            a.label("K1_XF")
            I("s_ff0_i32_b32", s(sT0), s(sT0)); I("s_and_b32", s(sT0), s(sT0), 7)
            I("s_andn2_b32", s(sITEM), s(sITEM), 7); I("s_or_b32", s(sITEM), s(sITEM), s(sT0))
            claim()
            I("v_mov_b32", v(10), s(sITEM)); I("v_mov_b32", v(11), 0)
            I("ds_write_b32", v(11), v(10), mod=f"offset:{L_TK}")
            a.label("K1_X1")
        a.lgkm(0)
        I("s_barrier")
        if G == 0:
            I("s_cmp_lg_u32", s(sFLAG), 1); I("s_cbranch_scc1", "K1_X2")
            I("v_mov_b32", v(41), 0)
            I("ds_read_b32", v(40), v(41), mod=f"offset:{L_TK}")
            a.lgkm(0)
            I("v_readfirstlane_b32", s(sITEM), v(40))
            a.nop(2)
            decode()
            a.label("K1_X2")
        NVM[0] = 0
        stamp(40,41)
        for _ in range(O['kvfirst']):
            if pend: issue_one(*pend.pop(0))
        for i in range(O['wqpre'], 36): wq_load(i)
        for _ in range(O['kvafter']):
            if pend: issue_one(*pend.pop(0))
        I("s_mul_i32", s(sT0), s(sKVH), 256*1152); srd(S_WO, P_WO, s(sT0), 256*1152)
        srd(S_M1, P_W1, None, 9216); srd(S_M2, P_B1, None, 9216); srd(sM3, P_W2, None, 9216)
        I("v_lshrrev_b32", v(5), 5, v(vTID)); I("v_mul_u32_u24", v(5), 72, v(5))
        I("s_mul_i32", s(sT0), s(sB), 1152); I("v_add_u32", v(5), s(sT0), v(5))
        XP = 16
        for k in range(9):
            I("ds_read_b64", vr(XP+2*k, 2), v(5), mod=f"offset:{L_XN+8*k}")
        QA = 34
        stamp(40,41)
        PT = [42, 43, 44, 45, 46, 47]
        a.lgkm(0)
        for ip in range(18):
            a.vm_wait(f"wq{2*ip+1}")
            for _ in range(O['cred']):
                if pend: issue_one(*pend.pop(0))
            w0 = BIG+8*ip; w1 = w0+4
            for half in range(2):
                for r in (2*half, 2*half+1):
                    t0, t1 = PT[2*(r & 1)], PT[2*(r & 1)+1]
                    I("v_perm_b32", v(t0), v(w1+r), v(w0+r), s(sSELLO))
                    I("v_perm_b32", v(t1), v(w1+r), v(w0+r), s(sSELHI))
                for r in (2*half, 2*half+1):
                    t0, t1 = PT[2*(r & 1)], PT[2*(r & 1)+1]
                    if ip == 0:
                        I("v_dot2_f32_bf16", v(QA+2*r), v(t0), v(XP+ip), 0)
                        I("v_dot2_f32_bf16", v(QA+2*r+1), v(t1), v(XP+ip), 0)
                    else:
                        I("v_dot2_f32_bf16", v(QA+2*r), v(t0), v(XP+ip), v(QA+2*r))
                        I("v_dot2_f32_bf16", v(QA+2*r+1), v(t1), v(XP+ip), v(QA+2*r+1))
        stamp(5,6)
        gate_loads()
        for k in range(4):
            I("v_permlane32_swap_b32", v(QA+k), v(QA+k+4))
        for k in range(4):
            I("v_add_f32", v(QA+k), v(QA+k), v(QA+k+4))
        I("v_and_b32", v(5), 31, v(vLANE)); I("v_lshlrev_b32", v(5), 5, v(5))
        I("v_lshrrev_b32", v(6), 5, v(vLANE)); I("v_lshl_add_u32", v(5), v(6), 4, v(5))
        I("s_lshl_b32", s(sT0), s(sW), 10); I("s_add_u32", s(sT0), s(sT0), L_QP); I("v_add_u32", v(5), s(sT0), v(5))
        I("ds_write_b128", v(5), vr(QA))
        verdict()
        if not O['pendlate']:
            while pend: issue_one(*pend.pop(0))
        a.lgkm(0)
        I("s_barrier")
        I("v_lshlrev_b32", v(5), 4, v(vLANE)); I("v_add_u32", v(5), L_QP, v(5))
        I("v_mov_b32", v(6), 0)
        I("ds_read_b32", v(6), v(6), mod=f"offset:{L_TK+4}")
        for w in range(8):
            I("ds_read_b128", vr(BIG+4*w), v(5), mod=f"offset:{1024*w}")
        a.lgkm(8)
        I("v_readfirstlane_b32", s(sT0), v(6))
        a.nop(2)
        I("s_cmp_lg_u32", s(sT0), 0); I("s_cbranch_scc1", "K1_REDO")
        a.lgkm(0)
        for st in (4, 2, 1):
            for w in range(st):
                for k in range(4):
                    I("v_add_f32", v(BIG+4*w+k), v(BIG+4*w+k), v(BIG+4*(w+st)+k))
        I("v_cvt_pk_bf16_f32", v(BIG), v(BIG), v(BIG+1)); I("v_cvt_pk_bf16_f32", v(BIG+1), v(BIG+2), v(BIG+3))
        I("s_lshl_b32", s(sT0), s(sW), 9)
        I("v_lshlrev_b32", v(5), 3, v(vLANE)); I("v_add_u32", v(5), s(sT0), v(5))
        I("ds_write_b64", v(5), vr(BIG, 2), mod=f"offset:{L_QS}")
        I("v_and_b32", v(5), 15, v(vLANE)); I("v_lshlrev_b32", v(5), 4, v(5)); I("v_add_u32", v(5), s(sT0), v(5))
        a.lgkm(0)
        I("ds_read_b128", vr(vQ), v(5), mod=f"offset:{L_QS}")
        I("ds_read_b128", vr(vQ+4), v(5), mod=f"offset:{L_QS+256}")
    def pro_coop():
        import copy
        S_QX = S_WO
        WS0 = BIG+64; XF = WS0+18; AC = 16
        srd(S_QX, P_WS, QX_OFF, 0x30000)
        I("v_bfe_u32", v(5), v(vLANE), 2, 1); I("v_add_u32", v(5), s(sITEM), v(5)); I("v_and_b32", v(5), 7, v(5))
        I("s_and_b32", s(sT0), s(sITEM), 8); I("v_or_b32", v(5), s(sT0), v(5))
        I("v_and_b32", v(13), 3, v(vLANE))
        I("v_lshlrev_b32", v(7), 5, v(5)); I("v_lshl_add_u32", v(7), v(13), 3, v(7))
        I("v_lshrrev_b32", v(40), 3, v(vLANE)); I("s_mul_i32", s(sT0), s(sW), 72); I("v_add_u32", v(40), s(sT0), v(40))
        I("v_lshl_add_u32", v(7), v(40), 13, v(7))
        for i in range(9):
            I("s_mov_b32", s(sRO), i*65536)
            I("buffer_load_dwordx2", vr(WS0+2*i, 2), v(7), sr(S_WQ), s(sRO), mod=f"offen {WMOD}"); a.vm_issue(f"ws{i}")
        I("s_or_b32", s(sT0), s(sW), s(sFLAG)); I("s_cmp_lg_u32", s(sT0), 0); I("s_cbranch_scc1", "K1_C0")
        I("s_xor_b32", s(sT0), s(sTM), KT[0]); I("s_xor_b32", s(sT1), s(sTM+1), KH)
        I("v_mov_b32", v(10), s(sT0)); I("v_mov_b32", v(11), s(sT1))
        I("s_lshl_b32", s(sT0), s(sITEM), 3); I("s_add_u32", s(sT0), s(sT0), 0x20000); I("v_mov_b32", v(14), s(sT0))
        I("s_mov_b64", "exec", 1)
        I("buffer_store_dwordx2", vr(10, 2), v(14), sr(S_QX), 0, mod=f"offen {POLS[OPT['pqs']]}")
        I("s_mov_b64", "exec", -1)
        a.label("K1_C0")
        I("v_lshrrev_b32", v(12), 4, v(vLANE)); I("s_lshl_b32", s(sT0), s(sKVH), 2); I("v_add_u32", v(12), s(sT0), v(12))
        I("v_lshl_add_u32", v(12), v(12), 4, v(5)); I("v_lshlrev_b32", v(12), 6, v(12)); I("v_lshl_add_u32", v(12), v(13), 4, v(12))
        I("v_mov_b32", v(41), KT[1]-KT[0]); I("v_mul_lo_u32", v(13), v(13), v(41)); I("v_add_u32", v(13), KT[0], v(13)); I("v_xor_b32", v(13), s(sTM), v(13))
        I("s_xor_b32", s(sRO+1), s(sTM+1), KH)
        I("v_lshlrev_b32", v(7), 4, v(40))
        I("s_sub_u32", s(sTM), s(sTM), OPT['win']); I("s_subb_u32", s(sTM+1), s(sTM+1), 0)
        first = [pend.pop(0) for _ in range(O['kvpre'])]
        def dot():
            stamp(40,41)
            for i in range(9): I("ds_read_b128", vr(XF+4*i), v(7), mod=f"offset:{L_XF+128*i}")
            U = [40, 41, 42, 43]
            for i in range(9):
                a.vm_wait(f"ws{i}"); a.lgkm(8-i)
                for d in range(2):
                    I("v_lshlrev_b32", v(U[2*d]), 16, v(WS0+2*i+d)); I("v_and_b32", v(U[2*d+1]), s(sMASK), v(WS0+2*i+d))
                for b in range(4):
                    for c in range(4):
                        if i == 0: I("v_mul_f32", v(AC+4*b+c), v(U[c]), v(XF+4*i+b))
                        else: I("v_fmac_f32", v(AC+4*b+c), v(U[c]), v(XF+4*i+b))
            for k in range(8): I("v_permlane32_swap_b32", v(AC+k), v(AC+8+k))
            for k in range(8): I("v_add_f32", v(AC+k), v(AC+k), v(AC+8+k))
            for k in range(4): I("v_permlane16_swap_b32", v(AC+k), v(AC+4+k))
            for k in range(4): I("v_add_f32", v(AC+k), v(AC+k), v(AC+4+k))
            for k in range(4): I("v_add_f32_dpp", v(AC+k), v(AC+k), v(AC+k), mod=f"row_ror:8 {DPPALL}")
            I("v_lshlrev_b32", v(5), 4, v(vLANE)); I("v_add_u32", v(5), L_QP, v(5))
            I("s_lshl_b32", s(sT0), s(sW), 10); I("v_add_u32", v(6), s(sT0), v(5))
            I("ds_write_b128", v(6), vr(AC))
            a.lgkm(0)
            I("s_barrier")
            stamp(40,41)
        I("s_cmp_eq_u32", s(sFLAG), 1); I("s_cbranch_scc1", "K1_CX")
        I("s_cmp_lt_u32", s(sW), OPT['nl']); I("s_cbranch_scc1", "K1_C1")
        sv = (copy.deepcopy(a.vm), ts_n[0])
        for t in first: issue_one(*t)
        stamp(40,41); stamp(40,41)
        I("s_barrier")
        dot()
        if OPT['hold']: I("s_sleep", OPT['hold'])
        I("s_branch", "K1_C4")
        vmH = copy.deepcopy(a.vm)
        a.vm, ts_n[0] = sv
        a.label("K1_CX")
        I("s_cmp_lg_u32", s(sW), 0); I("s_cbranch_scc1", "K1_C1")
        I("s_mov_b32", s(sP), 0)
        I("s_lshr_b32", s(sB), s(sITEM), 3); I("s_lshl_b32", s(sB), s(sB), 6); I("s_add_u32", s(sB), s(sB), 0x20000)
        a.label("K1_CXL")
        I("s_buffer_load_dwordx16", f"s[{sH}:{sH+15}]", sr(S_QX), s(sB), mod="glc")
        I("s_mov_b32", s(sT1), 0)
        a.lgkm(0)
        for e in range(8):
            lo, hi = sH+2*e, sH+2*e+1
            I("s_xor_b32", s(lo), s(lo), KT[0]); I("s_xor_b32", s(hi), s(hi), KH)
            I("s_sub_u32", s(lo), s(lo), s(sTM)); I("s_subb_u32", s(hi), s(hi), s(sTM+1))
            I("s_lshr_b32", s(lo), s(lo), 20); I("s_or_b32", s(lo), s(lo), s(hi))
            I("s_cmp_eq_u32", s(lo), 0); I("s_cselect_b32", s(lo), 1 << e, 0); I("s_or_b32", s(sT1), s(sT1), s(lo))
        I("s_bcnt1_i32_b32", s(sT0), s(sT1)); I("s_cmp_ge_u32", s(sT0), 7); I("s_cbranch_scc1", "K1_CXF")
        I("s_add_u32", s(sP), s(sP), 1); I("s_cmp_lt_u32", s(sP), 40); I("s_cbranch_scc1", "K1_CXL")
        a.label("K1_CXF")
        I("s_ff0_i32_b32", s(sT0), s(sT1)); I("s_and_b32", s(sT0), s(sT0), 7)
        I("s_andn2_b32", s(sITEM), s(sITEM), 7); I("s_or_b32", s(sITEM), s(sITEM), s(sT0))
        claim()
        I("v_mov_b32", v(10), s(sITEM)); I("v_mov_b32", v(11), 0)
        I("ds_write_b32", v(11), v(10), mod=f"offset:{L_TK}")
        a.label("K1_C1")
        do_ln()
        I("v_mul_u32_u24", v(5), 144, v(vLANE)); I("s_and_b32", s(sT0), s(sW), 3); I("s_lshl_b32", s(sT0), s(sT0), 2); I("v_add_u32", v(5), s(sT0), v(5))
        for k in range(9): I("ds_write_b32", v(5), v(XN[k]), mod=f"offset:{L_XF+16*k}")
        a.lgkm(0)
        I("s_barrier")
        I("s_cmp_lg_u32", s(sFLAG), 1); I("s_cbranch_scc1", "K1_C2")
        I("v_mov_b32", v(41), 0)
        I("ds_read_b32", v(40), v(41), mod=f"offset:{L_TK}")
        a.lgkm(0)
        I("v_readfirstlane_b32", s(sITEM), v(40))
        a.nop(2)
        decode()
        a.label("K1_C2")
        NVM[0] = 0
        dot()
        I("s_cmp_lg_u32", s(sW), OPT['sw']); I("s_cbranch_scc1", "K1_C3")
        for w in range(8): I("ds_read_b128", vr(XF+4*w), v(5), mod=f"offset:{1024*w}")
        a.lgkm(0)
        for st in (4, 2, 1):
            for w in range(st):
                for k in range(4): I("v_add_f32", v(XF+4*w+k), v(XF+4*w+k), v(XF+4*(w+st)+k))
        I("v_cvt_pk_bf16_f32", v(XF), v(XF), v(XF+1)); I("v_cvt_pk_bf16_f32", v(XF+1), v(XF+2), v(XF+3))
        I("v_mov_b32", v(XF+2), v(13)); I("v_mov_b32", v(XF+3), s(sRO+1))
        I("s_mov_b32", "exec_lo", "0x00ff00ff"); I("s_mov_b32", "exec_hi", "0x00ff00ff")
        I("buffer_store_dwordx4", vr(XF), v(12), sr(S_QX), 0, mod=f"offen {POLS[OPT['pqs']]}")
        I("s_mov_b64", "exec", -1)
        I("s_branch", "K1_C3b")
        a.label("K1_C3")
        if OPT['hold']: I("s_sleep", OPT['hold'])
        a.label("K1_C3b")
        for t in first: issue_one(*t)
        assert a.vm == vmH, (a.vm, vmH)
        a.label("K1_C4")
        for _ in range(O['kvmid']):
            if pend: issue_one(*pend.pop(0))
        srd(S_M1, P_W1, None, 9216); srd(S_M2, P_B1, None, 9216); srd(sM3, P_W2, None, 9216)
        stamp(40,41)
        I("s_lshl_b32", s(sT0), s(sKVH), 2); I("s_add_u32", s(sT0), s(sT0), s(sB)); I("s_lshl_b32", s(sT0), s(sT0), 10)
        I("s_lshl_b32", s(sT1), s(sW), 7); I("s_add_u32", s(sRO), s(sT0), s(sT1))
        I("s_mov_b32", s(sRO+1), 0)
        for rec in range(2):
            a.label(f"K1_QL{rec}")
            I("s_buffer_load_dwordx16", f"s[{sH}:{sH+15}]", sr(S_QX), s(sRO), mod="glc")
            I("s_add_u32", s(sRO+1), s(sRO+1), 1); I("s_cmp_gt_u32", s(sRO+1), OPT['qto']); I("s_cbranch_scc1", "K1_QF")
            I("s_mov_b32", s(sT1), 0)
            a.lgkm(0)
            for t in range(4):
                lo, hi = sH+4*t+2, sH+4*t+3
                I("s_xor_b32", s(lo), s(lo), KT[t]); I("s_xor_b32", s(hi), s(hi), KH)
                I("s_sub_u32", s(lo), s(lo), s(sTM)); I("s_subb_u32", s(hi), s(hi), s(sTM+1))
                I("s_lshr_b32", s(lo), s(lo), 20); I("s_or_b32", s(sT1), s(sT1), s(lo)); I("s_or_b32", s(sT1), s(sT1), s(hi))
            I("s_cmp_lg_u32", s(sT1), 0); I("s_cbranch_scc1", f"K1_QL{rec}")
            for t in range(4):
                for d in range(2): I("v_writelane_b32", v(14), s(sH+4*t+d), 8*rec+2*t+d)
            if rec == 0: I("s_add_u32", s(sRO), s(sRO), 64)
        I("s_mov_b32", s(sRO+1), 0)
        I("s_branch", "K1_QD")
        a.label("K1_QF")
        a.lgkm(0)
        I("s_mov_b32", s(sRO+1), 512)
        a.label("K1_QD")
        I("v_lshlrev_b32", v(5), 2, v(vLANE)); I("s_lshl_b32", s(sT0), s(sW), 6); I("v_add_u32", v(5), s(sT0), v(5))
        I("s_mov_b64", "exec", 0xffff)
        I("ds_write_b32", v(5), v(14), mod=f"offset:{L_QS}")
        I("s_mov_b64", "exec", -1)
        I("s_lshl_b32", s(sT0), s(sW), 2); I("v_mov_b32", v(5), s(sT0)); I("v_mov_b32", v(6), s(sRO+1))
        I("ds_write_b32", v(5), v(6), mod=f"offset:{L_TK+8}")
        stamp(40,41)
        gate_loads()
        verdict()
        I("s_mul_i32", s(sT0), s(sKVH), 256*1152); srd(S_WO, P_WO, s(sT0), 256*1152)
        a.lgkm(0)
        I("s_barrier")
        I("v_min_u32", v(6), 8, v(vLANE)); I("v_lshlrev_b32", v(6), 2, v(6))
        I("ds_read_b32", v(6), v(6), mod=f"offset:{L_TK+4}")
        I("v_and_b32", v(5), 15, v(vLANE)); I("v_lshlrev_b32", v(5), 4, v(5))
        I("ds_read_b128", vr(vQ), v(5), mod=f"offset:{L_QS}")
        I("ds_read_b128", vr(vQ+4), v(5), mod=f"offset:{L_QS+256}")
        a.lgkm(2)
        I("v_cmp_ne_u32", "vcc", 0, v(6))
        I("v_readfirstlane_b32", s(sT0), v(6))
        a.nop(2)
        I("s_cbranch_vccnz", "K1_REDO2")
    if G == 0: pro_self()
    else: pro_coop()
    while pend: issue_one(*pend.pop(0))
    for k in range(16): I("v_mov_b32", v(vACC+k), 0)
    I("v_mov_b32", v(vM), f32(-1e30)); I("v_mov_b32", v(vL), 0)
    a.lgkm(0)

    stamp(5,6)
    gW1f = GR+16; gB1f = GR+25; gY = GR+34; gT = GR+43
    vC1 = GR+15
    def gate_prep():
        XX = [gW1f+i for i in range(9)]; HH = [gB1f+i for i in range(9)]
        I("v_mul_u32_u24", v(gT+12), 18, v(vLANE))
        I("s_mul_i32", s(sT0), s(sB), 1152); I("v_add_u32", v(gT+12), s(sT0), v(gT+12))
        for k in range(9): I("v_mov_b32", v(XX[k]), 0)
        for k in range(9): I("ds_read_u16_d16_hi", v(XX[k]), v(gT+12), mod=f"offset:{L_XN+2*k}")
        a.lgkm(0)
        layernorm(XX, HH, [gT+i for i in range(6)])
        for k in range(9): I("v_readlane_b32", s(sH+k), v(HH[k]), s(sP))
        a.vm_wait("gw")
        I("v_mov_b32", v(vC1), f32(C1))
        for q in range(4):
            I("v_lshlrev_b32", v(gW1f+2*q), 16, v(gW1r+q)); I("v_and_b32", v(gW1f+2*q+1), s(sMASK), v(gW1r+q))
            I("v_lshlrev_b32", v(gB1f+2*q), 16, v(gB1r+q)); I("v_and_b32", v(gB1f+2*q+1), s(sMASK), v(gB1r+q))
        I("v_lshlrev_b32", v(gW1f+8), 16, v(gW1x)); I("v_lshlrev_b32", v(gB1f+8), 16, v(gB1x))
        I("v_lshlrev_b32", v(gW2x), 16, v(gW2x))
    def gelu_list(U, TT):
        for u, t in zip(U, TT): I("v_mul_f32", v(t), v(u), v(u))
        for u, t in zip(U, TT): I("v_fmaak_f32", v(t), v(t), v(vC1), f32(C0))
        for u, t in zip(U, TT): I("v_mul_f32", v(t), v(t), v(u))
        for u, t in zip(U, TT): I("v_exp_f32", v(t), "-"+v(t))
        for u, t in zip(U, TT): I("v_add_f32", v(t), 1.0, v(t))
        for u, t in zip(U, TT): I("v_rcp_f32", v(t), v(t))
        for u, t in zip(U, TT): I("v_mul_f32", v(u), v(u), v(t))
    def gate_col(k):
        if OPT['nogate']: return
        for hh in range(2):
            U = [gT+i for i in range(4)]; TT = [gT+4+i for i in range(4)]; W = [gT+8, gT+9]
            for i in range(4): I("v_mul_f32", v(U[i]), s(sH+k), v(gW1f+4*hh+i))
            bfr2(U[0], U[1], W[0]); bfr2(U[2], U[3], W[1])
            for i in range(4): I("v_add_f32", v(U[i]), v(U[i]), v(gB1f+4*hh+i))
            bfr2(U[0], U[1], W[0]); bfr2(U[2], U[3], W[1])
            gelu_list(U, TT)
            I("v_cvt_pk_bf16_f32", v(W[0]), v(U[0]), v(U[1])); I("v_cvt_pk_bf16_f32", v(W[1]), v(U[2]), v(U[3]))
            I("v_dot2_f32_bf16", v(gY+k), v(W[0]), v(gW2r+2*hh), 0 if hh == 0 else v(gY+k))
            I("v_dot2_f32_bf16", v(gY+k), v(W[1]), v(gW2r+2*hh+1), v(gY+k))
    def gate_fin():
        for grp in ((0, 1, 2, 3), (4, 5, 6, 7), (8,)):
            n = len(grp)
            U = [gT+i for i in range(n)]; TT = [gT+4+i for i in range(n)]; W = [gT+8, gT+9]
            for i, k in enumerate(grp): I("v_mul_f32", v(U[i]), s(sH+k), v(gW1f+8))
            def rnd():
                if n == 4: bfr2(U[0], U[1], W[0]); bfr2(U[2], U[3], W[1])
                else: bfr1(U[0])
            rnd()
            for i in range(n): I("v_add_f32", v(U[i]), v(U[i]), v(gB1f+8))
            rnd()
            gelu_list(U, TT)
            rnd()
            for i, k in enumerate(grp): I("v_fmac_f32", v(gY+k), v(U[i]), v(gW2x))
        for n in (8, 4, 2, 1):
            for k in range(9):
                I("v_add_f32_dpp", v(gY+k), v(gY+k), v(gY+k), mod=f"row_ror:{n} {DPPALL}")
        for (sw) in ("v_permlane16_swap_b32", "v_permlane32_swap_b32"):
            for k in range(9): I("v_mov_b32", v(gT+k), v(gY+k))
            for k in range(9): I(sw, v(gY+k), v(gT+k))
            for k in range(9): I("v_add_f32", v(gY+k), v(gY+k), v(gT+k))
        I("s_lshl_b32", s(sT0), s(sW), 6); I("v_mov_b32", v(gT), s(sT0))
        for k in range(9):
            I("ds_write_b32", v(gT), v(gY+k), mod=f"offset:{L_GP+4*k}")

    wo_loads = [('m', k) for k in range(32)] + [('l', q) for q in range(4)]
    vWOM, vWOL = 46, 47
    def wo_addr():
        I("s_mul_i32", s(sT0), s(sW), 32*1152)
        I("v_lshlrev_b32", v(vWOM), 4, v(vLANE)); I("v_add_u32", v(vWOM), s(sT0), v(vWOM))
        I("v_lshrrev_b32", v(5), 3, v(vLANE)); I("v_mul_u32_u24", v(5), 4*1152, v(5))
        I("v_and_b32", v(6), 7, v(vLANE)); I("v_lshl_add_u32", v(5), v(6), 4, v(5))
        I("s_add_u32", s(sT0), s(sT0), 1024); I("v_add_u32", v(vWOL), s(sT0), v(5))
    def wo_issue(idx):
        kind, k = wo_loads[idx]
        if OPT['nowo']: return
        room()
        if kind == 'm':
            I("s_mov_b32", s(sT1), (k//3)*3456)
            I("buffer_load_dwordx4", vr(BIG+4*k), v(vWOM), sr(S_WO), s(sT1), mod=f"offen offset:{(k%3)*1152} {WOMOD}")
        else:
            I("buffer_load_dwordx4", vr(BIG+128+4*k), v(vWOL), sr(S_WO), 0, mod=f"offen offset:{k*1152} {WOMOD}")
        a.vm_issue(f"wo{idx}")
    WP = {}
    free = [45]
    def wo_perm(pair):
        a.vm_wait(f"wo{2*pair+1}")
        r0 = BIG+8*pair; r1 = r0+4
        for r in range(4):
            f = free.pop()
            I("v_perm_b32", v(f), v(r1+r), v(r0+r), s(sSELLO))
            I("v_perm_b32", v(r1+r), v(r1+r), v(r0+r), s(sSELHI))
            WP[(pair, 2*r)] = f; WP[(pair, 2*r+1)] = r1+r
            free.append(r0+r)
    wo_addr()

    gate_next = 0; wo_next = 0; perm_next = 0; wo_hist = {}
    gate_done = False
    PTm = [40, 41, 42, 43]; vPP = 44
    for n in range(16):
        kb = tile_regs('K', n); vb = tile_regs('V', n)
        if OPT['tbar'] and n >= OPT['tb0'] and n % OPT['tbar'] == 0: I("s_barrier")
        if n == OPT['stt']:
            I("s_cmp_lg_u32", s(sW), 0); I("s_cbranch_scc1", "K1_S9"+sfx)
            I("s_lshl_b32", s(sT0), s(sXCC), 5); I("s_add_u32", s(sT0), s(sT0), 8)
            I("v_mov_b32", v(6), s(sT0)); I("v_mov_b32", v(5), 1)
            I("s_waitcnt", "vmcnt(0)")
            I("s_mov_b64", "exec", 1)
            I("buffer_atomic_add", v(5), v(6), sr(S_X), 0, mod="offen")
            I("s_mov_b64", "exec", -1)
            a.label("K1_S9"+sfx)
        if OPT['prio'] == 1 and n % 4 == 0: I("s_setprio", 3 - n//4)
        if OPT['prio'] == 2 and n in (0, 6, 10, 13): I("s_setprio", {0: 3, 6: 2, 10: 1, 13: 0}[n])
        if OPT['prio'] == 3 and n in (0, 8, 12, 14): I("s_setprio", {0: 3, 8: 2, 12: 1, 14: 0}[n])
        if OPT['otouch'] and n == OPT['otouch']:
            I("s_mul_i32", s(sT0), s(sBP), 18); srd(S_M1, P_OUT, s(sT0), 18)
            I("v_mov_b32", v(5), 0)
            I("buffer_load_ushort", v(5), v(5), sr(S_M1), 0, mod="offen"); a.vm_issue("misc")
        a.vm_wait(f"K{n}")
        stamp(5,6)
        if n == 15:
            srd(S_M1, P_B2, None, 2)
            I("v_mov_b32", v(7), 0)
            I("buffer_load_ushort", v(192), v(7), sr(S_M1), 0, mod="offen"); a.vm_issue("misc")
            if OPT['fused']:
                I("s_mul_i32", s(sT0), s(sBP), 18); srd(S_X, P_X, s(sT0), 18)
                I("v_lshlrev_b32", v(196), 1, v(vLANE))
                I("buffer_load_ushort", v(193), v(196), sr(S_X), 0, mod="offen"); a.vm_issue("misc")
                srd(S_M2, P_DBG, None, 256)
                I("v_lshlrev_b32", v(195), 2, v(vLANE))
                I("buffer_load_dword", v(194), v(195), sr(S_M2), 0, mod="offen sc1"); a.vm_issue("misc")
        nxt = (n+4 if n < 2 else (None if n < 4 else n+2)) if O['stage'] else n+2
        if nxt is not None and nxt >= 16: nxt = None
        if O['stage'] == 1 and n in (2, 3):
            I("s_lshl_b32", s(sT1), s(sW), 14); I("s_add_u32", s(sT1), s(sT1), L_ST)
            I("v_lshlrev_b32", v(7), 4, v(vLANE)); I("v_add_u32", v(7), s(sT1), v(7))
            read_tile_lds('K', n)
            a.vm_wait(f"V{n}")
            read_tile_lds('V', n)
            a.lgkm(4)
        for r in range(4):
            for i in range(4):
                for h in range(2):
                    d = vS+4*h+i
                    I("v_dot2_f32_bf16", v(d), v(kb+4*i+r), v(vQ+4*h+r), 0 if r == 0 else v(d))
        if nxt is not None: issue_tile('K', nxt)
        for h in range(2):
            for e in range(2):
                d = vS+4*h+e
                I("v_add_f32_dpp", v(d), v(d), v(d), mod="row_ror:8 row_mask:0xf bank_mask:0x3")
        for h in range(2):
            for e in range(2):
                d = vS+4*h+e; sft = vS+4*h+2+e
                I("v_add_f32_dpp", v(d), v(sft), v(sft), mod="row_ror:8 row_mask:0xf bank_mask:0xc")
        for e in range(2):
            d = vS+e
            I("v_add_f32_dpp", v(d), v(d), v(d), mod="row_shl:4 row_mask:0xf bank_mask:0x5")
        for e in range(2):
            d = vS+e; sft = vS+4+e
            I("v_add_f32_dpp", v(d), v(sft), v(sft), mod="row_shr:4 row_mask:0xf bank_mask:0xa")
        for qp in ("[1,0,3,2]", "[2,3,0,1]"):
            for e in range(2):
                d = vS+e
                I("v_add_f32_dpp", v(d), v(d), v(d), mod=f"quad_perm:{qp} {DPPALL}")
        A, B, W, TM, AL = vS, vS+1, vS+2, vS+3, vS+4
        bfr2(A, B, W)
        I("v_mul_f32", v(A), s(sSCALE), v(A)); I("v_mul_f32", v(B), s(sSCALE), v(B))
        bfr2(A, B, W)
        I("v_max_f32", v(TM), v(A), v(B))
        I("v_max_f32_dpp", v(TM), v(TM), v(TM), mod=f"row_ror:8 {DPPALL}")
        I("v_mul_f32", v(TM), s(sLOG2E), v(TM))
        I("v_max_f32", v(TM), v(TM), v(vM))
        I("v_sub_f32", v(AL), v(vM), v(TM))
        I("v_fma_f32", v(A), v(A), s(sLOG2E), "-"+v(TM))
        I("v_fma_f32", v(B), v(B), s(sLOG2E), "-"+v(TM))
        I("v_exp_f32", v(AL), v(AL)); I("v_exp_f32", v(A), v(A)); I("v_exp_f32", v(B), v(B))
        I("v_mov_b32", v(vM), v(TM))
        I("v_fma_f32", v(vL), v(vL), v(AL), v(A))
        I("v_cvt_pk_bf16_f32", v(vPP), v(A), v(B))
        I("v_add_f32", v(vL), v(vL), v(B))
        for h in range(2):
            for k in range(8):
                d = vACC+8*h+k
                I("v_mul_f32_dpp", v(d), v(AL), v(d), mod=f"row_newbcast:{4*h} {DPPALL}")
        a.vm_wait(f"V{n}")
        if O['stage'] == 1 and n in (2, 3): a.lgkm(0)
        for j in range(2):
            for rr in range(2):
                for r in (2*rr, 2*rr+1):
                    t0, t1 = PTm[2*(r & 1)], PTm[2*(r & 1)+1]
                    I("v_perm_b32", v(t0), v(vb+4*(2*j+1)+r), v(vb+4*(2*j)+r), s(sSELLO))
                    I("v_perm_b32", v(t1), v(vb+4*(2*j+1)+r), v(vb+4*(2*j)+r), s(sSELHI))
                for h in range(2):
                    for r in (2*rr, 2*rr+1):
                        t0, t1 = PTm[2*(r & 1)], PTm[2*(r & 1)+1]
                        I("v_dot2c_f32_bf16_dpp", v(vACC+8*h+2*r), v(vPP), v(t0), mod=f"row_newbcast:{4*(2*j+h)} {DPPALL}")
                        I("v_dot2c_f32_bf16_dpp", v(vACC+8*h+2*r+1), v(vPP), v(t1), mod=f"row_newbcast:{4*(2*j+h)} {DPPALL}")
        if nxt is not None: issue_tile('V', nxt)
        if n >= O['gate_start'] and not gate_done:
            if gate_next == 0: gate_prep()
            for _ in range(O['gate_per_tile']):
                if gate_next < 9:
                    gate_col(gate_next); gate_next += 1
            if gate_next == 9:
                gate_fin(); gate_done = True
        if n >= O['wo_start']:
            lim = wo_hist.get(n-2, 0)
            while perm_next < 18 and 2*perm_next+1 < lim:
                wo_perm(perm_next); perm_next += 1
            for _ in range(O['wo_per_tile']):
                if wo_next < 36 and (wo_next < 20 or gate_done) and (wo_next >= 16 or n >= 3 or not O['stage']):
                    wo_issue(wo_next); wo_next += 1
            wo_hist[n] = wo_next
            if n == 15:
                while perm_next < 18:
                    wo_perm(perm_next); perm_next += 1
    assert wo_next == 36 and perm_next == 18, (wo_next, perm_next)

    stamp(5,6)
    T0, T1, T2 = vS, vS+1, vS+2
    I("v_add_f32_dpp", v(vL), v(vL), v(vL), mod=f"row_ror:8 {DPPALL}")
    I("v_mov_b32", v(T0), v(vM))
    allred("v_max_f32", T0, T1, rows=False)
    I("v_sub_f32", v(T2), v(vM), v(T0)); I("v_exp_f32", v(T2), v(T2))
    I("v_mul_f32", v(vL), v(vL), v(T2))
    for h in range(2):
        for k in range(8):
            d = vACC+8*h+k
            I("v_mul_f32_dpp", v(d), v(T2), v(d), mod=f"row_newbcast:{4*h} {DPPALL}")
    allred("v_add_f32", vL, T1, rows=False)
    for k in range(8): I("v_permlane32_swap_b32", v(vACC+k), v(vACC+8+k))
    for k in range(8): I("v_add_f32", v(vACC+k), v(vACC+k), v(vACC+8+k))
    for k in range(4): I("v_permlane16_swap_b32", v(vACC+k), v(vACC+4+k))
    for k in range(4): I("v_add_f32", v(vACC+k), v(vACC+k), v(vACC+4+k))
    I("v_and_b32", v(5), 15, v(vLANE)); I("v_lshlrev_b32", v(5), 5, v(5))
    I("v_bfe_u32", v(6), v(vLANE), 4, 1); I("v_lshl_add_u32", v(5), v(6), 4, v(5))
    I("v_lshrrev_b32", v(6), 5, v(vLANE)); I("v_lshl_add_u32", v(5), v(6), 9, v(5))
    I("s_lshl_b32", s(sT0), s(sW), 10); I("s_add_u32", s(sT0), s(sT0), L_OP); I("v_add_u32", v(5), s(sT0), v(5))
    I("ds_write_b128", v(5), vr(vACC))
    I("v_bfe_u32", v(6), v(vLANE), 2, 1); I("v_lshlrev_b32", v(6), 5, v(6))
    I("s_lshl_b32", s(sT0), s(sW), 2); I("v_add_u32", v(6), s(sT0), v(6))
    I("ds_write_b32", v(6), v(T0), mod=f"offset:{L_ML}")
    I("ds_write_b32", v(6), v(vL), mod=f"offset:{L_ML+64}")
    a.lgkm(0)
    I("s_barrier")
    stamp(5,6)
    if OPT['dbgts']:
        I("s_memrealtime", "s[98:99]"); a.lgkm(0); I("s_mov_b32", "s3", "s98")
    R = 208
    I("v_lshrrev_b32", v(5), 3, v(vLANE)); I("v_lshlrev_b32", v(5), 4, v(5))
    I("s_lshl_b32", s(sT0), s(sW), 7); I("s_add_u32", s(sT0), s(sT0), L_OP); I("v_add_u32", v(5), s(sT0), v(5))
    I("s_lshr_b32", s(sT1), s(sW), 2); I("s_lshl_b32", s(sT1), s(sT1), 5); I("v_mov_b32", v(6), s(sT1))
    MM = R+32; LL = R+40
    I("ds_read_b128", vr(MM), v(6), mod=f"offset:{L_ML}"); I("ds_read_b128", vr(MM+4), v(6), mod=f"offset:{L_ML+16}")
    I("ds_read_b128", vr(LL), v(6), mod=f"offset:{L_ML+64}"); I("ds_read_b128", vr(LL+4), v(6), mod=f"offset:{L_ML+80}")
    for w in range(8):
        I("ds_read_b128", vr(R+4*w), v(5), mod=f"offset:{1024*w}")
    a.lgkm(10)
    MX = vS; LS = vS+1; O = vS+2
    I("v_max3_f32", v(MX), v(MM), v(MM+1), v(MM+2)); I("v_max3_f32", v(MX), v(MX), v(MM+3), v(MM+4))
    I("v_max3_f32", v(MX), v(MX), v(MM+5), v(MM+6)); I("v_max_f32", v(MX), v(MX), v(MM+7))
    for w in range(8): I("v_sub_f32", v(MM+w), v(MM+w), v(MX))
    for w in range(8): I("v_exp_f32", v(MM+w), v(MM+w))
    a.lgkm(8)
    I("v_mul_f32", v(LS), v(MM), v(LL))
    for w in range(1, 8): I("v_fmac_f32", v(LS), v(MM+w), v(LL+w))
    a.lgkm(0)
    for w in range(8):
        for q in range(4):
            if w == 0: I("v_mul_f32", v(O+q), v(MM), v(R+q))
            else: I("v_fmac_f32", v(O+q), v(MM+w), v(R+4*w+q))
    P01, P23 = vS+6, vS+7
    I("v_cvt_pk_bf16_f32", v(P01), v(O), v(O+1)); I("v_cvt_pk_bf16_f32", v(P23), v(O+2), v(O+3))
    for rr in range(8):
        I("v_readlane_b32", s(sH+2*rr), v(P01), 8*rr); I("v_readlane_b32", s(sH+2*rr+1), v(P23), 8*rr)
    I("s_lshr_b32", s(sT1), s(sW), 2); I("s_lshl_b32", s(sT1), s(sT1), 3); I("v_mov_b32", v(6), s(sT1))
    I("ds_write_b64", v(6), vr(MX, 2), mod=f"offset:{L_ML2}")
    TL = vACC+8; TMn = vACC
    for c in range(8): I("v_dot2_f32_bf16", v(TL+c), v(WP[(16, c)]), v(P01), 0)
    for c in range(8): I("v_dot2_f32_bf16", v(TL+c), v(WP[(17, c)]), v(P23), v(TL+c))
    for k in range(16):
        for c in range(8):
            I("v_dot2_f32_bf16", v(TMn+c), v(WP[(k, c)]), s(sH+k), 0 if k == 0 else v(TMn+c))
    for k in range(4): I("v_permlane32_swap_b32", v(TL+k), v(TL+4+k))
    for k in range(4): I("v_add_f32", v(TL+k), v(TL+k), v(TL+4+k))
    for k in range(2): I("v_permlane16_swap_b32", v(TL+k), v(TL+2+k))
    for k in range(2): I("v_add_f32", v(TL+k), v(TL+k), v(TL+2+k))
    I("v_add_f32_dpp", v(TL), v(TL), v(TL), mod="row_ror:8 row_mask:0xf bank_mask:0x3")
    I("v_add_f32_dpp", v(TL), v(TL+1), v(TL+1), mod="row_ror:8 row_mask:0xf bank_mask:0xc")
    I("s_mul_i32", s(sT0), s(sW), 2304)
    I("v_and_b32", v(5), 7, v(vLANE)); I("v_lshlrev_b32", v(5), 5, v(5))
    I("v_lshrrev_b32", v(6), 3, v(vLANE)); I("v_lshl_add_u32", v(5), v(6), 2, v(5)); I("v_add_u32", v(5), s(sT0), v(5))
    I("v_lshlrev_b32", v(6), 5, v(vLANE)); I("v_add_u32", v(6), s(sT0), v(6))
    I("ds_write_b128", v(6), vr(TMn), mod=f"offset:{L_TP}")
    I("ds_write_b128", v(6), vr(TMn+4), mod=f"offset:{L_TP+16}")
    I("ds_write_b32", v(5), v(TL), mod=f"offset:{L_TP+2048}")
    stamp(7,40)
    a.lgkm(0)
    I("s_barrier")
    stamp(5,6)
    I("s_cmp_ge_u32", s(sW), 5); I("s_cbranch_scc1", "K1_W5"+sfx)
    I("v_cmp_gt_u32", "vcc", 288, v(vTID)); I("s_and_saveexec_b64", "s[96:97]", "vcc")
    I("v_lshlrev_b32", v(5), 4, v(vTID))
    I("v_cmp_le_u32", "vcc", 144, v(vTID)); I("v_mov_b32", v(7), 6912); I("v_cndmask_b32", v(6), 0, v(7), "vcc")
    I("v_add_u32", v(6), v(6), v(5))
    for w in range(4): I("ds_read_b128", vr(R+4*w), v(6), mod=f"offset:{L_TP+2304*w}")
    a.lgkm(0)
    for k in range(4):
        I("v_add_f32", v(R+k), v(R+k), v(R+4+k)); I("v_add_f32", v(R+8+k), v(R+8+k), v(R+12+k))
    for k in range(4): I("v_add_f32", v(R+k), v(R+k), v(R+8+k))
    I("buffer_store_dwordx4", vr(R), v(5), sr(S_WS), 0, mod="offen "+(STMOD if OPT['fused'] else ""))
    I("s_branch", "K1_FIN"+sfx)
    a.label("K1_W5"+sfx)
    I("s_cmp_lg_u32", s(sW), 5); I("s_cbranch_scc1", "K1_W6"+sfx)
    I("s_mov_b64", "exec", 1)
    I("v_mov_b32", v(5), 0)
    I("ds_read_b128", vr(R), v(5), mod=f"offset:{L_ML2}")
    a.lgkm(0)
    I("s_movk_i32", s(sT0), 4608)
    I("buffer_store_dwordx4", vr(R), v(5), sr(S_WS), s(sT0), mod="offen "+(STMOD if OPT['fused'] else ""))
    I("s_branch", "K1_FIN"+sfx)
    a.label("K1_W6"+sfx)
    I("s_cmp_lg_u32", s(sW), 6); I("s_cbranch_scc1", "K1_FIN"+sfx)
    I("s_mov_b64", "exec", 0x1ff)
    I("v_lshlrev_b32", v(5), 2, v(vLANE))
    for w in range(8): I("ds_read_b32", v(R+w), v(5), mod=f"offset:{L_GP+64*w}")
    a.lgkm(0)
    for st in (4, 2, 1):
        for w in range(st): I("v_add_f32", v(R+w), v(R+w), v(R+w+st))
    bfr1(R)
    I("s_waitcnt", "vmcnt(0)")
    I("v_lshlrev_b32", v(R+8), 16, v(192))
    I("v_add_f32", v(R), v(R), v(R+8)); bfr1(R)
    I("v_mul_f32", v(R+1), s(sLOG2E), v(R)); I("v_exp_f32", v(R+1), "-"+v(R+1))
    I("v_add_f32", v(R+1), 1.0, v(R+1)); I("v_rcp_f32", v(R+2), v(R+1))
    I("v_mul_f32", v(R+3), v(R), v(R+2))
    I("v_fma_f32", v(R+4), "-"+v(R+3), v(R+1), v(R)); I("v_fma_f32", v(R+3), v(R+4), v(R+2), v(R+3))
    bfr1(R+3)
    if not OPT['fused']:
        I("s_mul_i32", s(sT0), s(sBP), 36); I("s_add_u32", s(sT0), s(sT0), G_OFF)
        srd(S_M2, P_WS, s(sT0), 36)
        I("buffer_store_dword", v(R+3), v(5), sr(S_M2), 0, mod="offen")
    else:
        I("v_mov_b32", v(197), v(R+3))
        I("s_mov_b64", "exec", -1)
        I("v_mul_u32_u24", v(5), TSTRIDE, v(vLANE))
        I("s_mul_i32", s(sT1), s(sP), 36); I("v_add_u32", v(6), s(sT1), v(5))
        I("s_mul_i32", s(sT0), s(sB), 64*TSTRIDE); srd(S_WS, P_WS, s(sT0), 64*TSTRIDE)
        I("s_mul_i32", s(sT0), s(sBP), 18); srd(S_M1, P_OUT, s(sT0), 18)
        I("v_and_b32", v(7), 7, v(vLANE)); I("v_cmp_eq_u32", "s[96:97]", 2, v(7))
        I("s_mov_b32", s(sFLAG), 0)
        a.label("K1_ST"+sfx)
        I("v_cndmask_b32", v(198), 0, v(194), "s[96:97]")
        allred("v_add_u32", 198, 199)
        I("v_readfirstlane_b32", s(sT0), v(198))
        a.nop(2)
        I("s_cmp_eq_u32", s(sT0), 256); I("s_cbranch_scc1", "K1_STOK"+sfx)
        I("s_add_u32", s(sFLAG), s(sFLAG), 1); I("s_cmp_gt_u32", s(sFLAG), 20000); I("s_cbranch_scc1", "K1_STOK"+sfx)
        I("s_sleep", 16)
        I("buffer_load_dword", v(194), v(195), sr(S_M2), 0, mod="offen sc1")
        I("s_waitcnt", "vmcnt(0)")
        I("s_branch", "K1_ST"+sfx)
        a.label("K1_STOK"+sfx)
        I("s_mov_b64", "s[96:97]", -1)
        I("s_movk_i32", s(sT1), 4608)
        a.label("K1_PL"+sfx)
        I("s_mov_b64", "exec", "s[96:97]")
        LM = "sc1"
        I("buffer_load_dwordx4", vr(R+24), v(5), sr(S_WS), s(sT1), mod=f"offen {LM}")
        I("buffer_load_dwordx4", vr(R), v(6), sr(S_WS), 0, mod=f"offen {LM}")
        I("buffer_load_dwordx4", vr(R+4), v(6), sr(S_WS), 0, mod=f"offen offset:16 {LM}")
        I("buffer_load_dword", v(R+8), v(6), sr(S_WS), 0, mod=f"offen offset:32 {LM}")
        I("buffer_load_dwordx4", vr(R+12), v(6), sr(S_WS), 0, mod=f"offen offset:2304 {LM}")
        I("buffer_load_dwordx4", vr(R+16), v(6), sr(S_WS), 0, mod=f"offen offset:2320 {LM}")
        I("buffer_load_dword", v(R+20), v(6), sr(S_WS), 0, mod=f"offen offset:2336 {LM}")
        I("s_waitcnt", "vmcnt(0)")
        regs = [R+k for k in range(9)] + [R+12+k for k in range(9)] + [R+24+k for k in range(4)]
        I("v_max3_u32", v(198), v(regs[0]), v(regs[1]), v(regs[2]))
        I("v_max3_u32", v(199), v(regs[3]), v(regs[4]), v(regs[5]))
        for k in range(6, 22, 4):
            I("v_max3_u32", v(198), v(198), v(regs[k]), v(regs[k+1]))
            I("v_max3_u32", v(199), v(199), v(regs[k+2]), v(regs[k+3]))
        I("v_max_u32", v(198), v(198), v(199))
        I("v_cmp_eq_u32", "s[96:97]", -1, v(198))
        a.nop(2)
        I("s_cmp_eq_u64", "s[96:97]", 0); I("s_cbranch_scc1", "K1_PD"+sfx)
        I("s_add_u32", s(sFLAG), s(sFLAG), 1); I("s_cmp_gt_u32", s(sFLAG), 20000); I("s_cbranch_scc1", "K1_PD"+sfx)
        I("s_bcnt1_i32_b64", s(sT0), "s[96:97]"); I("s_cmp_le_u32", s(sT0), OPT['thr']); I("s_cbranch_scc1", "K1_PS"+sfx)
        I("s_sleep", OPT['slp_l'])
        a.label("K1_PS"+sfx)
        if OPT['slp_s']: I("s_sleep", OPT['slp_s'])
        I("s_branch", "K1_PL"+sfx)
        a.label("K1_PD"+sfx)
        I("s_mov_b64", "exec", -1)
        stamp(198,199)
        fin_math(R, 197, 193, vLANE)
        I("s_mov_b64", "exec", 0x1ff)
        I("buffer_store_short", v(R), v(196), sr(S_M1), 0, mod="offen")
        if OPT['dbgts']:
            I("s_mov_b64", "exec", 1)
            I("s_memrealtime", "s[98:99]"); a.lgkm(0)
            I("v_mov_b32", v(198), "s98"); I("v_mov_b32", v(199), 20)
            I("buffer_atomic_umax", v(198), v(199), sr(S_M2), 0, mod="offen")
            I("v_mov_b32", v(200), "s3"); I("v_mov_b32", v(201), 24)
            I("buffer_atomic_umax", v(200), v(201), sr(S_M2), 0, mod="offen")
            I("s_not_b32", "s3", "s3")
            I("v_mov_b32", v(202), "s3"); I("v_mov_b32", v(203), 28)
            I("buffer_atomic_umax", v(202), v(203), sr(S_M2), 0, mod="offen")
    a.label("K1_FIN"+sfx)
    stamp(5,6)
    if OPT['ts']:
        I("s_mov_b64", "exec", -1)
        I("s_lshl_b32", "s99", s(sW), 7); I("v_mov_b32", v(5), G); I("v_mov_b32", v(6), "s99")
        I("ds_write_b32", v(6), v(5), mod=f"offset:{L_TS+4*31}")
    stamp_dump()
    I("s_endpgm")

def fin_math(R, G, XV, LN):
    ML = R+24; C = [R+32, R+33]; T = R+34
    for h in range(2):
        Mv, Lv = ML+2*h, ML+2*h+1
        I("v_max_f32_dpp", v(T), v(Mv), v(Mv), mod=f"quad_perm:[1,0,3,2] {DPPALL}")
        I("v_max_f32_dpp", v(T), v(T), v(T), mod=f"quad_perm:[2,3,0,1] {DPPALL}")
        I("v_sub_f32", v(T), v(Mv), v(T)); I("v_exp_f32", v(C[h]), v(T))
        I("v_mul_f32", v(T), v(C[h]), v(Lv))
        I("v_add_f32_dpp", v(T), v(T), v(T), mod=f"quad_perm:[1,0,3,2] {DPPALL}")
        I("v_add_f32_dpp", v(T), v(T), v(T), mod=f"quad_perm:[2,3,0,1] {DPPALL}")
        I("v_rcp_f32", v(T), v(T))
        I("v_mul_f32", v(C[h]), v(C[h]), v(T))
    for k in range(9): I("v_mul_f32", v(R+k), v(C[0]), v(R+k))
    for k in range(9): I("v_fmac_f32", v(R+k), v(C[1]), v(R+12+k))
    for n in (8, 4, 2, 1):
        for k in range(9): I("v_add_f32_dpp", v(R+k), v(R+k), v(R+k), mod=f"row_ror:{n} {DPPALL}")
    for sw in ("v_permlane16_swap_b32", "v_permlane32_swap_b32"):
        for k in range(9): I("v_mov_b32", v(R+12+k), v(R+k))
        for k in range(9): I(sw, v(R+k), v(R+12+k))
        for k in range(9): I("v_add_f32", v(R+k), v(R+k), v(R+12+k))
    for k in range(1, 9):
        I("v_cmp_eq_u32", "vcc", k, v(LN)); I("v_cndmask_b32", v(R), v(R), v(R+k), "vcc")
    bfr1(R)
    I("v_mul_f32", v(R), v(R), v(G)); bfr1(R)
    I("v_lshlrev_b32", v(XV), 16, v(XV))
    I("v_add_f32", v(R), v(R), v(XV))
    I("v_cvt_pk_bf16_f32", v(R), v(R), v(R))

def k2():
    a.raw(f".globl {K2}\n.p2align 8\n.type {K2},@function\n{K2}:")
    a.vm = []
    I("s_cmp_ge_u32", "s2", 256); I("s_cbranch_scc1", "K2_END")
    I("s_load_dwordx2", "s[36:37]", "s[0:1]", 0)
    I("s_load_dwordx2", "s[56:57]", "s[0:1]", 80)
    I("s_load_dwordx2", "s[60:61]", "s[0:1]", 96)
    I("s_mov_b32", s(sMASK), "0xffff0000")
    I("s_lshr_b32", s(sB), "s2", 6); I("s_and_b32", s(sP), "s2", 63)
    I("v_mul_u32_u24", v(5), TSTRIDE, v(0))
    I("s_mul_i32", s(sT1), s(sP), 36)
    I("v_add_u32", v(6), s(sT1), v(5))
    I("v_lshlrev_b32", v(7), 2, v(0)); I("v_lshlrev_b32", v(8), 1, v(0))
    a.lgkm(0)
    I("s_mul_i32", s(sT0), s(sB), 64*TSTRIDE); srd(S_WS, P_WS, s(sT0), 64*TSTRIDE)
    R = 16
    I("buffer_load_dwordx4", vr(R), v(6), sr(S_WS), 0, mod="offen")
    I("buffer_load_dwordx4", vr(R+4), v(6), sr(S_WS), 0, mod="offen offset:16")
    I("buffer_load_dword", v(R+8), v(6), sr(S_WS), 0, mod="offen offset:32")
    I("buffer_load_dwordx4", vr(R+12), v(6), sr(S_WS), 0, mod="offen offset:2304")
    I("buffer_load_dwordx4", vr(R+16), v(6), sr(S_WS), 0, mod="offen offset:2320")
    I("buffer_load_dword", v(R+20), v(6), sr(S_WS), 0, mod="offen offset:2336")
    I("s_movk_i32", s(sT0), 4608)
    I("buffer_load_dwordx4", vr(R+24), v(5), sr(S_WS), s(sT0), mod="offen")
    I("s_mul_i32", s(sT0), "s2", 36); I("s_add_u32", s(sT0), s(sT0), G_OFF); srd(S_M2, P_WS, s(sT0), 36)
    I("buffer_load_dword", v(R+28), v(7), sr(S_M2), 0, mod="offen")
    I("s_mul_i32", s(sT0), "s2", 18); srd(S_X, P_X, s(sT0), 18); srd(S_M1, P_OUT, s(sT0), 18)
    I("buffer_load_ushort", v(R+29), v(8), sr(S_X), 0, mod="offen")
    I("s_waitcnt", "vmcnt(0)")
    fin_math(R, R+28, R+29, 0)
    I("s_mov_b64", "exec", 0x1ff)
    I("buffer_store_short", v(R), v(8), sr(S_M1), 0, mod="offen")
    a.label("K2_END")
    I("s_endpgm")

hdr = open('cdna_kernels/'+name+'.s.ref').read().split('\n')
top = [l for l in hdr if l.startswith(';') and '@launch' not in l and 'Override' not in l and 'grid=ceil' not in l]
out = "\n".join(top)+"\n"
if OPT['fused']:
    K1 = name+"_kernel"
    out += f"; @launch grid=(256,1,1) block=(512,1,1) lds={LDS_SIZE}\n"
else:
    out += f"; @launch kernel={K1} grid=(256,1,1) block=(512,1,1) lds={LDS_SIZE}\n"
    out += f"; @launch kernel={K2} grid=(256,1,1) block=(64,1,1) lds=0\n"
out += '.amdgcn_target "amdgcn-amd-amdhsa--gfx950"\n.text\n'
k1()
if not OPT['fused']: k2()
out += a.text()
out += '.section .rodata,"a"\n'
for kn, nv in (((K1, 256),) if OPT['fused'] else ((K1, 256), (K2, 64))):
    out += f""".p2align 6
.amdhsa_kernel {kn}
  .amdhsa_next_free_vgpr {nv}
  .amdhsa_next_free_sgpr 102
  .amdhsa_accum_offset {nv}
  .amdhsa_group_segment_fixed_size 0
  .amdhsa_kernarg_size 104
  .amdhsa_user_sgpr_count 2
  .amdhsa_user_sgpr_kernarg_segment_ptr 1
  .amdhsa_system_sgpr_workgroup_id_x 1
.end_amdhsa_kernel
"""
open(sys.argv[1], 'w').write(out)
print("instrs", a.ninstr, "bytes", len(out))
```

```python
import sys, struct
sys.path.insert(0, 'gen')
from asmlib import Asm

def f32(x): return "0x%08x" % struct.unpack('<I', struct.pack('<f', x))[0]
LOG2E = 1.4426950408889634
SCALE = 0.08838834764831845
C0 = 2*0.7978845608028654*LOG2E
C1 = C0*0.044715

OPT = dict(gate_per_tile=2, gate_start=1, wo_start=6, wo_per_tile=6, nt_w=True, fused=False, ts=0, tbar=0, nowo=0, nogate=0, nowq=0, pwq=1, pwo=1, bar=1, rot=1, kv0=4, kvstep=3, kvpre=12, lnpos=24, cred=2, o1=8, o2=17, o3=26, d0=2, dstep=2)
GOPT = [dict(wqpre=36, kvfirst=8, kvafter=0, cred=0, stage=0, lnpos=24, wo_start=4, wo_per_tile=4, gate_start=1, gate_per_tile=2, pendlate=1),
        dict(wqpre=6, kvfirst=32, kvafter=0, cred=0, stage=1, lnpos=5, wo_start=4, wo_per_tile=4, gate_start=1, gate_per_tile=2, pendlate=1)]
OPT['gbit'] = 7; OPT['kbit'] = 6; OPT['fused'] = 1; OPT['slp_l'] = 24; OPT['slp_s'] = 4; OPT['thr'] = 8; OPT['pst'] = 2; OPT['badx'] = 0; OPT['dbgts'] = 0; OPT['pk'] = 1; OPT['pv'] = 1
OPT['perm'] = 'i0i1w0w1w2n0n1n2n3s0s1'; OPT['rk'] = 0; OPT['rb'] = 0; OPT['rs'] = 0; OPT['vx'] = 0; OPT['prio'] = 0; OPT['otouch'] = 0
for arg in sys.argv[2:]:
    k, v = arg.split('=')
    if k == 'perm': OPT[k] = v; continue
    if k[:2] in ('A_', 'B_'): GOPT[0 if k[0] == 'A' else 1][k[2:]] = int(v)
    else: OPT[k] = int(v)
STAGE = [0]

L_XN = 0; L_QS = 4608; L_GP = 8704; L_ML = 9216; L_ML2 = 9344; L_TK = 9408; L_TS = 15360
L_ST = 16384; L_TP = 16384; L_OP = 147456; L_QP = 147456
LDS_SIZE = 147456 + 8192
TSTRIDE = 5120
G_OFF = 0x200000

a = Asm()
I = a.I
S_K, S_V, S_WQ, S_WO, S_X, S_M1, S_WS, S_M2 = 4, 8, 12, 16, 20, 24, 28, 32
P_X, P_K, P_V, P_WQ, P_WO, P_W1, P_B1, P_W2, P_B2, P_OUT, P_DBG, P_WS = 36, 38, 40, 42, 44, 48, 50, 52, 54, 56, 58, 60
sKVH, sSPLIT, sB, sP, sW, sT0, sT1 = 62, 63, 80, 81, 82, 83, 84
sH = 64
sSELLO, sSELHI, sMASK, sSCALE, sLOG2E, sBP = 85, 86, 87, 88, 89, 90
sM3 = 92
sXCC, sITEM, sFLAG, sRO = 100, 101, 91, 96
def sr(n): return f"s[{n}:{n+3}]"
def vr(n, k=4): return f"v[{n}:{n+k-1}]"
def v(n): return f"v{n}"
def s(n): return f"s{n}"

def srd(dst, ptr, off, records):
    if off is None:
        I("s_mov_b32", s(dst), s(ptr)); I("s_mov_b32", s(dst+1), s(ptr+1))
    else:
        I("s_add_u32", s(dst), s(ptr), off); I("s_addc_u32", s(dst+1), s(ptr+1), 0)
    I("s_mov_b32", s(dst+2), records); I("s_mov_b32", s(dst+3), "0x20000")

DPPALL = "row_mask:0xf bank_mask:0xf"
def allred(op, x, t, rows=True):
    if rows:
        for n in (8, 4, 2, 1):
            I(op+"_dpp", v(x), v(x), v(x), mod=f"row_ror:{n} {DPPALL}")
    I("v_mov_b32", v(t), v(x)); I("v_permlane16_swap_b32", v(x), v(t)); I(op, v(x), v(x), v(t))
    I("v_mov_b32", v(t), v(x)); I("v_permlane32_swap_b32", v(x), v(t)); I(op, v(x), v(x), v(t))

def bfr1(x):
    I("v_cvt_pk_bf16_f32", v(x), v(x), v(x)); I("v_and_b32", v(x), s(sMASK), v(x))
def bfr2(x, y, w):
    I("v_cvt_pk_bf16_f32", v(w), v(x), v(y)); I("v_lshlrev_b32", v(x), 16, v(w)); I("v_and_b32", v(y), s(sMASK), v(w))

def layernorm(X, O, T):
    sm, tt, mean, var, den, rc = T[:6]
    I("v_add_f32", v(sm), v(X[0]), v(X[1]))
    for k in range(2, 9): I("v_add_f32", v(sm), v(sm), v(X[k]))
    allred("v_add_f32", sm, tt)
    I("v_mul_f32", v(mean), f32(1.0/576), v(sm))
    for k in range(9): I("v_sub_f32", v(O[k]), v(X[k]), v(mean))
    I("v_mul_f32", v(var), v(O[0]), v(O[0]))
    for k in range(1, 9): I("v_fmac_f32", v(var), v(O[k]), v(O[k]))
    allred("v_add_f32", var, tt)
    I("v_mul_f32", v(var), f32(1.0/576), v(var))
    bfr2(mean, var, tt)
    I("v_add_f32", v(var), f32(1e-5), v(var)); bfr1(var)
    I("v_sqrt_f32", v(den), v(var)); bfr1(den)
    I("v_rcp_f32", v(rc), v(den))
    for k in range(9): I("v_sub_f32", v(O[k]), v(X[k]), v(mean))
    for k in range(0, 8, 2): bfr2(O[k], O[k+1], tt)
    bfr1(O[8])
    for k in range(9):
        I("v_mul_f32", v(sm), v(O[k]), v(rc))
        I("v_fma_f32", v(tt), "-"+v(sm), v(den), v(O[k]))
        I("v_fma_f32", v(O[k]), v(tt), v(rc), v(sm))
    for k in range(0, 8, 2): bfr2(O[k], O[k+1], tt)
    bfr1(O[8])

vTID, vLANE, vKOFF, vM, vL = 0, 1, 2, 3, 4
vT = [5, 6, 7]
vQ = 8
vACC = 16
vS = 32
vP = 40
BIG = 48
KB = [192, 224]; VB = [208, 240]
NT = "nt"
POLS = ["", "nt", "sc1", "sc0", "sc0 sc1", "sc1 nt", "sc0 nt", "sc0 sc1 nt"]
WMOD = POLS[OPT['pwq']]; WOMOD = POLS[OPT['pwo']]
KVP = {'K': POLS[OPT['pk']], 'V': POLS[OPT['pv']]}

PERM = [OPT['perm'][2*j:2*j+2] for j in range(11)]
assert sorted(PERM) == sorted(['i0','i1','w0','w1','w2','n0','n1','n2','n3','s0','s1'])
POS = {p: 10+j for j, p in enumerate(PERM)}
ROT = OPT['rk'] or OPT['rb'] or OPT['rs']
def place(sym, val, nb): return sum(((val >> j) & 1) << POS[f"{sym}{j}"] for j in range(nb))
def taddr(n, i):
    ci = place('i', i, 2); imm = ci & 0xC00
    return place('n', n, 4) | (ci & ~0xC00), imm
LASTSO = [None]
def set_so(so):
    if LASTSO[0] == so: return
    LASTSO[0] = so
    if ROT: I("s_xor_b32", s(sT0), "s3", so)
    else: I("s_mov_b32", s(sT0), so)
def splace(dst, src, sym, nb, tmp):
    for j in range(nb):
        I("s_bfe_u32", s(tmp), s(src), (1 << 16) | j); I("s_lshl_b32", s(tmp), s(tmp), POS[f"{sym}{j}"])
        if j == 0: I("s_mov_b32", dst, s(tmp))
        else: I("s_or_b32", dst, dst, s(tmp))
def tile_regs(kind, n):
    if STAGE[0] and n in (2, 3): return BIG + 32*(n-2) + (0 if kind == 'K' else 16)
    return (KB if kind == 'K' else VB)[n & 1]
def issue_tile_lds(kind, n):
    srdn = S_K if kind == 'K' else S_V
    q = 2*(n-2) + (0 if kind == 'K' else 1)
    I("s_lshl_b32", s(sT1), s(sW), 14); I("s_add_u32", s(sT1), s(sT1), L_ST+q*4096)
    I("s_mov_b32", "m0", s(sT1))
    I("s_mov_b32", s(sT0), n*32768)
    for i in range(4):
        a.raw(f"  buffer_load_dwordx4 {v(vKOFF)}, {sr(srdn)}, {s(sT0)} offen offset:{i*1024} {KVP[kind]} lds"); a.pos += 1
        a.vm_issue(f"{kind}{n}")
def room():
    if len(a.vm) >= 62:
        I("s_waitcnt", f"vmcnt({len(a.vm)-4})"); a.vm = a.vm[4:]
def issue_one(kind, n, i):
    srdn = S_K if kind == 'K' else S_V
    room()
    so, imm = taddr(n, i); LASTSO[0] = None
    if STAGE[0] and n in (2, 3):
        q = 2*(n-2) + (0 if kind == 'K' else 1)
        I("s_lshl_b32", s(sT1), s(sW), 14); I("s_add_u32", s(sT1), s(sT1), L_ST+q*4096+i*1024-imm)
        I("s_mov_b32", "m0", s(sT1))
        set_so(so)
        a.raw(f"  buffer_load_dwordx4 {v(vKOFF)}, {sr(srdn)}, {s(sT0)} offen offset:{imm} {KVP[kind]} lds"); a.pos += 1
    else:
        base = tile_regs(kind, n)
        set_so(so)
        I("buffer_load_dwordx4", vr(base+4*i), v(vKOFF), sr(srdn), s(sT0), mod=f"offen offset:{imm} {KVP[kind]}")
    a.vm_issue(f"{kind}{n}")
def read_tile_lds(kind, n):
    q = 2*(n-2) + (0 if kind == 'K' else 1)
    base = tile_regs(kind, n)
    for i in range(4):
        I("ds_read_b128", vr(base+4*i), v(7), mod=f"offset:{q*4096+i*1024}")
def issue_tile(kind, n):
    base = tile_regs(kind, n)
    srdn = S_K if kind == 'K' else S_V
    LASTSO[0] = None
    for i in range(4):
        so, imm = taddr(n, i); set_so(so)
        I("buffer_load_dwordx4", vr(base+4*i), v(vKOFF), sr(srdn), s(sT0), mod=f"offen offset:{imm} {KVP[kind]}")
        a.vm_issue(f"{kind}{n}")

ts_n = [0]
def stamp(ra, rb):
    if not OPT['ts']: return
    I("s_memrealtime", "s[98:99]"); a.lgkm(0)
    I("s_lshl_b32", "s99", s(sW), 7)
    I("v_mov_b32", v(ra), "s98"); I("v_mov_b32", v(rb), "s99")
    I("ds_write_b32", v(rb), v(ra), mod=f"offset:{L_TS+4*ts_n[0]}")
    ts_n[0] += 1
def stamp_dump():
    if not OPT['ts']: return
    I("s_mov_b64", "exec", -1)
    I("s_lshl_b32", "s99", s(sW), 7)
    I("v_and_b32", v(5), 31, v(vLANE)); I("v_lshlrev_b32", v(5), 2, v(5)); I("v_add_u32", v(5), "s99", v(5))
    a.lgkm(0)
    I("ds_read_b32", v(6), v(5), mod=f"offset:{L_TS}")
    I("s_lshl_b32", s(sT0), "s2", 10); I("s_add_u32", s(sT0), s(sT0), 0x400000)
    srd(S_M1, P_WS, s(sT0), 1024)
    a.lgkm(0)
    I("buffer_store_dword", v(6), v(5), sr(S_M1), 0, mod="offen")

name = "recurrent_scan__gqa_block_cached__mixer_token_mlp__decode"
K1 = "attn_main_kernel"; K2 = "attn_fin_kernel"

def set_wq():
    I("s_lshl_b32", s(sT0), s(sKVH), 9)
    I("s_sub_u32", s(sT1), 576*8192, s(sT0))
    I("s_add_u32", s(S_WQ), s(P_WQ), s(sT0)); I("s_addc_u32", s(S_WQ+1), s(P_WQ+1), 0)
    I("s_mov_b32", s(S_WQ+2), s(sT1)); I("s_mov_b32", s(S_WQ+3), "0x20000")
def decode():
    I("s_lshr_b32", s(sKVH), s(sITEM), 4); I("s_and_b32", s(sKVH), s(sKVH), 15)
    I("s_and_b32", s(sSPLIT), s(sITEM), 3)
    I("s_bfe_u32", s(sB), s(sITEM), (2 << 16) | 2)
    I("s_lshl_b32", s(sP), s(sKVH), 2); I("s_or_b32", s(sP), s(sP), s(sSPLIT))
    I("s_lshl_b32", s(sBP), s(sB), 6); I("s_or_b32", s(sBP), s(sBP), s(sP))
    splace("s3", sSPLIT, 's', 2, sT0)
    I("s_lshr_b32", s(sT0), s(sBP), 2); I("s_lshl_b32", s(sT0), s(sT0), 21); I("s_add_u32", s(sT0), s(sT0), "s3")
    I("s_sub_u32", s(sT1), 1 << 21, "s3")
    srd(S_K, P_K, s(sT0), s(sT1)); srd(S_V, P_V, s(sT0), s(sT1))
    if ROT:
        I("s_mul_i32", s(sT1), s(sKVH), OPT['rk']); I("s_mul_i32", s(sT0), s(sB), OPT['rb']); I("s_add_u32", s(sT1), s(sT1), s(sT0))
        I("s_mul_i32", s(sT0), s(sSPLIT), OPT['rs']); I("s_add_u32", s(sT1), s(sT1), s(sT0))
        splace("s3", sT1, 'n', 4, sT0)
    I("s_mul_i32", s(sT0), s(sBP), TSTRIDE); srd(S_WS, P_WS, s(sT0), TSTRIDE)
def wq_load(i):
    if OPT['nowq']: return
    room()
    I("s_mov_b32", s(sRO), i*8192)
    I("buffer_load_dwordx4", vr(BIG+4*i), v(7), sr(S_WQ), s(sRO), mod=f"offen {WMOD}"); a.vm_issue(f"wq{i}")
STMOD = POLS[OPT['pst']]

def k1():
    a.raw(f".globl {K1}\n.p2align 8\n.type {K1},@function\n{K1}:")
    I("s_cmp_ge_u32", "s2", 256); I("s_cbranch_scc1", "K1_END")
    I("s_load_dwordx16", "s[36:51]", "s[0:1]", 0)
    I("s_load_dwordx8", "s[52:59]", "s[0:1]", 64)
    I("s_load_dwordx2", "s[60:61]", "s[0:1]", 96)
    I("s_getreg_b32", s(sXCC), "hwreg(HW_REG_XCC_ID, 0, 4)"); I("s_and_b32", s(sXCC), s(sXCC), 7)
    if OPT['badx'] == 1: I("s_mov_b32", s(sXCC), 3)
    if OPT['badx'] == 2: I("s_and_b32", s(sXCC), s(sXCC), 5)
    I("s_lshl_b32", s(sKVH), s(sXCC), 1)
    I("s_bfe_u32", s(sT0), "s2", (1 << 16) | OPT['kbit']); I("s_or_b32", s(sKVH), s(sKVH), s(sT0))
    I("s_mov_b32", s(sSELLO), "0x05040100"); I("s_mov_b32", s(sSELHI), "0x07060302")
    I("s_mov_b32", s(sMASK), "0xffff0000"); I("s_mov_b32", s(sSCALE), f32(SCALE)); I("s_mov_b32", s(sLOG2E), f32(LOG2E))
    I("v_and_b32", v(vLANE), 63, v(vTID))
    I("v_lshrrev_b32", v(5), 6, v(vTID))
    I("v_readfirstlane_b32", s(sW), v(5))
    I("v_lshlrev_b32", v(vKOFF), 4, v(vLANE))
    for j in range(3):
        I("v_bfe_u32", v(6), v(5), j, 1); I("v_lshl_add_u32", v(vKOFF), v(6), POS[f"w{j}"], v(vKOFF))
    I("v_mul_u32_u24", v(6), 18, v(vLANE))
    I("v_lshrrev_b32", v(7), 5, v(vTID))
    I("v_mul_u32_u24", v(7), 36*8192, v(7))
    I("v_and_b32", v(40), 31, v(vTID)); I("v_lshl_add_u32", v(7), v(40), 4, v(7))
    a.lgkm(0)
    stamp(40,41)
    I("s_cmp_eq_u32", s(sW), 7); I("s_cbranch_scc1", "K1_TK")
    I("s_and_b32", s(sT0), s(sW), 3)
    I("s_mul_i32", s(sT0), s(sT0), 1152); srd(S_X, P_X, s(sT0), 1152)
    X = list(range(16, 25))
    for k in range(9):
        I("buffer_load_ushort", v(X[k]), v(6), sr(S_X), 0, mod=f"offen offset:{2*k}"); a.vm_issue("x")
    I("v_add_u32", v(6), s(sT0), v(6))
    set_wq()
    I("s_bitcmp1_b32", "s2", OPT['gbit']); I("s_cbranch_scc1", "K1_GB")
    import copy
    save = (copy.deepcopy(a.vm), ts_n[0])
    body(0, X)
    a.label("K1_GB")
    a.vm = save[0]; ts_n[0] = save[1]
    body(1, X)
    a.label("K1_TK")
    a.vm = []
    srd(S_M2, P_DBG, None, 256)
    I("s_mov_b64", "exec", 1)
    I("s_mov_b32", s(sFLAG), 0)
    if OPT['dbgts']:
        I("s_memrealtime", "s[98:99]"); a.lgkm(0)
        I("s_not_b32", "s98", "s98"); I("v_mov_b32", v(42), "s98"); I("v_mov_b32", v(43), 16)
        I("buffer_atomic_umax", v(42), v(43), sr(S_M2), 0, mod="offen")
    a.label("K1_TKL")
    I("s_lshr_b32", s(sT0), s(sKVH), 1); I("s_lshl_b32", s(sT0), s(sT0), 5)
    I("s_and_b32", s(sT1), s(sKVH), 1); I("s_lshl_b32", s(sT1), s(sT1), 2); I("s_add_u32", s(sT0), s(sT0), s(sT1))
    I("v_mov_b32", v(41), s(sT0)); I("v_mov_b32", v(40), 1)
    I("buffer_atomic_add", v(40), v(41), sr(S_M2), 0, mod="offen sc0")
    I("s_waitcnt", "vmcnt(0)")
    I("v_readfirstlane_b32", s(sT0), v(40))
    a.nop(2)
    I("s_cmp_lt_u32", s(sT0), 16); I("s_cbranch_scc1", "K1_TKOK")
    I("s_add_u32", s(sKVH), s(sKVH), 1); I("s_and_b32", s(sKVH), s(sKVH), 15)
    I("s_add_u32", s(sFLAG), s(sFLAG), 1); I("s_cmp_lt_u32", s(sFLAG), 64); I("s_cbranch_scc1", "K1_TKL")
    I("s_and_b32", s(sT0), s(sT0), 15)
    a.label("K1_TKOK")
    I("s_lshl_b32", s(sITEM), s(sKVH), 4); I("s_or_b32", s(sITEM), s(sITEM), s(sT0))
    I("v_mov_b32", v(40), s(sITEM)); I("v_mov_b32", v(41), 0)
    I("ds_write_b32", v(41), v(40), mod=f"offset:{L_TK}")
    I("s_mov_b64", "exec", -1)
    a.lgkm(0)
    I("s_barrier")
    decode()
    if OPT['fused']:
        for k in range(4): I("v_mov_b32", v(40+k), -1)
        I("v_lshlrev_b32", v(5), 4, v(vLANE))
        for k in range(4): I("buffer_store_dwordx4", vr(40), v(5), sr(S_WS), 0, mod=f"offen offset:{1024*k} {STMOD}")
        I("s_movk_i32", s(sT0), 4096)
        I("buffer_store_dwordx4", vr(40), v(5), sr(S_WS), s(sT0), mod=f"offen {STMOD}")
        I("s_lshl_b32", s(sT0), s(sXCC), 5); I("s_add_u32", s(sT0), s(sT0), 8)
        I("v_mov_b32", v(45), s(sT0)); I("v_mov_b32", v(44), 1)
        I("s_waitcnt", "vmcnt(0)")
        I("s_mov_b64", "exec", 1)
        I("buffer_atomic_add", v(44), v(45), sr(S_M2), 0, mod="offen")
        I("s_mov_b64", "exec", -1)
    I("s_bitcmp1_b32", "s2", OPT['gbit']); I("s_cbranch_scc1", "K1_RQ2B")
    I("s_branch", "K1_RQ2A")
    a.label("K1_END")
    I("s_endpgm")

def body(G, X):
    O = dict(OPT); O.update(GOPT[G]); STAGE[0] = O['stage']
    sfx = "AB"[G]
    tl = (('K', 0), ('V', 0), ('K', 1), ('V', 1), ('K', 2), ('V', 2), ('K', 3), ('V', 3)) if O['stage'] else (('K', 0), ('V', 0), ('K', 1), ('V', 1))
    pend = [(k, n, i) for (k, n) in tl for i in range(4)]
    XN = list(range(25, 34)); T = list(range(34, 40))
    def do_ln():
        stamp(40,41)
        a.vm_wait("x")
        stamp(40,41)
        for k in range(9): I("v_lshlrev_b32", v(X[k]), 16, v(X[k]))
        layernorm(X, XN, T)
        for k in range(9):
            I("ds_write_b16_d16_hi", v(6), v(XN[k]), mod=f"offset:{L_XN+2*k}")
    if O['lnpos'] < 0: do_ln()
    for i in range(O['wqpre']):
        wq_load(i)
        if i == O['lnpos']: do_ln()
    assert O['lnpos'] < O['wqpre']
    a.lgkm(0)
    I("s_barrier")
    I("v_mov_b32", v(41), 0)
    I("ds_read_b32", v(40), v(41), mod=f"offset:{L_TK}")
    a.lgkm(0)
    I("v_readfirstlane_b32", s(sITEM), v(40))
    I("s_mov_b32", s(sFLAG), s(sKVH))
    a.nop(2)
    decode()
    I("s_cmp_eq_u32", s(sFLAG), s(sKVH)); I("s_cbranch_scc1", "K1_GO"+sfx)
    I("s_waitcnt", "vmcnt(0)")
    a.label("K1_RQ2"+sfx)
    import copy
    vmsave = copy.deepcopy(a.vm)
    a.vm = []
    set_wq()
    for i in range(O['wqpre']): wq_load(i)
    if not OPT['nowq']: assert a.vm == vmsave, (a.vm, vmsave)
    a.label("K1_GO"+sfx)
    stamp(40,41)
    for _ in range(O['kvfirst']):
        if pend: issue_one(*pend.pop(0))
    for i in range(O['wqpre'], 36): wq_load(i)
    for _ in range(O['kvafter']):
        if pend: issue_one(*pend.pop(0))
    I("s_mul_i32", s(sT0), s(sKVH), 256*1152); srd(S_WO, P_WO, s(sT0), 256*1152)
    srd(S_M1, P_W1, None, 9216); srd(S_M2, P_B1, None, 9216); srd(sM3, P_W2, None, 9216)
    I("v_lshrrev_b32", v(5), 5, v(vTID)); I("v_mul_u32_u24", v(5), 72, v(5))
    I("s_mul_i32", s(sT0), s(sB), 1152); I("v_add_u32", v(5), s(sT0), v(5))
    XP = 16
    for k in range(9):
        I("ds_read_b64", vr(XP+2*k, 2), v(5), mod=f"offset:{L_XN+8*k}")
    QA = 34
    stamp(40,41)
    PT = [42, 43, 44, 45, 46, 47]
    a.lgkm(0)
    for ip in range(18):
        a.vm_wait(f"wq{2*ip+1}")
        for _ in range(O['cred']):
            if pend: issue_one(*pend.pop(0))
        w0 = BIG+8*ip; w1 = w0+4
        for half in range(2):
            for r in (2*half, 2*half+1):
                t0, t1 = PT[2*(r & 1)], PT[2*(r & 1)+1]
                I("v_perm_b32", v(t0), v(w1+r), v(w0+r), s(sSELLO))
                I("v_perm_b32", v(t1), v(w1+r), v(w0+r), s(sSELHI))
            for r in (2*half, 2*half+1):
                t0, t1 = PT[2*(r & 1)], PT[2*(r & 1)+1]
                if ip == 0:
                    I("v_dot2_f32_bf16", v(QA+2*r), v(t0), v(XP+ip), 0)
                    I("v_dot2_f32_bf16", v(QA+2*r+1), v(t1), v(XP+ip), 0)
                else:
                    I("v_dot2_f32_bf16", v(QA+2*r), v(t0), v(XP+ip), v(QA+2*r))
                    I("v_dot2_f32_bf16", v(QA+2*r+1), v(t1), v(XP+ip), v(QA+2*r+1))
    stamp(5,6)
    GR = 128
    gW1r, gB1r, gW2r = GR, GR+4, GR+8
    gW1x, gB1x, gW2x = GR+12, GR+13, GR+14
    I("v_lshlrev_b32", v(5), 4, v(vTID)); I("v_lshlrev_b32", v(6), 1, v(vTID))
    for (dst, dx, sd) in ((gW1r, gW1x, S_M1), (gB1r, gB1x, S_M2), (gW2r, gW2x, sM3)):
        I("buffer_load_dwordx4", vr(dst), v(5), sr(sd), 0, mod="offen"); a.vm_issue("gw")
        I("s_movk_i32", s(sT0), 8192)
        I("buffer_load_ushort", v(dx), v(6), sr(sd), s(sT0), mod="offen"); a.vm_issue("gw")
    for k in range(4):
        I("v_permlane32_swap_b32", v(QA+k), v(QA+k+4))
    for k in range(4):
        I("v_add_f32", v(QA+k), v(QA+k), v(QA+k+4))
    I("v_and_b32", v(5), 31, v(vLANE)); I("v_lshlrev_b32", v(5), 5, v(5))
    I("v_lshrrev_b32", v(6), 5, v(vLANE)); I("v_lshl_add_u32", v(5), v(6), 4, v(5))
    I("s_lshl_b32", s(sT0), s(sW), 10); I("s_add_u32", s(sT0), s(sT0), L_QP); I("v_add_u32", v(5), s(sT0), v(5))
    I("ds_write_b128", v(5), vr(QA))
    if not O['pendlate']:
        while pend: issue_one(*pend.pop(0))
    a.lgkm(0)
    I("s_barrier")
    I("v_lshlrev_b32", v(5), 4, v(vLANE)); I("v_add_u32", v(5), L_QP, v(5))
    for w in range(8):
        I("ds_read_b128", vr(BIG+4*w), v(5), mod=f"offset:{1024*w}")
    a.lgkm(0)
    for st in (4, 2, 1):
        for w in range(st):
            for k in range(4):
                I("v_add_f32", v(BIG+4*w+k), v(BIG+4*w+k), v(BIG+4*(w+st)+k))
    I("v_cvt_pk_bf16_f32", v(BIG), v(BIG), v(BIG+1)); I("v_cvt_pk_bf16_f32", v(BIG+1), v(BIG+2), v(BIG+3))
    I("s_lshl_b32", s(sT0), s(sW), 9)
    I("v_lshlrev_b32", v(5), 3, v(vLANE)); I("v_add_u32", v(5), s(sT0), v(5))
    I("ds_write_b64", v(5), vr(BIG, 2), mod=f"offset:{L_QS}")
    I("v_and_b32", v(5), 15, v(vLANE)); I("v_lshlrev_b32", v(5), 4, v(5)); I("v_add_u32", v(5), s(sT0), v(5))
    a.lgkm(0)
    I("ds_read_b128", vr(vQ), v(5), mod=f"offset:{L_QS}")
    I("ds_read_b128", vr(vQ+4), v(5), mod=f"offset:{L_QS+256}")
    while pend: issue_one(*pend.pop(0))
    for k in range(16): I("v_mov_b32", v(vACC+k), 0)
    I("v_mov_b32", v(vM), f32(-1e30)); I("v_mov_b32", v(vL), 0)
    a.lgkm(0)

    stamp(5,6)
    gW1f = GR+16; gB1f = GR+25; gY = GR+34; gT = GR+43
    vC1 = GR+15
    def gate_prep():
        XX = [gW1f+i for i in range(9)]; HH = [gB1f+i for i in range(9)]
        I("v_mul_u32_u24", v(gT+12), 18, v(vLANE))
        I("s_mul_i32", s(sT0), s(sB), 1152); I("v_add_u32", v(gT+12), s(sT0), v(gT+12))
        for k in range(9): I("v_mov_b32", v(XX[k]), 0)
        for k in range(9): I("ds_read_u16_d16_hi", v(XX[k]), v(gT+12), mod=f"offset:{L_XN+2*k}")
        a.lgkm(0)
        layernorm(XX, HH, [gT+i for i in range(6)])
        for k in range(9): I("v_readlane_b32", s(sH+k), v(HH[k]), s(sP))
        a.vm_wait("gw")
        I("v_mov_b32", v(vC1), f32(C1))
        for q in range(4):
            I("v_lshlrev_b32", v(gW1f+2*q), 16, v(gW1r+q)); I("v_and_b32", v(gW1f+2*q+1), s(sMASK), v(gW1r+q))
            I("v_lshlrev_b32", v(gB1f+2*q), 16, v(gB1r+q)); I("v_and_b32", v(gB1f+2*q+1), s(sMASK), v(gB1r+q))
        I("v_lshlrev_b32", v(gW1f+8), 16, v(gW1x)); I("v_lshlrev_b32", v(gB1f+8), 16, v(gB1x))
        I("v_lshlrev_b32", v(gW2x), 16, v(gW2x))
    def gelu_list(U, TT):
        for u, t in zip(U, TT): I("v_mul_f32", v(t), v(u), v(u))
        for u, t in zip(U, TT): I("v_fmaak_f32", v(t), v(t), v(vC1), f32(C0))
        for u, t in zip(U, TT): I("v_mul_f32", v(t), v(t), v(u))
        for u, t in zip(U, TT): I("v_exp_f32", v(t), "-"+v(t))
        for u, t in zip(U, TT): I("v_add_f32", v(t), 1.0, v(t))
        for u, t in zip(U, TT): I("v_rcp_f32", v(t), v(t))
        for u, t in zip(U, TT): I("v_mul_f32", v(u), v(u), v(t))
    def gate_col(k):
        if OPT['nogate']: return
        for hh in range(2):
            U = [gT+i for i in range(4)]; TT = [gT+4+i for i in range(4)]; W = [gT+8, gT+9]
            for i in range(4): I("v_mul_f32", v(U[i]), s(sH+k), v(gW1f+4*hh+i))
            bfr2(U[0], U[1], W[0]); bfr2(U[2], U[3], W[1])
            for i in range(4): I("v_add_f32", v(U[i]), v(U[i]), v(gB1f+4*hh+i))
            bfr2(U[0], U[1], W[0]); bfr2(U[2], U[3], W[1])
            gelu_list(U, TT)
            I("v_cvt_pk_bf16_f32", v(W[0]), v(U[0]), v(U[1])); I("v_cvt_pk_bf16_f32", v(W[1]), v(U[2]), v(U[3]))
            I("v_dot2_f32_bf16", v(gY+k), v(W[0]), v(gW2r+2*hh), 0 if hh == 0 else v(gY+k))
            I("v_dot2_f32_bf16", v(gY+k), v(W[1]), v(gW2r+2*hh+1), v(gY+k))
    def gate_fin():
        for grp in ((0, 1, 2, 3), (4, 5, 6, 7), (8,)):
            n = len(grp)
            U = [gT+i for i in range(n)]; TT = [gT+4+i for i in range(n)]; W = [gT+8, gT+9]
            for i, k in enumerate(grp): I("v_mul_f32", v(U[i]), s(sH+k), v(gW1f+8))
            def rnd():
                if n == 4: bfr2(U[0], U[1], W[0]); bfr2(U[2], U[3], W[1])
                else: bfr1(U[0])
            rnd()
            for i in range(n): I("v_add_f32", v(U[i]), v(U[i]), v(gB1f+8))
            rnd()
            gelu_list(U, TT)
            rnd()
            for i, k in enumerate(grp): I("v_fmac_f32", v(gY+k), v(U[i]), v(gW2x))
        for n in (8, 4, 2, 1):
            for k in range(9):
                I("v_add_f32_dpp", v(gY+k), v(gY+k), v(gY+k), mod=f"row_ror:{n} {DPPALL}")
        for (sw) in ("v_permlane16_swap_b32", "v_permlane32_swap_b32"):
            for k in range(9): I("v_mov_b32", v(gT+k), v(gY+k))
            for k in range(9): I(sw, v(gY+k), v(gT+k))
            for k in range(9): I("v_add_f32", v(gY+k), v(gY+k), v(gT+k))
        I("s_lshl_b32", s(sT0), s(sW), 6); I("v_mov_b32", v(gT), s(sT0))
        for k in range(9):
            I("ds_write_b32", v(gT), v(gY+k), mod=f"offset:{L_GP+4*k}")

    wo_loads = [('m', k) for k in range(32)] + [('l', q) for q in range(4)]
    vWOM, vWOL = 46, 47
    def wo_addr():
        I("s_mul_i32", s(sT0), s(sW), 32*1152)
        I("v_lshlrev_b32", v(vWOM), 4, v(vLANE)); I("v_add_u32", v(vWOM), s(sT0), v(vWOM))
        I("v_lshrrev_b32", v(5), 3, v(vLANE)); I("v_mul_u32_u24", v(5), 4*1152, v(5))
        I("v_and_b32", v(6), 7, v(vLANE)); I("v_lshl_add_u32", v(5), v(6), 4, v(5))
        I("s_add_u32", s(sT0), s(sT0), 1024); I("v_add_u32", v(vWOL), s(sT0), v(5))
    def wo_issue(idx):
        kind, k = wo_loads[idx]
        if OPT['nowo']: return
        room()
        if kind == 'm':
            I("s_mov_b32", s(sT1), (k//3)*3456)
            I("buffer_load_dwordx4", vr(BIG+4*k), v(vWOM), sr(S_WO), s(sT1), mod=f"offen offset:{(k%3)*1152} {WOMOD}")
        else:
            I("buffer_load_dwordx4", vr(BIG+128+4*k), v(vWOL), sr(S_WO), 0, mod=f"offen offset:{k*1152} {WOMOD}")
        a.vm_issue(f"wo{idx}")
    WP = {}
    free = [45]
    def wo_perm(pair):
        a.vm_wait(f"wo{2*pair+1}")
        r0 = BIG+8*pair; r1 = r0+4
        for r in range(4):
            f = free.pop()
            I("v_perm_b32", v(f), v(r1+r), v(r0+r), s(sSELLO))
            I("v_perm_b32", v(r1+r), v(r1+r), v(r0+r), s(sSELHI))
            WP[(pair, 2*r)] = f; WP[(pair, 2*r+1)] = r1+r
            free.append(r0+r)
    wo_addr()

    gate_next = 0; wo_next = 0; perm_next = 0; wo_hist = {}
    gate_done = False
    PTm = [40, 41, 42, 43]; vPP = 44
    for n in range(16):
        kb = tile_regs('K', n); vb = tile_regs('V', n)
        if OPT['tbar'] and n >= 4 and n % OPT['tbar'] == 0: I("s_barrier")
        if OPT['prio'] == 1 and n % 4 == 0: I("s_setprio", 3 - n//4)
        if OPT['prio'] == 2 and n in (0, 6, 10, 13): I("s_setprio", {0: 3, 6: 2, 10: 1, 13: 0}[n])
        if OPT['prio'] == 3 and n in (0, 8, 12, 14): I("s_setprio", {0: 3, 8: 2, 12: 1, 14: 0}[n])
        if OPT['otouch'] and n == OPT['otouch']:
            I("s_mul_i32", s(sT0), s(sBP), 18); srd(S_M1, P_OUT, s(sT0), 18)
            I("v_mov_b32", v(5), 0)
            I("buffer_load_ushort", v(5), v(5), sr(S_M1), 0, mod="offen"); a.vm_issue("misc")
        a.vm_wait(f"K{n}")
        stamp(5,6)
        if n == 15:
            srd(S_M1, P_B2, None, 2)
            I("v_mov_b32", v(7), 0)
            I("buffer_load_ushort", v(192), v(7), sr(S_M1), 0, mod="offen"); a.vm_issue("misc")
            if OPT['fused']:
                I("s_mul_i32", s(sT0), s(sBP), 18); srd(S_X, P_X, s(sT0), 18)
                I("v_lshlrev_b32", v(196), 1, v(vLANE))
                I("buffer_load_ushort", v(193), v(196), sr(S_X), 0, mod="offen"); a.vm_issue("misc")
                srd(S_M2, P_DBG, None, 256)
                I("v_lshlrev_b32", v(195), 2, v(vLANE))
                I("buffer_load_dword", v(194), v(195), sr(S_M2), 0, mod="offen sc1"); a.vm_issue("misc")
        nxt = (n+4 if n < 2 else (None if n < 4 else n+2)) if O['stage'] else n+2
        if nxt is not None and nxt >= 16: nxt = None
        if O['stage'] and n in (2, 3):
            I("s_lshl_b32", s(sT1), s(sW), 14); I("s_add_u32", s(sT1), s(sT1), L_ST)
            I("v_lshlrev_b32", v(7), 4, v(vLANE)); I("v_add_u32", v(7), s(sT1), v(7))
            read_tile_lds('K', n)
            a.vm_wait(f"V{n}")
            read_tile_lds('V', n)
            a.lgkm(4)
        for r in range(4):
            for i in range(4):
                for h in range(2):
                    d = vS+4*h+i
                    I("v_dot2_f32_bf16", v(d), v(kb+4*i+r), v(vQ+4*h+r), 0 if r == 0 else v(d))
        if nxt is not None: issue_tile('K', nxt)
        for h in range(2):
            for e in range(2):
                d = vS+4*h+e
                I("v_add_f32_dpp", v(d), v(d), v(d), mod="row_ror:8 row_mask:0xf bank_mask:0x3")
        for h in range(2):
            for e in range(2):
                d = vS+4*h+e; sft = vS+4*h+2+e
                I("v_add_f32_dpp", v(d), v(sft), v(sft), mod="row_ror:8 row_mask:0xf bank_mask:0xc")
        for e in range(2):
            d = vS+e
            I("v_add_f32_dpp", v(d), v(d), v(d), mod="row_shl:4 row_mask:0xf bank_mask:0x5")
        for e in range(2):
            d = vS+e; sft = vS+4+e
            I("v_add_f32_dpp", v(d), v(sft), v(sft), mod="row_shr:4 row_mask:0xf bank_mask:0xa")
        for qp in ("[1,0,3,2]", "[2,3,0,1]"):
            for e in range(2):
                d = vS+e
                I("v_add_f32_dpp", v(d), v(d), v(d), mod=f"quad_perm:{qp} {DPPALL}")
        A, B, W, TM, AL = vS, vS+1, vS+2, vS+3, vS+4
        bfr2(A, B, W)
        I("v_mul_f32", v(A), s(sSCALE), v(A)); I("v_mul_f32", v(B), s(sSCALE), v(B))
        bfr2(A, B, W)
        I("v_max_f32", v(TM), v(A), v(B))
        I("v_max_f32_dpp", v(TM), v(TM), v(TM), mod=f"row_ror:8 {DPPALL}")
        I("v_mul_f32", v(TM), s(sLOG2E), v(TM))
        I("v_max_f32", v(TM), v(TM), v(vM))
        I("v_sub_f32", v(AL), v(vM), v(TM))
        I("v_fma_f32", v(A), v(A), s(sLOG2E), "-"+v(TM))
        I("v_fma_f32", v(B), v(B), s(sLOG2E), "-"+v(TM))
        I("v_exp_f32", v(AL), v(AL)); I("v_exp_f32", v(A), v(A)); I("v_exp_f32", v(B), v(B))
        I("v_mov_b32", v(vM), v(TM))
        I("v_fma_f32", v(vL), v(vL), v(AL), v(A))
        I("v_cvt_pk_bf16_f32", v(vPP), v(A), v(B))
        I("v_add_f32", v(vL), v(vL), v(B))
        for h in range(2):
            for k in range(8):
                d = vACC+8*h+k
                I("v_mul_f32_dpp", v(d), v(AL), v(d), mod=f"row_newbcast:{4*h} {DPPALL}")
        a.vm_wait(f"V{n}")
        if O['stage'] and n in (2, 3): a.lgkm(0)
        for j in range(2):
            for rr in range(2):
                for r in (2*rr, 2*rr+1):
                    t0, t1 = PTm[2*(r & 1)], PTm[2*(r & 1)+1]
                    I("v_perm_b32", v(t0), v(vb+4*(2*j+1)+r), v(vb+4*(2*j)+r), s(sSELLO))
                    I("v_perm_b32", v(t1), v(vb+4*(2*j+1)+r), v(vb+4*(2*j)+r), s(sSELHI))
                for h in range(2):
                    for r in (2*rr, 2*rr+1):
                        t0, t1 = PTm[2*(r & 1)], PTm[2*(r & 1)+1]
                        I("v_dot2c_f32_bf16_dpp", v(vACC+8*h+2*r), v(vPP), v(t0), mod=f"row_newbcast:{4*(2*j+h)} {DPPALL}")
                        I("v_dot2c_f32_bf16_dpp", v(vACC+8*h+2*r+1), v(vPP), v(t1), mod=f"row_newbcast:{4*(2*j+h)} {DPPALL}")
        if nxt is not None: issue_tile('V', nxt)
        if n >= O['gate_start'] and not gate_done:
            if gate_next == 0: gate_prep()
            for _ in range(O['gate_per_tile']):
                if gate_next < 9:
                    gate_col(gate_next); gate_next += 1
            if gate_next == 9:
                gate_fin(); gate_done = True
        if n >= O['wo_start']:
            lim = wo_hist.get(n-2, 0)
            while perm_next < 18 and 2*perm_next+1 < lim:
                wo_perm(perm_next); perm_next += 1
            for _ in range(O['wo_per_tile']):
                if wo_next < 36 and (wo_next < 20 or gate_done) and (wo_next >= 16 or n >= 3 or not O['stage']):
                    wo_issue(wo_next); wo_next += 1
            wo_hist[n] = wo_next
            if n == 15:
                while perm_next < 18:
                    wo_perm(perm_next); perm_next += 1
    assert wo_next == 36 and perm_next == 18, (wo_next, perm_next)

    stamp(5,6)
    T0, T1, T2 = vS, vS+1, vS+2
    I("v_add_f32_dpp", v(vL), v(vL), v(vL), mod=f"row_ror:8 {DPPALL}")
    I("v_mov_b32", v(T0), v(vM))
    allred("v_max_f32", T0, T1, rows=False)
    I("v_sub_f32", v(T2), v(vM), v(T0)); I("v_exp_f32", v(T2), v(T2))
    I("v_mul_f32", v(vL), v(vL), v(T2))
    for h in range(2):
        for k in range(8):
            d = vACC+8*h+k
            I("v_mul_f32_dpp", v(d), v(T2), v(d), mod=f"row_newbcast:{4*h} {DPPALL}")
    allred("v_add_f32", vL, T1, rows=False)
    for k in range(8): I("v_permlane32_swap_b32", v(vACC+k), v(vACC+8+k))
    for k in range(8): I("v_add_f32", v(vACC+k), v(vACC+k), v(vACC+8+k))
    for k in range(4): I("v_permlane16_swap_b32", v(vACC+k), v(vACC+4+k))
    for k in range(4): I("v_add_f32", v(vACC+k), v(vACC+k), v(vACC+4+k))
    I("v_and_b32", v(5), 15, v(vLANE)); I("v_lshlrev_b32", v(5), 5, v(5))
    I("v_bfe_u32", v(6), v(vLANE), 4, 1); I("v_lshl_add_u32", v(5), v(6), 4, v(5))
    I("v_lshrrev_b32", v(6), 5, v(vLANE)); I("v_lshl_add_u32", v(5), v(6), 9, v(5))
    I("s_lshl_b32", s(sT0), s(sW), 10); I("s_add_u32", s(sT0), s(sT0), L_OP); I("v_add_u32", v(5), s(sT0), v(5))
    I("ds_write_b128", v(5), vr(vACC))
    I("v_bfe_u32", v(6), v(vLANE), 2, 1); I("v_lshlrev_b32", v(6), 5, v(6))
    I("s_lshl_b32", s(sT0), s(sW), 2); I("v_add_u32", v(6), s(sT0), v(6))
    I("ds_write_b32", v(6), v(T0), mod=f"offset:{L_ML}")
    I("ds_write_b32", v(6), v(vL), mod=f"offset:{L_ML+64}")
    a.lgkm(0)
    I("s_barrier")
    stamp(5,6)
    if OPT['dbgts']:
        I("s_memrealtime", "s[98:99]"); a.lgkm(0); I("s_mov_b32", "s3", "s98")
    R = 208
    I("v_lshrrev_b32", v(5), 3, v(vLANE)); I("v_lshlrev_b32", v(5), 4, v(5))
    I("s_lshl_b32", s(sT0), s(sW), 7); I("s_add_u32", s(sT0), s(sT0), L_OP); I("v_add_u32", v(5), s(sT0), v(5))
    I("s_lshr_b32", s(sT1), s(sW), 2); I("s_lshl_b32", s(sT1), s(sT1), 5); I("v_mov_b32", v(6), s(sT1))
    MM = R+32; LL = R+40
    I("ds_read_b128", vr(MM), v(6), mod=f"offset:{L_ML}"); I("ds_read_b128", vr(MM+4), v(6), mod=f"offset:{L_ML+16}")
    I("ds_read_b128", vr(LL), v(6), mod=f"offset:{L_ML+64}"); I("ds_read_b128", vr(LL+4), v(6), mod=f"offset:{L_ML+80}")
    for w in range(8):
        I("ds_read_b128", vr(R+4*w), v(5), mod=f"offset:{1024*w}")
    a.lgkm(10)
    MX = vS; LS = vS+1; O = vS+2
    I("v_max3_f32", v(MX), v(MM), v(MM+1), v(MM+2)); I("v_max3_f32", v(MX), v(MX), v(MM+3), v(MM+4))
    I("v_max3_f32", v(MX), v(MX), v(MM+5), v(MM+6)); I("v_max_f32", v(MX), v(MX), v(MM+7))
    for w in range(8): I("v_sub_f32", v(MM+w), v(MM+w), v(MX))
    for w in range(8): I("v_exp_f32", v(MM+w), v(MM+w))
    a.lgkm(8)
    I("v_mul_f32", v(LS), v(MM), v(LL))
    for w in range(1, 8): I("v_fmac_f32", v(LS), v(MM+w), v(LL+w))
    a.lgkm(0)
    for w in range(8):
        for q in range(4):
            if w == 0: I("v_mul_f32", v(O+q), v(MM), v(R+q))
            else: I("v_fmac_f32", v(O+q), v(MM+w), v(R+4*w+q))
    P01, P23 = vS+6, vS+7
    I("v_cvt_pk_bf16_f32", v(P01), v(O), v(O+1)); I("v_cvt_pk_bf16_f32", v(P23), v(O+2), v(O+3))
    for rr in range(8):
        I("v_readlane_b32", s(sH+2*rr), v(P01), 8*rr); I("v_readlane_b32", s(sH+2*rr+1), v(P23), 8*rr)
    I("s_lshr_b32", s(sT1), s(sW), 2); I("s_lshl_b32", s(sT1), s(sT1), 3); I("v_mov_b32", v(6), s(sT1))
    I("ds_write_b64", v(6), vr(MX, 2), mod=f"offset:{L_ML2}")
    TL = vACC+8; TMn = vACC
    for c in range(8): I("v_dot2_f32_bf16", v(TL+c), v(WP[(16, c)]), v(P01), 0)
    for c in range(8): I("v_dot2_f32_bf16", v(TL+c), v(WP[(17, c)]), v(P23), v(TL+c))
    for k in range(16):
        for c in range(8):
            I("v_dot2_f32_bf16", v(TMn+c), v(WP[(k, c)]), s(sH+k), 0 if k == 0 else v(TMn+c))
    for k in range(4): I("v_permlane32_swap_b32", v(TL+k), v(TL+4+k))
    for k in range(4): I("v_add_f32", v(TL+k), v(TL+k), v(TL+4+k))
    for k in range(2): I("v_permlane16_swap_b32", v(TL+k), v(TL+2+k))
    for k in range(2): I("v_add_f32", v(TL+k), v(TL+k), v(TL+2+k))
    I("v_add_f32_dpp", v(TL), v(TL), v(TL), mod="row_ror:8 row_mask:0xf bank_mask:0x3")
    I("v_add_f32_dpp", v(TL), v(TL+1), v(TL+1), mod="row_ror:8 row_mask:0xf bank_mask:0xc")
    I("s_mul_i32", s(sT0), s(sW), 2304)
    I("v_and_b32", v(5), 7, v(vLANE)); I("v_lshlrev_b32", v(5), 5, v(5))
    I("v_lshrrev_b32", v(6), 3, v(vLANE)); I("v_lshl_add_u32", v(5), v(6), 2, v(5)); I("v_add_u32", v(5), s(sT0), v(5))
    I("v_lshlrev_b32", v(6), 5, v(vLANE)); I("v_add_u32", v(6), s(sT0), v(6))
    I("ds_write_b128", v(6), vr(TMn), mod=f"offset:{L_TP}")
    I("ds_write_b128", v(6), vr(TMn+4), mod=f"offset:{L_TP+16}")
    I("ds_write_b32", v(5), v(TL), mod=f"offset:{L_TP+2048}")
    stamp(7,40)
    a.lgkm(0)
    I("s_barrier")
    stamp(5,6)
    I("s_cmp_ge_u32", s(sW), 5); I("s_cbranch_scc1", "K1_W5"+sfx)
    I("v_cmp_gt_u32", "vcc", 288, v(vTID)); I("s_and_saveexec_b64", "s[96:97]", "vcc")
    I("v_lshlrev_b32", v(5), 4, v(vTID))
    I("v_cmp_le_u32", "vcc", 144, v(vTID)); I("v_mov_b32", v(7), 6912); I("v_cndmask_b32", v(6), 0, v(7), "vcc")
    I("v_add_u32", v(6), v(6), v(5))
    for w in range(4): I("ds_read_b128", vr(R+4*w), v(6), mod=f"offset:{L_TP+2304*w}")
    a.lgkm(0)
    for k in range(4):
        I("v_add_f32", v(R+k), v(R+k), v(R+4+k)); I("v_add_f32", v(R+8+k), v(R+8+k), v(R+12+k))
    for k in range(4): I("v_add_f32", v(R+k), v(R+k), v(R+8+k))
    I("buffer_store_dwordx4", vr(R), v(5), sr(S_WS), 0, mod="offen "+(STMOD if OPT['fused'] else ""))
    I("s_branch", "K1_FIN"+sfx)
    a.label("K1_W5"+sfx)
    I("s_cmp_lg_u32", s(sW), 5); I("s_cbranch_scc1", "K1_W6"+sfx)
    I("s_mov_b64", "exec", 1)
    I("v_mov_b32", v(5), 0)
    I("ds_read_b128", vr(R), v(5), mod=f"offset:{L_ML2}")
    a.lgkm(0)
    I("s_movk_i32", s(sT0), 4608)
    I("buffer_store_dwordx4", vr(R), v(5), sr(S_WS), s(sT0), mod="offen "+(STMOD if OPT['fused'] else ""))
    I("s_branch", "K1_FIN"+sfx)
    a.label("K1_W6"+sfx)
    I("s_cmp_lg_u32", s(sW), 6); I("s_cbranch_scc1", "K1_FIN"+sfx)
    I("s_mov_b64", "exec", 0x1ff)
    I("v_lshlrev_b32", v(5), 2, v(vLANE))
    for w in range(8): I("ds_read_b32", v(R+w), v(5), mod=f"offset:{L_GP+64*w}")
    a.lgkm(0)
    for st in (4, 2, 1):
        for w in range(st): I("v_add_f32", v(R+w), v(R+w), v(R+w+st))
    bfr1(R)
    I("s_waitcnt", "vmcnt(0)")
    I("v_lshlrev_b32", v(R+8), 16, v(192))
    I("v_add_f32", v(R), v(R), v(R+8)); bfr1(R)
    I("v_mul_f32", v(R+1), s(sLOG2E), v(R)); I("v_exp_f32", v(R+1), "-"+v(R+1))
    I("v_add_f32", v(R+1), 1.0, v(R+1)); I("v_rcp_f32", v(R+2), v(R+1))
    I("v_mul_f32", v(R+3), v(R), v(R+2))
    I("v_fma_f32", v(R+4), "-"+v(R+3), v(R+1), v(R)); I("v_fma_f32", v(R+3), v(R+4), v(R+2), v(R+3))
    bfr1(R+3)
    if not OPT['fused']:
        I("s_mul_i32", s(sT0), s(sBP), 36); I("s_add_u32", s(sT0), s(sT0), G_OFF)
        srd(S_M2, P_WS, s(sT0), 36)
        I("buffer_store_dword", v(R+3), v(5), sr(S_M2), 0, mod="offen")
    else:
        I("v_mov_b32", v(197), v(R+3))
        I("s_mov_b64", "exec", -1)
        I("v_mul_u32_u24", v(5), TSTRIDE, v(vLANE))
        I("s_mul_i32", s(sT1), s(sP), 36); I("v_add_u32", v(6), s(sT1), v(5))
        I("s_mul_i32", s(sT0), s(sB), 64*TSTRIDE); srd(S_WS, P_WS, s(sT0), 64*TSTRIDE)
        I("s_mul_i32", s(sT0), s(sBP), 18); srd(S_M1, P_OUT, s(sT0), 18)
        I("v_and_b32", v(7), 7, v(vLANE)); I("v_cmp_eq_u32", "s[96:97]", 2, v(7))
        I("s_mov_b32", s(sFLAG), 0)
        a.label("K1_ST"+sfx)
        I("v_cndmask_b32", v(198), 0, v(194), "s[96:97]")
        allred("v_add_u32", 198, 199)
        I("v_readfirstlane_b32", s(sT0), v(198))
        a.nop(2)
        I("s_cmp_eq_u32", s(sT0), 256); I("s_cbranch_scc1", "K1_STOK"+sfx)
        I("s_add_u32", s(sFLAG), s(sFLAG), 1); I("s_cmp_gt_u32", s(sFLAG), 20000); I("s_cbranch_scc1", "K1_STOK"+sfx)
        I("s_sleep", 16)
        I("buffer_load_dword", v(194), v(195), sr(S_M2), 0, mod="offen sc1")
        I("s_waitcnt", "vmcnt(0)")
        I("s_branch", "K1_ST"+sfx)
        a.label("K1_STOK"+sfx)
        I("s_mov_b64", "s[96:97]", -1)
        I("s_movk_i32", s(sT1), 4608)
        a.label("K1_PL"+sfx)
        I("s_mov_b64", "exec", "s[96:97]")
        LM = "sc1"
        I("buffer_load_dwordx4", vr(R+24), v(5), sr(S_WS), s(sT1), mod=f"offen {LM}")
        I("buffer_load_dwordx4", vr(R), v(6), sr(S_WS), 0, mod=f"offen {LM}")
        I("buffer_load_dwordx4", vr(R+4), v(6), sr(S_WS), 0, mod=f"offen offset:16 {LM}")
        I("buffer_load_dword", v(R+8), v(6), sr(S_WS), 0, mod=f"offen offset:32 {LM}")
        I("buffer_load_dwordx4", vr(R+12), v(6), sr(S_WS), 0, mod=f"offen offset:2304 {LM}")
        I("buffer_load_dwordx4", vr(R+16), v(6), sr(S_WS), 0, mod=f"offen offset:2320 {LM}")
        I("buffer_load_dword", v(R+20), v(6), sr(S_WS), 0, mod=f"offen offset:2336 {LM}")
        I("s_waitcnt", "vmcnt(0)")
        regs = [R+k for k in range(9)] + [R+12+k for k in range(9)] + [R+24+k for k in range(4)]
        I("v_max3_u32", v(198), v(regs[0]), v(regs[1]), v(regs[2]))
        I("v_max3_u32", v(199), v(regs[3]), v(regs[4]), v(regs[5]))
        for k in range(6, 22, 4):
            I("v_max3_u32", v(198), v(198), v(regs[k]), v(regs[k+1]))
            I("v_max3_u32", v(199), v(199), v(regs[k+2]), v(regs[k+3]))
        I("v_max_u32", v(198), v(198), v(199))
        I("v_cmp_eq_u32", "s[96:97]", -1, v(198))
        a.nop(2)
        I("s_cmp_eq_u64", "s[96:97]", 0); I("s_cbranch_scc1", "K1_PD"+sfx)
        I("s_add_u32", s(sFLAG), s(sFLAG), 1); I("s_cmp_gt_u32", s(sFLAG), 20000); I("s_cbranch_scc1", "K1_PD"+sfx)
        I("s_bcnt1_i32_b64", s(sT0), "s[96:97]"); I("s_cmp_le_u32", s(sT0), OPT['thr']); I("s_cbranch_scc1", "K1_PS"+sfx)
        I("s_sleep", OPT['slp_l'])
        a.label("K1_PS"+sfx)
        if OPT['slp_s']: I("s_sleep", OPT['slp_s'])
        I("s_branch", "K1_PL"+sfx)
        a.label("K1_PD"+sfx)
        I("s_mov_b64", "exec", -1)
        stamp(198,199)
        fin_math(R, 197, 193, vLANE)
        I("s_mov_b64", "exec", 0x1ff)
        I("buffer_store_short", v(R), v(196), sr(S_M1), 0, mod="offen")
        if OPT['dbgts']:
            I("s_mov_b64", "exec", 1)
            I("s_memrealtime", "s[98:99]"); a.lgkm(0)
            I("v_mov_b32", v(198), "s98"); I("v_mov_b32", v(199), 20)
            I("buffer_atomic_umax", v(198), v(199), sr(S_M2), 0, mod="offen")
            I("v_mov_b32", v(200), "s3"); I("v_mov_b32", v(201), 24)
            I("buffer_atomic_umax", v(200), v(201), sr(S_M2), 0, mod="offen")
            I("s_not_b32", "s3", "s3")
            I("v_mov_b32", v(202), "s3"); I("v_mov_b32", v(203), 28)
            I("buffer_atomic_umax", v(202), v(203), sr(S_M2), 0, mod="offen")
    a.label("K1_FIN"+sfx)
    stamp(5,6)
    stamp_dump()
    I("s_endpgm")

def fin_math(R, G, XV, LN):
    ML = R+24; C = [R+32, R+33]; T = R+34
    for h in range(2):
        Mv, Lv = ML+2*h, ML+2*h+1
        I("v_max_f32_dpp", v(T), v(Mv), v(Mv), mod=f"quad_perm:[1,0,3,2] {DPPALL}")
        I("v_max_f32_dpp", v(T), v(T), v(T), mod=f"quad_perm:[2,3,0,1] {DPPALL}")
        I("v_sub_f32", v(T), v(Mv), v(T)); I("v_exp_f32", v(C[h]), v(T))
        I("v_mul_f32", v(T), v(C[h]), v(Lv))
        I("v_add_f32_dpp", v(T), v(T), v(T), mod=f"quad_perm:[1,0,3,2] {DPPALL}")
        I("v_add_f32_dpp", v(T), v(T), v(T), mod=f"quad_perm:[2,3,0,1] {DPPALL}")
        I("v_rcp_f32", v(T), v(T))
        I("v_mul_f32", v(C[h]), v(C[h]), v(T))
    for k in range(9): I("v_mul_f32", v(R+k), v(C[0]), v(R+k))
    for k in range(9): I("v_fmac_f32", v(R+k), v(C[1]), v(R+12+k))
    for n in (8, 4, 2, 1):
        for k in range(9): I("v_add_f32_dpp", v(R+k), v(R+k), v(R+k), mod=f"row_ror:{n} {DPPALL}")
    for sw in ("v_permlane16_swap_b32", "v_permlane32_swap_b32"):
        for k in range(9): I("v_mov_b32", v(R+12+k), v(R+k))
        for k in range(9): I(sw, v(R+k), v(R+12+k))
        for k in range(9): I("v_add_f32", v(R+k), v(R+k), v(R+12+k))
    for k in range(1, 9):
        I("v_cmp_eq_u32", "vcc", k, v(LN)); I("v_cndmask_b32", v(R), v(R), v(R+k), "vcc")
    bfr1(R)
    I("v_mul_f32", v(R), v(R), v(G)); bfr1(R)
    I("v_lshlrev_b32", v(XV), 16, v(XV))
    I("v_add_f32", v(R), v(R), v(XV))
    I("v_cvt_pk_bf16_f32", v(R), v(R), v(R))

def k2():
    a.raw(f".globl {K2}\n.p2align 8\n.type {K2},@function\n{K2}:")
    a.vm = []
    I("s_cmp_ge_u32", "s2", 256); I("s_cbranch_scc1", "K2_END")
    I("s_load_dwordx2", "s[36:37]", "s[0:1]", 0)
    I("s_load_dwordx2", "s[56:57]", "s[0:1]", 80)
    I("s_load_dwordx2", "s[60:61]", "s[0:1]", 96)
    I("s_mov_b32", s(sMASK), "0xffff0000")
    I("s_lshr_b32", s(sB), "s2", 6); I("s_and_b32", s(sP), "s2", 63)
    I("v_mul_u32_u24", v(5), TSTRIDE, v(0))
    I("s_mul_i32", s(sT1), s(sP), 36)
    I("v_add_u32", v(6), s(sT1), v(5))
    I("v_lshlrev_b32", v(7), 2, v(0)); I("v_lshlrev_b32", v(8), 1, v(0))
    a.lgkm(0)
    I("s_mul_i32", s(sT0), s(sB), 64*TSTRIDE); srd(S_WS, P_WS, s(sT0), 64*TSTRIDE)
    R = 16
    I("buffer_load_dwordx4", vr(R), v(6), sr(S_WS), 0, mod="offen")
    I("buffer_load_dwordx4", vr(R+4), v(6), sr(S_WS), 0, mod="offen offset:16")
    I("buffer_load_dword", v(R+8), v(6), sr(S_WS), 0, mod="offen offset:32")
    I("buffer_load_dwordx4", vr(R+12), v(6), sr(S_WS), 0, mod="offen offset:2304")
    I("buffer_load_dwordx4", vr(R+16), v(6), sr(S_WS), 0, mod="offen offset:2320")
    I("buffer_load_dword", v(R+20), v(6), sr(S_WS), 0, mod="offen offset:2336")
    I("s_movk_i32", s(sT0), 4608)
    I("buffer_load_dwordx4", vr(R+24), v(5), sr(S_WS), s(sT0), mod="offen")
    I("s_mul_i32", s(sT0), "s2", 36); I("s_add_u32", s(sT0), s(sT0), G_OFF); srd(S_M2, P_WS, s(sT0), 36)
    I("buffer_load_dword", v(R+28), v(7), sr(S_M2), 0, mod="offen")
    I("s_mul_i32", s(sT0), "s2", 18); srd(S_X, P_X, s(sT0), 18); srd(S_M1, P_OUT, s(sT0), 18)
    I("buffer_load_ushort", v(R+29), v(8), sr(S_X), 0, mod="offen")
    I("s_waitcnt", "vmcnt(0)")
    fin_math(R, R+28, R+29, 0)
    I("s_mov_b64", "exec", 0x1ff)
    I("buffer_store_short", v(R), v(8), sr(S_M1), 0, mod="offen")
    a.label("K2_END")
    I("s_endpgm")

hdr = open('cdna_kernels/'+name+'.s.ref').read().split('\n')
top = [l for l in hdr if l.startswith(';') and '@launch' not in l and 'Override' not in l and 'grid=ceil' not in l]
out = "\n".join(top)+"\n"
if OPT['fused']:
    K1 = name+"_kernel"
    out += f"; @launch grid=(256,1,1) block=(512,1,1) lds={LDS_SIZE}\n"
else:
    out += f"; @launch kernel={K1} grid=(256,1,1) block=(512,1,1) lds={LDS_SIZE}\n"
    out += f"; @launch kernel={K2} grid=(256,1,1) block=(64,1,1) lds=0\n"
out += '.amdgcn_target "amdgcn-amd-amdhsa--gfx950"\n.text\n'
k1()
if not OPT['fused']: k2()
out += a.text()
out += '.section .rodata,"a"\n'
for kn, nv in (((K1, 256),) if OPT['fused'] else ((K1, 256), (K2, 64))):
    out += f""".p2align 6
.amdhsa_kernel {kn}
  .amdhsa_next_free_vgpr {nv}
  .amdhsa_next_free_sgpr 102
  .amdhsa_accum_offset {nv}
  .amdhsa_group_segment_fixed_size 0
  .amdhsa_kernarg_size 104
  .amdhsa_user_sgpr_count 2
  .amdhsa_user_sgpr_kernarg_segment_ptr 1
  .amdhsa_system_sgpr_workgroup_id_x 1
.end_amdhsa_kernel
"""
open(sys.argv[1], 'w').write(out)
print("instrs", a.ninstr, "bytes", len(out))
```

```python
import sys, struct, copy
sys.path.insert(0, 'gen')
from asmlib import Asm

def f32(x): return "0x%08x" % struct.unpack('<I', struct.pack('<f', x))[0]
LOG2E = 1.4426950408889634
SCALE = 0.08838834764831845
C0 = 2*0.7978845608028654*LOG2E
C1 = C0*0.044715

OPT = dict(ts=0, nogate=0, pwq=0, pwo=0, pk=1, pv=1, pst=2, depth=4, prio=1,
           slp_l=4, slp_s=1, thr=8, qslp=2, h1slp=1, qg=1, p1=64, p2=80, pw=48, c0=10, ct=250, bal=1, fl=4, rot=0, nocomp=0, noq=0)
for arg in sys.argv[2:]:
    k, v = arg.split('=')
    OPT[k] = int(v)
D = OPT['depth']

L_XN = 0; L_QP = 9216; L_QS = 10240; L_GP = 12288; L_ML = 12800; L_OB = 13568; L_FL = 13696; L_TS = 14336; L_OP = 16384
LDS_SIZE = 16384 + 5*8192
REC = 14336
O_IN = 9216
G_OFF = 0x3a0000; Q_OFF = 0x3b0000; SP_OFF = 0x3c0000
NS = 96; NP = 32

a = Asm()
I = a.I
S_K, S_V, S_WQ, S_WO, S_X, S_M1, S_WS, S_M2 = 4, 8, 12, 16, 20, 24, 28, 32
P_X, P_K, P_V, P_WQ, P_WO, P_W1, P_B1, P_W2, P_B2, P_OUT, P_DBG, P_WS = 36, 38, 40, 42, 44, 48, 50, 52, 54, 56, 58, 60
sKVH, sSPLIT, sB, sP, sW, sT0, sT1 = 62, 63, 80, 81, 82, 83, 84
sH = 64
sCB, sGRP, sCOFF = 74, 75, 76
sSELLO, sSELHI, sMASK, sSCALE, sLOG2E, sJ = 85, 86, 87, 88, 89, 90
sM3 = 92
sFLAG = 91
sNON = 100
sBP = 2
sOWN = 3; sSTART = 101; sBT = 12; sK = 73; sCUR = 77; sSLOT = 78; sPOS = 79; sNO = 92; sNB = 93; sLO = 94; sCNT = 95
sRET = 64; sWOD = 68; sVAL = 69; sGI = 74; sROT = 75
def sr(n): return f"s[{n}:{n+3}]"
def vr(n, k=4): return f"v[{n}:{n+k-1}]"
def v(n): return f"v{n}"
def s(n): return f"s{n}"

def srd(dst, ptr, off, records):
    if off is None:
        I("s_mov_b32", s(dst), s(ptr)); I("s_mov_b32", s(dst+1), s(ptr+1))
    else:
        I("s_add_u32", s(dst), s(ptr), off); I("s_addc_u32", s(dst+1), s(ptr+1), 0)
    I("s_mov_b32", s(dst+2), records); I("s_mov_b32", s(dst+3), "0x20000")

DPPALL = "row_mask:0xf bank_mask:0xf"
def allred(op, x, t, rows=True):
    if rows:
        for n in (8, 4, 2, 1):
            I(op+"_dpp", v(x), v(x), v(x), mod=f"row_ror:{n} {DPPALL}")
    I("v_mov_b32", v(t), v(x)); I("v_permlane16_swap_b32", v(x), v(t)); I(op, v(x), v(x), v(t))
    I("v_mov_b32", v(t), v(x)); I("v_permlane32_swap_b32", v(x), v(t)); I(op, v(x), v(x), v(t))

def bfr1(x):
    I("v_cvt_pk_bf16_f32", v(x), v(x), v(x)); I("v_and_b32", v(x), s(sMASK), v(x))
def bfr2(x, y, w):
    I("v_cvt_pk_bf16_f32", v(w), v(x), v(y)); I("v_lshlrev_b32", v(x), 16, v(w)); I("v_and_b32", v(y), s(sMASK), v(w))

def layernorm(X, O, T):
    sm, tt, mean, var, den, rc = T[:6]
    I("v_add_f32", v(sm), v(X[0]), v(X[1]))
    for k in range(2, 9): I("v_add_f32", v(sm), v(sm), v(X[k]))
    allred("v_add_f32", sm, tt)
    I("v_mul_f32", v(mean), f32(1.0/576), v(sm))
    for k in range(9): I("v_sub_f32", v(O[k]), v(X[k]), v(mean))
    I("v_mul_f32", v(var), v(O[0]), v(O[0]))
    for k in range(1, 9): I("v_fmac_f32", v(var), v(O[k]), v(O[k]))
    allred("v_add_f32", var, tt)
    I("v_mul_f32", v(var), f32(1.0/576), v(var))
    bfr2(mean, var, tt)
    I("v_add_f32", v(var), f32(1e-5), v(var)); bfr1(var)
    I("v_sqrt_f32", v(den), v(var)); bfr1(den)
    I("v_rcp_f32", v(rc), v(den))
    for k in range(9): I("v_sub_f32", v(O[k]), v(X[k]), v(mean))
    for k in range(0, 8, 2): bfr2(O[k], O[k+1], tt)
    bfr1(O[8])
    for k in range(9):
        I("v_mul_f32", v(sm), v(O[k]), v(rc))
        I("v_fma_f32", v(tt), "-"+v(sm), v(den), v(O[k]))
        I("v_fma_f32", v(O[k]), v(tt), v(rc), v(sm))
    for k in range(0, 8, 2): bfr2(O[k], O[k+1], tt)
    bfr1(O[8])

vTID, vLANE, vKOFF, vM, vL = 0, 1, 2, 3, 4
vQ = 8; vACC = 16; vS = 32
WO = 48
GR = 64
RING = 256 - 32*D
POLS = ["", "nt", "sc1", "sc0", "sc0 sc1", "sc1 nt", "sc0 nt", "sc0 sc1 nt"]
WMOD = POLS[OPT['pwq']]; WOMOD = POLS[OPT['pwo']]; STMOD = POLS[OPT['pst']]
KVP = {'K': POLS[OPT['pk']], 'V': POLS[OPT['pv']]}

def tile_regs(kind, n): return RING + 32*(n % D) + (0 if kind == 'K' else 16)
def room():
    if len(a.vm) >= 62:
        I("s_waitcnt", f"vmcnt({len(a.vm)-4})"); a.vm = a.vm[4:]
def issue_tile(kind, n, so):
    base = tile_regs(kind, n)
    srdn = S_K if kind == 'K' else S_V
    for i in range(4):
        I("buffer_load_dwordx4", vr(base+4*i), v(vKOFF), sr(srdn), s(so), mod=f"offen offset:{i*1024} {KVP[kind]}")

ts_n = [0]
def stamp(ra, rb, idx=None):
    if not OPT['ts']: return
    if idx is not None: ts_n[0] = idx
    I("s_memrealtime", "s[98:99]"); a.lgkm(0)
    I("s_lshl_b32", "s99", s(sW), 7)
    I("v_mov_b32", v(ra), "s98"); I("v_mov_b32", v(rb), "s99")
    I("ds_write_b32", v(rb), v(ra), mod=f"offset:{L_TS+4*ts_n[0]}")
    ts_n[0] += 1
def stamp_dump():
    if not OPT['ts']: return
    I("s_mov_b64", "exec", -1)
    I("s_lshl_b32", "s99", s(sW), 7)
    I("s_getreg_b32", "s98", "hwreg(HW_REG_XCC_ID)"); I("s_and_b32", "s98", "s98", 15)
    I("v_mov_b32", v(5), "s98"); I("v_mov_b32", v(6), "s99")
    I("ds_write_b32", v(6), v(5), mod=f"offset:{L_TS+4*31}")
    I("v_and_b32", v(5), 31, v(vLANE)); I("v_lshlrev_b32", v(5), 2, v(5)); I("v_add_u32", v(5), "s99", v(5))
    a.lgkm(0)
    I("ds_read_b32", v(6), v(5), mod=f"offset:{L_TS}")
    I("s_lshl_b32", s(sT0), "s2", 10); I("s_add_u32", s(sT0), s(sT0), 0x400000)
    srd(S_M1, P_WS, s(sT0), 1024)
    a.lgkm(0)
    I("buffer_store_dword", v(6), v(5), sr(S_M1), 0, mod="offen")

name = "recurrent_scan__gqa_block_cached__mixer_token_mlp__decode"
K1 = name+"_kernel"
SVC = 0

def started_check(tag, vd, vo, t0, t1):
    I("v_and_b32", v(t0), 7, v(vLANE)); I("v_cmp_eq_u32", "s[96:97]", 2, v(t0))
    I("s_mov_b32", s(sFLAG), 0)
    a.label("K1_ST"+tag)
    I("v_cndmask_b32", v(t0), 0, v(vd), "s[96:97]")
    allred("v_add_u32", t0, t1)
    I("v_readfirstlane_b32", s(sT0), v(t0))
    a.nop(2)
    I("s_cmp_eq_u32", s(sT0), 256); I("s_cbranch_scc1", "K1_STOK"+tag)
    I("s_add_u32", s(sFLAG), s(sFLAG), 1); I("s_cmp_gt_u32", s(sFLAG), 20000); I("s_cbranch_scc1", "K1_STOK"+tag)
    I("s_sleep", 16)
    I("buffer_load_dword", v(vd), v(vo), sr(S_M2), 0, mod="offen sc1")
    I("s_waitcnt", "vmcnt(0)")
    I("s_branch", "K1_ST"+tag)
    a.label("K1_STOK"+tag)

def poll(tag, loads, regs, t0, t1, slp_s):
    I("s_mov_b64", "s[96:97]", -1)
    a.label("K1_PL"+tag)
    I("s_mov_b64", "exec", "s[96:97]")
    loads()
    I("s_waitcnt", "vmcnt(0)")
    regs = list(regs)
    while len(regs) < 6 or len(regs) % 4 != 2: regs.append(regs[0])
    I("v_max3_u32", v(t0), v(regs[0]), v(regs[1]), v(regs[2]))
    I("v_max3_u32", v(t1), v(regs[3]), v(regs[4]), v(regs[5]))
    for k in range(6, len(regs), 4):
        I("v_max3_u32", v(t0), v(t0), v(regs[k]), v(regs[k+1]))
        I("v_max3_u32", v(t1), v(t1), v(regs[k+2]), v(regs[k+3]))
    I("v_max_u32", v(t0), v(t0), v(t1))
    I("v_cmp_eq_u32", "s[96:97]", -1, v(t0))
    a.nop(2)
    I("s_cmp_eq_u64", "s[96:97]", 0); I("s_cbranch_scc1", "K1_PD"+tag)
    I("s_add_u32", s(sFLAG), s(sFLAG), 1); I("s_cmp_gt_u32", s(sFLAG), 20000); I("s_cbranch_scc1", "K1_PD"+tag)
    I("s_bcnt1_i32_b64", s(sT0), "s[96:97]"); I("s_cmp_le_u32", s(sT0), OPT['thr']); I("s_cbranch_scc1", "K1_PS"+tag)
    I("s_sleep", OPT['slp_l'])
    a.label("K1_PS"+tag)
    if slp_s: I("s_sleep", slp_s)
    I("s_branch", "K1_PL"+tag)
    a.label("K1_PD"+tag)
    I("s_mov_b64", "exec", -1)


def lds_spin(tag, off, want, nd=1):
    I("v_mov_b32", v(5), 0); I("s_mov_b32", s(sFLAG), 0)
    a.label("K1_LS"+tag)
    if nd == 1: I("ds_read_b32", v(6), v(5), mod=f"offset:{off}")
    else: I("ds_read_b64", vr(6, 2), v(5), mod=f"offset:{off}")
    a.lgkm(0)
    I("v_readfirstlane_b32", s(sT0), v(6+nd-1))
    a.nop(2)
    if want is None: I("s_cmp_lg_u32", s(sT0), 0)
    else: I("s_cmp_eq_u32", s(sT0), want)
    I("s_cbranch_scc1", "K1_LD"+tag)
    I("s_add_u32", s(sFLAG), s(sFLAG), 1); I("s_cmp_gt_u32", s(sFLAG), 2000000); I("s_cbranch_scc1", "K1_LD"+tag)
    I("s_sleep", 1)
    I("s_branch", "K1_LS"+tag)
    a.label("K1_LD"+tag)

def lds_inc(off):
    I("v_mov_b32", v(5), 0); I("v_mov_b32", v(6), 1)
    I("s_mov_b64", "exec", 1)
    I("ds_add_u32", v(5), v(6), mod=f"offset:{off}")
    I("s_mov_b64", "exec", -1)

def ring_issue():
    I("s_xor_b32", s(sT0), s(sW), 4); I("s_and_b32", s(sT1), s(sT0), 4); I("s_mul_i32", s(sT1), s(sT1), 3)
    I("s_add_u32", s(sT0), s(sT0), s(sT1))
    I("s_add_u32", s(sT0), s(sT0), s(sROT))
    for r in range(4):
        if r: I("s_add_u32", s(sT0), s(sT0), 4)
        I("s_sub_u32", s(sT1), s(sT0), NS); I("s_cmp_ge_u32", s(sT0), NS); I("s_cselect_b32", s(sT1), s(sT1), s(sT0))
        I("s_lshl_b32", s(sT1), s(sT1), 12); I("s_add_u32", s(sT1), s(sT1), s(sOWN))
        issue_tile('K', r, sT1); issue_tile('V', r, sT1)
    I("s_mov_b32", s(sK), 1)

def call(lbl, link=sRET):
    I("s_call_b64", f"s[{link}:{link+1}]", lbl)
    a.nop(1)
def ret(link=sRET):
    a.nop(5)
    I("s_setpc_b64", f"s[{link}:{link+1}]")

MI = 120
def k1():
    a.raw(f".globl {K1}\n.p2align 8\n.type {K1},@function\n{K1}:")
    I("s_cmp_ge_u32", "s2", 256); I("s_cbranch_scc1", "K1_END")
    I("s_load_dwordx16", "s[36:51]", "s[0:1]", 0)
    I("s_load_dwordx8", "s[52:59]", "s[0:1]", 64)
    I("s_load_dwordx2", "s[60:61]", "s[0:1]", 96)
    I("s_memrealtime", "s[98:99]")
    I("s_and_b32", s(sSPLIT), "s2", 3)
    I("s_bfe_u32", s(sB), "s2", 0x10002); I("s_lshr_b32", s(sT0), "s2", 7); I("s_lshl_b32", s(sT0), s(sT0), 1); I("s_or_b32", s(sB), s(sB), s(sT0))
    I("s_bfe_u32", s(sKVH), "s2", 0x40003)
    I("s_lshl_b32", s(sJ), s(sB), 2); I("s_or_b32", s(sJ), s(sJ), s(sSPLIT))
    I("s_lshl_b32", s(sP), s(sKVH), 2); I("s_or_b32", s(sP), s(sP), s(sSPLIT))
    I("s_lshl_b32", s(sGI), s(sB), 6); I("s_or_b32", s(sGI), s(sGI), s(sP))
    I("s_lshl_b32", s(sOWN), s(sGI), 19)
    I("s_mul_i32", s(sT0), s(sGI), OPT['rot']); I("s_mul_i32", s(sT1), s(sT0), 43691); I("s_lshr_b32", s(sT1), s(sT1), 22)
    I("s_mul_i32", s(sT1), s(sT1), NS); I("s_sub_u32", s(sROT), s(sT0), s(sT1))
    I("s_lshl_b32", "s2", s(sKVH), 4); I("s_or_b32", "s2", "s2", s(sJ))
    I("s_mov_b32", s(sSELLO), "0x05040100"); I("s_mov_b32", s(sSELHI), "0x07060302")
    I("s_mov_b32", s(sMASK), "0xffff0000"); I("s_mov_b32", s(sSCALE), f32(SCALE)); I("s_mov_b32", s(sLOG2E), f32(LOG2E))
    I("s_mov_b32", s(sK), 0)
    I("v_and_b32", v(vLANE), 63, v(vTID))
    I("v_lshrrev_b32", v(5), 6, v(vTID))
    I("v_readfirstlane_b32", s(sW), v(5))
    I("v_lshlrev_b32", v(vKOFF), 4, v(vLANE))
    I("v_lshlrev_b32", v(41), 4, v(vTID)); I("v_lshlrev_b32", v(42), 1, v(vTID))
    XQ = 128; WQR = 164; QA = 184; QT = 200
    X = list(range(16, 25))
    I("v_lshrrev_b32", v(47), 2, v(vLANE)); I("v_mul_u32_u24", v(40), 144, v(5)); I("v_add_u32", v(47), v(40), v(47))
    I("v_and_b32", v(40), 3, v(vLANE)); I("v_lshlrev_b32", v(40), 3, v(40))
    I("v_lshl_add_u32", v(7), v(47), 13, v(40))
    I("v_lshlrev_b32", v(47), 4, v(47))
    I("v_lshlrev_b32", v(6), 2, v(vLANE)); I("v_lshlrev_b32", v(43), 1, v(vLANE))
    a.lgkm(0)
    I("s_mov_b32", s(sSTART), "s98")
    I("s_mul_i32", "s99", "s99", "0x9e3779b1"); I("s_xor_b32", s(sNON), "s98", "s99"); I("s_or_b32", s(sNON), s(sNON), 1)
    stamp(43+1, 45, 0)
    I("s_cmp_ge_u32", s(sW), 4); I("s_cbranch_scc1", "K1_NQ0")
    if OPT['prio']: I("s_setprio", 3)
    I("s_mul_i32", s(sT0), s(sW), 1152); srd(S_X, P_X, s(sT0), 1152)
    for k in range(4):
        I("buffer_load_dword", v(X[2*k]), v(6), sr(S_X), 0, mod=f"offen offset:{256*k}")
    I("buffer_load_ushort", v(X[8]), v(43), sr(S_X), 0, mod=f"offen offset:1024")
    I("s_lshl_b32", s(sT0), s(sKVH), 9); I("s_lshl_b32", s(sT1), s(sJ), 5); I("s_add_u32", s(sT0), s(sT0), s(sT1))
    I("s_sub_u32", s(sT1), 576*8192, s(sT0))
    srd(S_WQ, P_WQ, s(sT0), s(sT1))
    for i in range(9):
        I("s_mov_b32", s(sT0), i*131072)
        I("buffer_load_dwordx2", vr(WQR+2*i, 2), v(7), sr(S_WQ), s(sT0), mod=f"offen {WMOD}")
    a.label("K1_NQ0")
    gW1r, gB1r, gW2r = GR, GR+4, GR+8
    gW1x, gB1x, gW2x = GR+12, GR+13, GR+14
    srd(S_M1, P_W1, None, 9216); srd(S_M2, P_B1, None, 9216); srd(sM3, P_W2, None, 9216)
    I("s_movk_i32", s(sT0), 8192)
    for (dst, dx, sd) in ((gW1r, gW1x, S_M1), (gB1r, gB1x, S_M2), (gW2r, gW2x, sM3)):
        I("buffer_load_dwordx4", vr(dst), v(41), sr(sd), 0, mod="offen")
        I("buffer_load_ushort", v(dx), v(42), sr(sd), s(sT0), mod="offen")
    srd(S_WO, P_B2, None, 2)
    I("v_mov_b32", v(44), 0)
    I("buffer_load_ushort", v(MI), v(44), sr(S_WO), 0, mod="offen")
    I("s_lshl_b32", s(sCOFF), "s2", 4)
    srd(S_WS, P_X, None, 4608)
    I("s_lshl_b32", s(sT0), s(sCOFF), 1)
    I("v_and_b32", v(MI+5), 3, v(vLANE)); I("v_lshlrev_b32", v(MI+5), 3, v(MI+5)); I("v_add_u32", v(MI+5), s(sT0), v(MI+5))
    I("buffer_load_dwordx2", vr(MI+2, 2), v(MI+5), sr(S_WS), 0, mod="offen")
    I("v_lshlrev_b32", v(MI+6), 2, v(vLANE))
    srd(S_K, P_K, None, 1 << 27); srd(S_V, P_V, None, 1 << 27)
    I("s_cmp_lg_u32", s(sW), 0); I("s_cbranch_scc1", "K1_NS0")
    for k, val in enumerate((0, 0, 0, 128)): I("v_mov_b32", v(8+k), val)
    I("ds_write_b128", v(44), vr(8), mod=f"offset:{L_FL}")
    I("ds_write_b64", v(44), vr(8, 2), mod=f"offset:{L_FL+16}")
    srd(S_X, P_DBG, None, 256)
    I("s_lshr_b32", s(sT0), s(sKVH), 1); I("s_lshl_b32", s(sT0), s(sT0), 5)
    I("s_and_b32", s(sT1), s(sKVH), 1); I("s_lshl_b32", s(sT1), s(sT1), 2); I("s_add_u32", s(sT0), s(sT0), s(sT1))
    I("v_mov_b32", v(14), s(sT0)); I("v_mov_b32", v(13), 0); I("v_mov_b32", v(12), s(sNON))
    I("s_mov_b64", "exec", 1)
    I("buffer_atomic_cmpswap", vr(12, 2), v(14), sr(S_X), 0, mod="offen sc0")
    I("s_mov_b64", "exec", -1)
    a.lgkm(0)
    a.label("K1_NS0")
    I("s_barrier")
    I("s_cmp_lt_u32", s(sW), 4); I("s_cbranch_scc1", "K1_QW")
    ring_issue()
    I("s_waitcnt", "vmcnt(32)")
    stamp(43, 44, 1)
    I("s_branch", "K1_GATE")
    a.label("K1_QW")
    XN = list(range(25, 34)); T = list(range(34, 40))
    I("s_lshl_b32", s(sT1), s(sW), 2)
    I("v_lshlrev_b32", v(6), 5, v(vLANE)); I("v_add_u32", v(6), s(sT1), v(6))
    I("v_lshlrev_b32", v(7), 4, v(vLANE)); I("v_add_u32", v(7), s(sT1), v(7))
    I("s_waitcnt", "vmcnt(17)")
    stamp(43, 44, 1)
    for k in range(4):
        I("v_and_b32", v(X[2*k+1]), s(sMASK), v(X[2*k])); I("v_lshlrev_b32", v(X[2*k]), 16, v(X[2*k]))
    I("v_lshlrev_b32", v(X[8]), 16, v(X[8]))
    layernorm(X, XN, T)
    for k in range(8):
        I("ds_write_b32", v(6), v(XN[k]), mod=f"offset:{L_XN+2048*(k>>1)+16*(k&1)}")
    I("ds_write_b32", v(7), v(XN[8]), mod=f"offset:{L_XN+8192}")
    a.lgkm(0)
    lds_inc(L_FL+4)
    lds_spin("A", L_FL+4, 4)
    stamp(43, 44, 2)
    for i in range(9):
        I("ds_read_b128", vr(XQ+4*i), v(47), mod=f"offset:{L_XN+256*i}")
    I("s_waitcnt", "vmcnt(8)")
    for i in range(9):
        tt = [QT+4*(i & 1)+c for c in range(4)]
        for c2 in range(2):
            I("v_lshlrev_b32", v(tt[2*c2]), 16, v(WQR+2*i+c2)); I("v_and_b32", v(tt[2*c2+1]), s(sMASK), v(WQR+2*i+c2))
        a.lgkm(8-i)
        for b in range(4):
            for c in range(4):
                if i == 0: I("v_mul_f32", v(QA+4*b+c), v(XQ+b), v(tt[c]))
                else: I("v_fmac_f32", v(QA+4*b+c), v(XQ+4*i+b), v(tt[c]))
    for k in range(8): I("v_permlane32_swap_b32", v(QA+k), v(QA+k+8))
    for k in range(8): I("v_add_f32", v(QA+k), v(QA+k), v(QA+k+8))
    for k in range(4): I("v_permlane16_swap_b32", v(QA+k), v(QA+k+4))
    for k in range(4): I("v_add_f32", v(QA+k), v(QA+k), v(QA+k+4))
    for c in range(2): I("v_add_f32_dpp", v(QA+c), v(QA+c), v(QA+c), mod="row_ror:8 row_mask:0xf bank_mask:0x3")
    for c in range(2): I("v_add_f32_dpp", v(QA+c), v(QA+c+2), v(QA+c+2), mod="row_ror:8 row_mask:0xf bank_mask:0xc")
    I("v_add_f32_dpp", v(QA), v(QA), v(QA), mod="row_shl:4 row_mask:0xf bank_mask:0x5")
    I("v_add_f32_dpp", v(QA), v(QA+1), v(QA+1), mod="row_shr:4 row_mask:0xf bank_mask:0xa")
    I("v_lshlrev_b32", v(5), 2, v(vTID))
    I("ds_write_b32", v(5), v(QA), mod=f"offset:{L_QP}")
    a.lgkm(0)
    lds_inc(L_FL+8)
    stamp(43, 44, 3)
    I("s_cmp_eq_u32", s(sW), 0); I("s_cbranch_scc1", "K1_SV1")
    if OPT['prio']: I("s_setprio", 0)
    I("s_waitcnt", "vmcnt(0)")
    if not OPT['qg']: ring_issue()
    a.label("K1_GATE")
    for k in range(4): I("v_mov_b32", v(8+k), 0)
    I("s_lshl_b32", s(sT0), s(sW), 10)
    I("v_lshlrev_b32", v(5), 4, v(vLANE)); I("v_add_u32", v(5), s(sT0), v(5))
    for sl in range(4): I("ds_write_b128", v(5), vr(8), mod=f"offset:{L_OP+8192*sl}")
    I("v_lshrrev_b32", v(5), 1, v(vLANE)); I("v_lshlrev_b32", v(5), 7, v(5))
    I("v_and_b32", v(6), 1, v(vLANE)); I("v_lshl_add_u32", v(5), v(6), 5, v(5))
    I("s_lshl_b32", s(sT0), s(sW), 2); I("v_add_u32", v(5), s(sT0), v(5))
    I("v_mov_b32", v(6), f32(-1e30))
    I("s_mov_b64", "exec", 0xfff)
    I("ds_write_b32", v(5), v(6), mod=f"offset:{L_ML}"); I("ds_write_b32", v(5), v(8), mod=f"offset:{L_ML+64}")
    I("s_mov_b64", "exec", -1)
    lds_spin("A2", L_FL+4, 4)
    gW1f = GR+16; gB1f = GR+25; gY = GR+34; gT = GR+43
    vC1 = GR+15
    def gate_prep():
        XX = [gW1f+i for i in range(9)]; HH = [gB1f+i for i in range(9)]
        I("s_lshl_b32", s(sT0), s(sB), 2)
        I("v_mul_u32_u24", v(gT+12), 144, v(vLANE)); I("v_add_u32", v(gT+12), s(sT0), v(gT+12))
        for k in range(9): I("ds_read_b32", v(XX[k]), v(gT+12), mod=f"offset:{L_XN+16*k}")
        a.lgkm(0)
        layernorm(XX, HH, [gT+i for i in range(6)])
        for k in range(9): I("v_readlane_b32", s(sH+k), v(HH[k]), s(sP))
        I("v_mov_b32", v(vC1), f32(C1))
        for q in range(4):
            I("v_lshlrev_b32", v(gW1f+2*q), 16, v(gW1r+q)); I("v_and_b32", v(gW1f+2*q+1), s(sMASK), v(gW1r+q))
            I("v_lshlrev_b32", v(gB1f+2*q), 16, v(gB1r+q)); I("v_and_b32", v(gB1f+2*q+1), s(sMASK), v(gB1r+q))
        I("v_lshlrev_b32", v(gW1f+8), 16, v(gW1x)); I("v_lshlrev_b32", v(gB1f+8), 16, v(gB1x))
        I("v_lshlrev_b32", v(gW2x), 16, v(gW2x))
    def gelu_list(U, TT):
        for u, t in zip(U, TT): I("v_mul_f32", v(t), v(u), v(u))
        for u, t in zip(U, TT): I("v_fmaak_f32", v(t), v(t), v(vC1), f32(C0))
        for u, t in zip(U, TT): I("v_mul_f32", v(t), v(t), v(u))
        for u, t in zip(U, TT): I("v_exp_f32", v(t), "-"+v(t))
        for u, t in zip(U, TT): I("v_add_f32", v(t), 1.0, v(t))
        for u, t in zip(U, TT): I("v_rcp_f32", v(t), v(t))
        for u, t in zip(U, TT): I("v_mul_f32", v(u), v(u), v(t))
    def gate_col(k):
        if OPT['nogate']: return
        for hh in range(2):
            U = [gT+i for i in range(4)]; TT = [gT+4+i for i in range(4)]; W = [gT+8, gT+9]
            for i in range(4): I("v_mul_f32", v(U[i]), s(sH+k), v(gW1f+4*hh+i))
            bfr2(U[0], U[1], W[0]); bfr2(U[2], U[3], W[1])
            for i in range(4): I("v_add_f32", v(U[i]), v(U[i]), v(gB1f+4*hh+i))
            bfr2(U[0], U[1], W[0]); bfr2(U[2], U[3], W[1])
            gelu_list(U, TT)
            I("v_cvt_pk_bf16_f32", v(W[0]), v(U[0]), v(U[1])); I("v_cvt_pk_bf16_f32", v(W[1]), v(U[2]), v(U[3]))
            I("v_dot2_f32_bf16", v(gY+k), v(W[0]), v(gW2r+2*hh), 0 if hh == 0 else v(gY+k))
            I("v_dot2_f32_bf16", v(gY+k), v(W[1]), v(gW2r+2*hh+1), v(gY+k))
    def gate_fin():
        for grp in ((0, 1, 2, 3), (4, 5, 6, 7), (8,)):
            n = len(grp)
            U = [gT+i for i in range(n)]; TT = [gT+4+i for i in range(n)]; W = [gT+8, gT+9]
            for i, k in enumerate(grp): I("v_mul_f32", v(U[i]), s(sH+k), v(gW1f+8))
            def rnd():
                if n == 4: bfr2(U[0], U[1], W[0]); bfr2(U[2], U[3], W[1])
                else: bfr1(U[0])
            rnd()
            for i in range(n): I("v_add_f32", v(U[i]), v(U[i]), v(gB1f+8))
            rnd()
            gelu_list(U, TT)
            rnd()
            for i, k in enumerate(grp): I("v_fmac_f32", v(gY+k), v(U[i]), v(gW2x))
        for n in (8, 4, 2, 1):
            for k in range(9):
                I("v_add_f32_dpp", v(gY+k), v(gY+k), v(gY+k), mod=f"row_ror:{n} {DPPALL}")
        for (sw) in ("v_permlane16_swap_b32", "v_permlane32_swap_b32"):
            for k in range(9): I("v_mov_b32", v(gT+k), v(gY+k))
            for k in range(9): I(sw, v(gY+k), v(gT+k))
            for k in range(9): I("v_add_f32", v(gY+k), v(gY+k), v(gT+k))
        I("s_lshl_b32", s(sT0), s(sW), 6); I("v_mov_b32", v(gT), s(sT0))
        for k in range(9):
            I("ds_write_b32", v(gT), v(gY+k), mod=f"offset:{L_GP+4*k}")
    gate_prep()
    for k in range(9): gate_col(k)
    gate_fin()
    I("s_cmp_lg_u32", s(sK), 0); I("s_cbranch_scc1", "K1_GATE3")
    ring_issue()
    a.label("K1_GATE3")
    stamp(43, 44, 4)
    I("s_lshl_b32", s(sT0), "s2", 4); I("s_mul_i32", s(sT0), s(sT0), 1152)
    srd(S_WO, P_WO, s(sT0), 16*1152)
    I("v_min_u32", v(46), 287, v(vTID)); I("v_lshlrev_b32", v(46), 2, v(46))
    I("s_mul_i32", s(sT0), s(sBP), REC); srd(S_WS, P_WS, s(sT0), REC)
    srd(S_M2, P_DBG, None, 256)
    I("s_lshl_b32", s(sT0), s(sKVH), 8); I("s_add_u32", s(sT0), s(sT0), SP_OFF); srd(S_M1, P_WS, s(sT0), 256)
    for r in range(4): I("s_mov_b32", s(sBT+r), s(sB))
    I("s_mov_b32", s(sK), 3); I("s_mov_b32", s(sCUR), s(sB)); I("s_mov_b32", s(sSLOT), 4)
    I("s_mov_b32", s(sCNT), -1); I("s_mov_b32", s(sLO), 0); I("s_mov_b32", s(sWOD), 0)
    I("v_mov_b32", v(45), 4); I("v_mov_b32", v(MI+4), 0)
    if OPT['ts']: I("s_mov_b32", s(70), 0)
    if not OPT['noq']:
        lds_spin("Q", L_FL, None)
        I("s_mov_b32", s(sNON), s(sT0))
    call("K1_INIT")
    stamp(43, 44, 5)
    PTm = [40, 41, 42, 43]; vPP = 44
    for n in range(4):
        kb = tile_regs('K', n); vb = tile_regs('V', n)
        a.label(f"K1_T{n}")
        if OPT['ts']: I("s_add_u32", s(70), s(70), 1)
        I("s_mov_b64", "exec", 1)
        I("ds_add_rtn_u32", v(47), v(45), v(45), mod=f"offset:{L_FL+8}")
        I("s_mov_b64", "exec", -1)
        I("s_cmp_lg_u32", s(sBT+n), s(sCUR)); I("s_cbranch_scc1", f"K1_SW{n}")
        a.label(f"K1_SWR{n}")
        I("s_cmp_lg_u32", s(sK), 3); I("s_cbranch_scc1", f"K1_WK{n}")
        I("s_waitcnt", "vmcnt(28)")
        a.label(f"K1_WKR{n}")
        if not OPT['nocomp']:
            for r in range(4):
                for i in range(4):
                    for h in range(2):
                        d = vS+4*h+i
                        I("v_dot2_f32_bf16", v(d), v(kb+4*i+r), v(vQ+4*h+r), 0 if r == 0 else v(d))
        a.lgkm(0)
        I("v_readfirstlane_b32", s(sPOS), v(47))
        a.nop(2)
        I("s_lshr_b32", s(sPOS), s(sPOS), 2)
        call("K1_MAP")
        I("s_mov_b32", s(sBT+n), s(sNB))
        I("s_cmp_eq_u32", s(sVAL), 0); I("s_cbranch_scc1", f"K1_NK{n}")
        issue_tile('K', n, sNO)
        a.label(f"K1_NK{n}")
        if not OPT['nocomp']:
            for h in range(2):
                for e in range(2):
                    d = vS+4*h+e
                    I("v_add_f32_dpp", v(d), v(d), v(d), mod="row_ror:8 row_mask:0xf bank_mask:0x3")
            for h in range(2):
                for e in range(2):
                    d = vS+4*h+e; sft = vS+4*h+2+e
                    I("v_add_f32_dpp", v(d), v(sft), v(sft), mod="row_ror:8 row_mask:0xf bank_mask:0xc")
            for e in range(2):
                d = vS+e
                I("v_add_f32_dpp", v(d), v(d), v(d), mod="row_shl:4 row_mask:0xf bank_mask:0x5")
            for e in range(2):
                d = vS+e; sft = vS+4+e
                I("v_add_f32_dpp", v(d), v(sft), v(sft), mod="row_shr:4 row_mask:0xf bank_mask:0xa")
            for qp in ("[1,0,3,2]", "[2,3,0,1]"):
                for e in range(2):
                    d = vS+e
                    I("v_add_f32_dpp", v(d), v(d), v(d), mod=f"quad_perm:{qp} {DPPALL}")
            A, B, W, TM, AL = vS, vS+1, vS+2, vS+3, vS+4
            bfr2(A, B, W)
            I("v_mul_f32", v(A), s(sSCALE), v(A)); I("v_mul_f32", v(B), s(sSCALE), v(B))
            bfr2(A, B, W)
            I("v_max_f32", v(TM), v(A), v(B))
            I("v_max_f32_dpp", v(TM), v(TM), v(TM), mod=f"row_ror:8 {DPPALL}")
            I("v_mul_f32", v(TM), s(sLOG2E), v(TM))
            I("v_max_f32", v(TM), v(TM), v(vM))
            I("v_sub_f32", v(AL), v(vM), v(TM))
            I("v_fma_f32", v(A), v(A), s(sLOG2E), "-"+v(TM))
            I("v_fma_f32", v(B), v(B), s(sLOG2E), "-"+v(TM))
            I("v_exp_f32", v(AL), v(AL)); I("v_exp_f32", v(A), v(A)); I("v_exp_f32", v(B), v(B))
            I("v_mov_b32", v(vM), v(TM))
            I("v_fma_f32", v(vL), v(vL), v(AL), v(A))
            I("v_cvt_pk_bf16_f32", v(vPP), v(A), v(B))
            I("v_add_f32", v(vL), v(vL), v(B))
            for h in range(2):
                for k in range(8):
                    d = vACC+8*h+k
                    I("v_mul_f32_dpp", v(d), v(AL), v(d), mod=f"row_newbcast:{4*h} {DPPALL}")
        I("s_cmp_eq_u32", s(sVAL), 0); I("s_cbranch_scc1", f"K1_WV{n}")
        I("s_waitcnt", "vmcnt(28)")
        a.label(f"K1_WVR{n}")
        if not OPT['nocomp']:
            for j in range(2):
                for rr in range(2):
                    for r in (2*rr, 2*rr+1):
                        t0, t1 = PTm[2*(r & 1)], PTm[2*(r & 1)+1]
                        I("v_perm_b32", v(t0), v(vb+4*(2*j+1)+r), v(vb+4*(2*j)+r), s(sSELLO))
                        I("v_perm_b32", v(t1), v(vb+4*(2*j+1)+r), v(vb+4*(2*j)+r), s(sSELHI))
                    for h in range(2):
                        for r in (2*rr, 2*rr+1):
                            t0, t1 = PTm[2*(r & 1)], PTm[2*(r & 1)+1]
                            I("v_dot2c_f32_bf16_dpp", v(vACC+8*h+2*r), v(vPP), v(t0), mod=f"row_newbcast:{4*(2*j+h)} {DPPALL}")
                            I("v_dot2c_f32_bf16_dpp", v(vACC+8*h+2*r+1), v(vPP), v(t1), mod=f"row_newbcast:{4*(2*j+h)} {DPPALL}")
        I("s_cmp_eq_u32", s(sVAL), 0); I("s_cbranch_scc1", f"K1_NV{n}")
        issue_tile('V', n, sNO)
        if n == 3: I("s_branch", "K1_T0")
    for n in range(4):
        a.label(f"K1_NV{n}")
        I("s_cmp_eq_u32", s(sK), 0); I("s_cbranch_scc1", "K1_DONE")
        I("s_sub_u32", s(sK), s(sK), 1); I("s_branch", f"K1_T{(n+1)%4}")
        a.label(f"K1_SW{n}")
        call("K1_FLUSH")
        I("s_mov_b32", s(sCUR), s(sBT+n)); I("s_mov_b32", s(sSLOT), s(sBT+n))
        call("K1_INIT")
        I("s_branch", f"K1_SWR{n}")
        for kind, cnts in (("K", {2: 20, 1: 12, 0: 4}), ("V", {3: 24, 2: 16, 1: 8, 0: 0})):
            a.raw(f"K1_W{kind}{n}:")
            for kk, c in cnts.items():
                if kk:
                    I("s_cmp_lg_u32", s(sK), kk); I("s_cbranch_scc1", f"K1_W{kind}{n}_{kk}")
                I("s_waitcnt", f"vmcnt({c})"); I("s_branch", f"K1_W{kind}R{n}")
                if kk: a.raw(f"K1_W{kind}{n}_{kk}:")
    a.label("K1_INIT")
    I("s_lshl_b32", s(sT0), s(sCUR), 9)
    I("v_and_b32", v(5), 15, v(vLANE)); I("v_lshlrev_b32", v(5), 4, v(5)); I("v_add_u32", v(5), s(sT0), v(5))
    I("ds_read_b128", vr(vQ), v(5), mod=f"offset:{L_QS}")
    I("ds_read_b128", vr(vQ+4), v(5), mod=f"offset:{L_QS+256}")
    for k in range(16): I("v_mov_b32", v(vACC+k), 0)
    I("v_mov_b32", v(vM), f32(-1e30)); I("v_mov_b32", v(vL), 0)
    a.lgkm(0)
    ret()
    a.label("K1_FLUSH")
    T0, T1, T2 = vS, vS+1, vS+2
    I("v_add_f32_dpp", v(vL), v(vL), v(vL), mod=f"row_ror:8 {DPPALL}")
    I("v_mov_b32", v(T0), v(vM))
    allred("v_max_f32", T0, T1, rows=False)
    I("v_sub_f32", v(T2), v(vM), v(T0)); I("v_exp_f32", v(T2), v(T2))
    I("v_mul_f32", v(vL), v(vL), v(T2))
    for h in range(2):
        for k in range(8):
            d = vACC+8*h+k
            I("v_mul_f32_dpp", v(d), v(T2), v(d), mod=f"row_newbcast:{4*h} {DPPALL}")
    allred("v_add_f32", vL, T1, rows=False)
    for k in range(8): I("v_permlane32_swap_b32", v(vACC+k), v(vACC+8+k))
    for k in range(8): I("v_add_f32", v(vACC+k), v(vACC+k), v(vACC+8+k))
    for k in range(4): I("v_permlane16_swap_b32", v(vACC+k), v(vACC+4+k))
    for k in range(4): I("v_add_f32", v(vACC+k), v(vACC+k), v(vACC+4+k))
    I("v_and_b32", v(5), 15, v(vLANE)); I("v_lshlrev_b32", v(5), 5, v(5))
    I("v_bfe_u32", v(6), v(vLANE), 4, 1); I("v_lshl_add_u32", v(5), v(6), 4, v(5))
    I("v_lshrrev_b32", v(6), 5, v(vLANE)); I("v_lshl_add_u32", v(5), v(6), 9, v(5))
    I("s_lshl_b32", s(sT0), s(sW), 10); I("s_lshl_b32", s(sT1), s(sSLOT), 13); I("s_add_u32", s(sT0), s(sT0), s(sT1))
    I("v_add_u32", v(5), s(sT0), v(5))
    I("ds_write_b128", v(5), vr(vACC), mod=f"offset:{L_OP}")
    I("v_bfe_u32", v(6), v(vLANE), 2, 1); I("v_lshlrev_b32", v(6), 5, v(6))
    I("s_lshl_b32", s(sT0), s(sW), 2); I("s_lshl_b32", s(sT1), s(sSLOT), 7); I("s_add_u32", s(sT0), s(sT0), s(sT1))
    I("v_add_u32", v(6), s(sT0), v(6))
    I("ds_write_b32", v(6), v(T0), mod=f"offset:{L_ML}")
    I("ds_write_b32", v(6), v(vL), mod=f"offset:{L_ML+64}")
    a.lgkm(0)
    ret()
    P1, P2, PW = OPT['p1'], OPT['p2'], OPT['pw']
    a.label("K1_MAP")
    I("s_cmp_lt_u32", s(sPOS), PW); I("s_cbranch_scc1", "K1_MOWN")
    I("s_cmp_lg_u32", s(sWOD), 0); I("s_cbranch_scc1", "K1_M1")
    I("s_mov_b32", s(sWOD), 1)
    I("buffer_load_dword", v(MI+4), v(MI+6), sr(S_M2), 0, mod="offen sc1")
    I("s_cmp_gt_u32", s(sW), 4); I("s_cbranch_scc1", "K1_M1")
    for r in range(16):
        if r % 3 == 0: I("s_mov_b32", s(sT1), (r//3)*3456)
        I("buffer_load_dword", v(WO+r), v(46), sr(S_WO), s(sT1), mod=f"offen offset:{(r%3)*1152} {WOMOD}")
    a.label("K1_M1")
    I("s_cmp_ge_u32", s(sPOS), NS); I("s_cbranch_scc1", "K1_MPOOL")
    I("s_cmp_eq_u32", s(sPOS), P1); I("s_cbranch_scc1", "K1_MPUB")
    I("s_cmp_eq_u32", s(sPOS), P2); I("s_cbranch_scc1", "K1_MFET")
    a.label("K1_MOWN")
    I("s_add_u32", s(sT0), s(sPOS), s(sROT))
    I("s_sub_u32", s(sNO), s(sT0), NS); I("s_cmp_ge_u32", s(sT0), NS); I("s_cselect_b32", s(sNO), s(sNO), s(sT0))
    I("s_lshl_b32", s(sNO), s(sNO), 12); I("s_add_u32", s(sNO), s(sNO), s(sOWN))
    I("s_mov_b32", s(sNB), s(sB)); I("s_mov_b32", s(sVAL), 1)
    I("s_setpc_b64", f"s[{sRET}:{sRET+1}]")
    F = 64
    a.label("K1_MPUB")
    if OPT['noq']:
        lds_spin("Q1", L_FL, None); I("s_mov_b32", s(sNON), s(sT0))
    I("s_memrealtime", "s[98:99]")
    I("s_lshl_b32", s(sT0), s(sJ), 4); I("v_mov_b32", v(F+4), s(sT0))
    I("v_mov_b32", v(F+1), s(sSTART)); I("v_mov_b32", v(F+2), s(sNON)); I("v_mov_b32", v(F+3), s(sNON))
    a.lgkm(0)
    I("v_mov_b32", v(F), "s98")
    I("s_mov_b64", "exec", 1)
    I("buffer_store_dwordx4", vr(F), v(F+4), sr(S_M1), 0, mod=f"offen {STMOD}")
    I("s_mov_b64", "exec", -1)
    stamp(F+5, F+6, 6)
    I("s_branch", "K1_MOWN")
    a.label("K1_MFET")
    if OPT['noq']:
        lds_spin("Q2", L_FL, None); I("s_mov_b32", s(sNON), s(sT0))
    stamp(F+5, F+6, 7)
    I("v_and_b32", v(F+4), 15, v(vLANE)); I("v_lshlrev_b32", v(F+4), 4, v(F+4))
    I("s_mov_b32", s(sFLAG), 0)
    a.label("K1_MFL")
    I("buffer_load_dwordx4", vr(F), v(F+4), sr(S_M1), 0, mod="offen sc1")
    I("s_waitcnt", "vmcnt(0)")
    I("v_cmp_ne_u32", "s[96:97]", s(sNON), v(F+2))
    a.nop(2)
    I("s_cmp_eq_u64", "s[96:97]", 0); I("s_cbranch_scc1", "K1_MFD")
    I("s_add_u32", s(sFLAG), s(sFLAG), 1); I("s_cmp_gt_u32", s(sFLAG), 20000); I("s_cbranch_scc1", "K1_MFD")
    I("s_sleep", 4)
    I("s_branch", "K1_MFL")
    a.label("K1_MFD")
    Dd, Rr, Tp, Aa, Bs, Sh, Lo = F+5, F+6, F+7, F+8, F+9, F+10, F+11
    I("v_readfirstlane_b32", s(sT0), v(F+1))
    I("v_sub_u32", v(Dd), v(F), v(F+1)); I("v_subrev_u32", v(Dd), OPT['ct'], v(Dd)); I("v_max_i32", v(Dd), 100, v(Dd))
    I("v_cvt_f32_i32", v(Dd), v(Dd)); I("v_rcp_f32", v(Rr), v(Dd))
    I("v_subrev_u32", v(Tp), s(sT0), v(F)); I("v_cvt_f32_i32", v(Tp), v(Tp))
    I("v_mul_f32", v(Rr), f32(float(P1-OPT['c0'])), v(Rr))
    I("v_mov_b32", v(Aa), v(Rr)); I("v_mul_f32", v(Bs), v(Rr), v(Tp))
    for nn in (8, 4, 2, 1):
        I("v_add_f32_dpp", v(Aa), v(Aa), v(Aa), mod=f"row_ror:{nn} {DPPALL}")
        I("v_add_f32_dpp", v(Bs), v(Bs), v(Bs), mod=f"row_ror:{nn} {DPPALL}")
    I("v_readfirstlane_b32", s(sT0), v(Aa)); I("v_readfirstlane_b32", s(sT1), v(Bs))
    I("v_mov_b32", v(Aa), s(sT0)); I("v_rcp_f32", v(Aa), v(Aa))
    I("v_mov_b32", v(Bs), f32(float(2048-16*P1))); I("v_add_f32", v(Bs), s(sT1), v(Bs))
    I("v_fma_f32", v(Tp), v(Bs), v(Aa), "-"+v(Tp))
    I("v_mov_b32", v(Sh), f32(float(P1-NS)))
    I("v_fmac_f32", v(Sh), v(Rr), v(Tp))
    I("v_max_f32", v(Sh), 0, v(Sh)); I("v_min_f32", v(Sh), f32(512.0), v(Sh)); I("v_add_f32", v(Sh), f32(0.01), v(Sh))
    if not OPT['bal']: I("v_mov_b32", v(Sh), 1.0)
    for nn in (1, 2, 4, 8):
        I("v_add_f32_dpp", v(Sh), v(Sh), v(Sh), mod=f"row_shr:{nn} {DPPALL} bound_ctrl:0")
    I("v_readlane_b32", s(sT0), v(Sh), 15)
    I("v_mov_b32", v(Aa), s(sT0)); I("v_rcp_f32", v(Aa), v(Aa))
    I("v_mul_f32", v(Sh), f32(float(16*NP)), v(Sh)); I("v_mul_f32", v(Sh), v(Sh), v(Aa))
    I("v_rndne_f32", v(Sh), v(Sh)); I("v_cvt_u32_f32", v(Sh), v(Sh))
    I("v_mov_b32", v(Lo), 0)
    I("v_mov_b32_dpp", v(Lo), v(Sh), mod=f"row_shr:1 {DPPALL} bound_ctrl:0")
    I("v_readlane_b32", s(sT0), v(Lo), s(sJ)); I("v_readlane_b32", s(sT1), v(Sh), s(sJ))
    a.nop(2)
    I("s_sub_u32", s(sT1), s(sT1), s(sT0)); I("s_add_u32", s(sT1), s(sT1), 1)
    I("v_mov_b32", v(F), s(sT0)); I("v_mov_b32", v(F+1), s(sT1)); I("v_mov_b32", v(F+2), 0)
    I("ds_write_b64", v(F+2), vr(F, 2), mod=f"offset:{L_FL+16}")
    stamp(F+5, F+6, 8)
    if OPT['ts']:
        I("s_lshl_b32", "s99", s(sW), 7); I("v_mov_b32", v(F+2), "s99")
        I("ds_write_b64", v(F+2), vr(F, 2), mod=f"offset:{L_TS+4*20}")
    I("s_branch", "K1_MOWN")
    a.label("K1_MPOOL")
    I("s_cmp_lg_u32", s(sCNT), -1); I("s_cbranch_scc1", "K1_MP2")
    stamp(5, 6, 9)
    lds_spin("P", L_FL+16, None, 2)
    I("v_readfirstlane_b32", s(sLO), v(6))
    I("s_sub_u32", s(sCNT), s(sT0), 1); I("s_max_i32", s(sCNT), s(sCNT), 0)
    stamp(5, 6, 10)
    a.label("K1_MP2")
    I("s_sub_u32", s(sT0), s(sPOS), NS)
    I("s_cmp_lt_u32", s(sT0), s(sCNT)); I("s_cbranch_scc1", "K1_MP3")
    I("s_mov_b32", s(sVAL), 0); I("s_mov_b32", s(sNB), s(sCUR))
    I("s_setpc_b64", f"s[{sRET}:{sRET+1}]")
    a.raw("K1_MP3:")
    I("s_add_u32", s(sT0), s(sT0), s(sLO))
    I("s_bfe_u32", s(sNB), s(sT0), 0x20007)
    I("s_lshl_b32", s(sNO), s(sNB), 4); I("s_add_u32", s(sNO), s(sNO), s(sKVH)); I("s_lshl_b32", s(sNO), s(sNO), 2)
    I("s_bfe_u32", s(sT1), s(sT0), 0x20005); I("s_add_u32", s(sNO), s(sNO), s(sT1)); I("s_lshl_b32", s(sNO), s(sNO), 7)
    I("s_and_b32", s(sT1), s(sT0), 31); I("s_add_u32", s(sNO), s(sNO), s(sT1)); I("s_add_u32", s(sNO), s(sNO), NS)
    I("s_lshl_b32", s(sNO), s(sNO), 12)
    I("s_mov_b32", s(sVAL), 1)
    I("s_setpc_b64", f"s[{sRET}:{sRET+1}]")

    a.label("K1_DONE")
    stamp(5, 6, 11)
    if OPT['ts']:
        I("s_lshl_b32", "s99", s(sW), 7); I("v_mov_b32", v(5), "s99"); I("v_mov_b32", v(6), s(70))
        I("ds_write_b32", v(5), v(6), mod=f"offset:{L_TS+4*22}")
    call("K1_FLUSH")
    WP = {}
    free = [45]
    for pair in range(8):
        r0 = WO+2*pair; r1 = r0+1
        f = free.pop()
        I("v_perm_b32", v(f), v(r1), v(r0), s(sSELLO))
        I("v_perm_b32", v(r1), v(r1), v(r0), s(sSELHI))
        WP[(pair, 0)] = f; WP[(pair, 1)] = r1
        free.append(r0)
    R = 64
    I("s_barrier")
    stamp(5, 6, 12)
    I("s_cmp_ge_u32", s(sW), 4); I("s_cbranch_scc1", "K1_W4")
    OO = 128; MM = R; LL = R+16
    I("s_cmp_eq_u32", s(sW), s(sB))
    I("s_cselect_b32", s(sT0), 4, 5); I("s_cselect_b32", s(sT1), 4, s(sW))
    I("v_lshrrev_b32", v(6), 5, v(vLANE)); I("v_lshlrev_b32", v(6), 5, v(6))
    I("s_lshl_b32", s(sT0), s(sT0), 7); I("v_add_u32", v(7), s(sT0), v(6))
    I("s_lshl_b32", s(sT0), s(sW), 7); I("v_add_u32", v(6), s(sT0), v(6))
    I("v_lshlrev_b32", v(5), 4, v(vLANE))
    I("s_lshl_b32", s(sT0), s(sW), 13); I("v_add_u32", v(8), s(sT0), v(5))
    I("s_lshl_b32", s(sT0), s(sT1), 13); I("v_add_u32", v(9), s(sT0), v(5))
    for st, ad in enumerate((6, 7)):
        I("ds_read_b128", vr(MM+8*st), v(ad), mod=f"offset:{L_ML}"); I("ds_read_b128", vr(MM+8*st+4), v(ad), mod=f"offset:{L_ML+16}")
    for st, ad in enumerate((8, 9)):
        for w in range(8):
            if st == 1 and w == 3: a.lgkm(10)
            I("ds_read_b128", vr(OO+32*st+4*w), v(ad), mod=f"offset:{L_OP+1024*w}")
    MX = vS; LS = vS+1; O = vS+4
    I("v_max3_f32", v(MX), v(MM), v(MM+1), v(MM+2))
    for k in range(3, 15, 2): I("v_max3_f32", v(MX), v(MX), v(MM+k), v(MM+k+1))
    I("v_max_f32", v(MX), v(MX), v(MM+15))
    for w in range(16): I("v_sub_f32", v(MM+w), v(MM+w), v(MX))
    for w in range(16): I("v_exp_f32", v(MM+w), v(MM+w))
    for w in range(16):
        a.lgkm(15-w)
        for k in range(4):
            if w == 0: I("v_mul_f32", v(O+k), v(MM), v(OO+k))
            else: I("v_fmac_f32", v(O+k), v(MM+w), v(OO+4*w+k))
    for st, ad in enumerate((6, 7)):
        I("ds_read_b128", vr(LL+8*st), v(ad), mod=f"offset:{L_ML+64}"); I("ds_read_b128", vr(LL+8*st+4), v(ad), mod=f"offset:{L_ML+80}")
    I("s_lshl_b32", s(sT0), s(sW), 10); I("s_add_u32", s(sT0), s(sT0), O_IN)
    I("buffer_store_dwordx4", vr(O), v(5), sr(S_WS), s(sT0), mod=f"offen {STMOD}")
    a.lgkm(0)
    I("v_mul_f32", v(LS), v(MM), v(LL)); I("v_mul_f32", v(LS+1), v(MM+1), v(LL+1))
    for w in range(2, 16): I("v_fmac_f32", v(LS+(w & 1)), v(MM+w), v(LL+w))
    I("v_add_f32", v(LS), v(LS), v(LS+1))
    I("v_lshrrev_b32", v(6), 5, v(vLANE)); I("v_lshlrev_b32", v(6), 3, v(6))
    I("s_lshl_b32", s(sT0), s(sW), 4); I("s_add_u32", s(sT0), s(sT0), O_IN+4096)
    I("s_mov_b32", "exec_lo", 1); I("s_mov_b32", "exec_hi", 1)
    I("buffer_store_dwordx2", vr(MX, 2), v(6), sr(S_WS), s(sT0), mod=f"offen {STMOD}")
    I("s_mov_b64", "exec", -1)
    I("s_cmp_lg_u32", s(sW), 1); I("s_cbranch_scc1", "K1_B2")
    I("s_mov_b64", "exec", 0x1ff)
    I("v_lshlrev_b32", v(5), 2, v(vLANE))
    for w in range(8): I("ds_read_b32", v(R+w), v(5), mod=f"offset:{L_GP+64*w}")
    a.lgkm(0)
    for st in (4, 2, 1):
        for w in range(st): I("v_add_f32", v(R+w), v(R+w), v(R+w+st))
    bfr1(R)
    I("v_lshlrev_b32", v(R+8), 16, v(MI))
    I("v_add_f32", v(R), v(R), v(R+8)); bfr1(R)
    I("v_mul_f32", v(R+1), s(sLOG2E), v(R)); I("v_exp_f32", v(R+1), "-"+v(R+1))
    I("v_add_f32", v(R+1), 1.0, v(R+1)); I("v_rcp_f32", v(R+2), v(R+1))
    I("v_mul_f32", v(R+3), v(R), v(R+2))
    I("v_fma_f32", v(R+4), "-"+v(R+3), v(R+1), v(R)); I("v_fma_f32", v(R+3), v(R+4), v(R+2), v(R+3))
    bfr1(R+3)
    I("s_mul_i32", s(sT0), s(sGI), 36); I("s_add_u32", s(sT0), s(sT0), G_OFF)
    srd(S_M1, P_WS, s(sT0), 36)
    I("buffer_store_dword", v(R+3), v(5), sr(S_M1), 0, mod=f"offen {STMOD}")
    I("s_mov_b64", "exec", -1)
    I("s_branch", "K1_B2")
    a.label("K1_W4")
    I("v_and_b32", v(5), 15, v(vLANE)); I("v_mul_u32_u24", v(5), REC, v(5))
    I("v_lshrrev_b32", v(7), 4, v(vLANE))
    I("v_lshl_add_u32", v(6), v(7), 10, v(5)); I("v_lshl_add_u32", v(5), v(7), 4, v(5))
    I("s_mul_i32", s(sT0), s(sKVH), 16*REC); I("s_add_u32", s(sT0), s(sT0), O_IN)
    srd(S_M1, P_WS, s(sT0), 16*REC)
    I("s_and_b32", s(sT1), s(sW), 3)
    I("s_lshl_b32", s(sH), s(sJ), 6); I("s_lshl_b32", s(sT0), s(sT1), 4); I("s_add_u32", s(sH), s(sH), s(sT0))
    I("s_lshr_b32", s(sH+1), s(sJ), 3); I("s_lshl_b32", s(sH+1), s(sH+1), 3); I("s_add_u32", s(sH+1), s(sH+1), 4096)
    I("s_lshl_b32", s(sT1), s(sT1), 3)
    I("v_lshlrev_b32", v(7), 5, v(7)); I("v_add_u32", v(7), s(sT1), v(7))
    started_check("1", MI+4, MI+6, R+10, R+11)
    def l1():
        I("buffer_load_dwordx4", vr(R), v(6), sr(S_M1), s(sH), mod="offen sc1")
        I("buffer_load_dwordx2", vr(R+4, 2), v(5), sr(S_M1), s(sH+1), mod="offen sc1")
    poll("1", l1, [R+k for k in range(6)], R+10, R+11, OPT['h1slp'])
    stamp(R+10, R+11, 13)
    Mv, Lv, Tm, C = R+4, R+5, R+6, R+7
    I("v_max_f32_dpp", v(Tm), v(Mv), v(Mv), mod=f"row_ror:1 {DPPALL}")
    for nn in (2, 4, 8): I("v_max_f32_dpp", v(Tm), v(Tm), v(Tm), mod=f"row_ror:{nn} {DPPALL}")
    I("v_sub_f32", v(Tm), v(Mv), v(Tm)); I("v_exp_f32", v(C), v(Tm))
    I("v_mul_f32", v(Tm), v(C), v(Lv))
    for k in range(4): I("v_mul_f32", v(R+k), v(C), v(R+k))
    for nn in (1, 2, 4, 8):
        I("v_add_f32_dpp", v(Tm), v(Tm), v(Tm), mod=f"row_ror:{nn} {DPPALL}")
        for k in range(4): I("v_add_f32_dpp", v(R+k), v(R+k), v(R+k), mod=f"row_ror:{nn} {DPPALL}")
    I("v_rcp_f32", v(C), v(Tm))
    for k in range(4): I("v_mul_f32", v(R+k), v(C), v(R+k))
    I("v_cvt_pk_bf16_f32", v(R), v(R), v(R+1)); I("v_cvt_pk_bf16_f32", v(R+1), v(R+2), v(R+3))
    I("s_mov_b32", "exec_lo", 0x00010001); I("s_mov_b32", "exec_hi", 0x00010001)
    I("ds_write_b64", v(7), vr(R, 2), mod=f"offset:{L_OB}")
    I("s_mov_b64", "exec", -1)
    a.label("K1_B2")
    a.lgkm(0)
    I("s_barrier")
    stamp(5, 6, 14)
    I("s_cmp_ge_u32", s(sW), 5); I("s_cbranch_scc1", "K1_W5")
    OPR = R
    I("v_mov_b32", v(5), 0)
    for q in range(8): I("ds_read_b128", vr(OPR+4*q), v(5), mod=f"offset:{L_OB+16*q}")
    I("v_cmp_gt_u32", "vcc", 288, v(vTID)); I("s_and_saveexec_b64", "s[96:97]", "vcc")
    I("v_lshlrev_b32", v(5), 3, v(vTID))
    I("s_movk_i32", s(sT0), 4608)
    TA = vACC
    for b in range(4):
        a.lgkm(6-2*b)
        for k in range(8):
            for c in range(2):
                I("v_dot2_f32_bf16", v(TA+2*b+c), v(WP[(k, c)]), v(OPR+8*b+k), 0 if k == 0 else v(TA+2*b+c))
    for b in range(4):
        I("buffer_store_dwordx2", vr(TA+2*b, 2), v(5), sr(S_WS), 0 if b < 2 else s(sT0), mod=f"offen offset:{(b & 1)*2304} {STMOD}")
    I("s_branch", "K1_FIN")
    a.label("K1_W5")
    I("s_cmp_lg_u32", s(sW), 5); I("s_cbranch_scc1", "K1_FIN")
    I("s_cmp_ge_u32", "s2", 144); I("s_cbranch_scc1", "K1_FIN")
    R = 128
    DR = [R+4*i for i in range(16)]
    GV = 192; t0, t1 = 196, 197
    I("v_lshrrev_b32", v(5), 2, v(vLANE)); I("v_mul_u32_u24", v(5), REC, v(5))
    I("v_and_b32", v(6), 3, v(vLANE)); I("v_lshlrev_b32", v(6), 4, v(6)); I("v_add_u32", v(5), v(5), v(6))
    I("s_lshl_b32", s(sT0), s(sCOFF), 2)
    srd(S_M1, P_WS, s(sT0), 256*REC)
    I("s_add_u32", s(sT0), s(sT0), G_OFF); srd(S_WS, P_WS, s(sT0), 64)
    srd(S_X, P_OUT, None, 4608)
    I("s_mov_b32", s(sFLAG), 0)
    def l2():
        for i in range(16):
            I("s_mov_b32", s(sT1), i*16*REC)
            I("buffer_load_dwordx4", vr(DR[i]), v(5), sr(S_M1), s(sT1), mod="offen sc1")
        I("buffer_load_dwordx4", vr(GV), v(6), sr(S_WS), 0, mod="offen sc1")
    poll("2", l2, [R+k for k in range(64)] + [GV+k for k in range(4)], t0, t1, OPT['slp_s'])
    stamp(t0, t1, 15)
    for st in (8, 4, 2, 1):
        for i in range(st):
            for k in range(4): I("v_add_f32", v(DR[i]+k), v(DR[i]+k), v(DR[i+st]+k))
    for n in (4, 8):
        for k in range(4): I("v_add_f32_dpp", v(R+k), v(R+k), v(R+k), mod=f"row_ror:{n} {DPPALL}")
    for sw in ("v_permlane16_swap_b32", "v_permlane32_swap_b32"):
        for k in range(4): I("v_mov_b32", v(R+4+k), v(R+k))
        for k in range(4): I(sw, v(R+k), v(R+4+k))
        for k in range(4): I("v_add_f32", v(R+k), v(R+k), v(R+4+k))
    bfr2(R, R+1, R+4); bfr2(R+2, R+3, R+5)
    for k in range(4): I("v_mul_f32", v(R+k), v(R+k), v(GV+k))
    bfr2(R, R+1, R+4); bfr2(R+2, R+3, R+5)
    for k in range(2):
        I("v_lshlrev_b32", v(R+4), 16, v(MI+2+k)); I("v_and_b32", v(R+5), s(sMASK), v(MI+2+k))
        I("v_add_f32", v(R+2*k), v(R+2*k), v(R+4)); I("v_add_f32", v(R+2*k+1), v(R+2*k+1), v(R+5))
    I("v_cvt_pk_bf16_f32", v(R), v(R), v(R+1)); I("v_cvt_pk_bf16_f32", v(R+1), v(R+2), v(R+3))
    I("s_mov_b64", "exec", 0xf)
    I("buffer_store_dwordx2", vr(R, 2), v(MI+5), sr(S_X), 0, mod="offen")
    a.label("K1_FIN")
    stamp(5, 6, 16)
    stamp_dump()
    I("s_endpgm")

    a.label("K1_SV1")
    I("v_lshrrev_b32", v(8), 4, v(vLANE)); I("v_lshlrev_b32", v(8), 14, v(8))
    I("v_and_b32", v(7), 3, v(vLANE)); I("v_lshl_add_u32", v(8), v(7), 4, v(8))
    I("v_and_b32", v(7), 8, v(vLANE)); I("v_add_u32", v(8), v(7), v(8))
    I("s_lshl_b32", s(sT0), s(sKVH), 10); I("s_add_u32", s(sT0), s(sT0), Q_OFF)
    srd(S_WO, P_WS, s(sT0), 65536)
    I("s_waitcnt", "vmcnt(0)")
    I("v_readfirstlane_b32", s(sT0), v(12))
    a.nop(2)
    I("s_cmp_lg_u32", s(sT0), 0); I("s_cselect_b32", s(sNON), s(sT0), s(sNON))
    I("v_mov_b32", v(XQ+9), s(sNON))
    lds_spin("B", L_FL+8, 4)
    I("v_lshlrev_b32", v(5), 2, v(vLANE))
    for w in range(4): I("ds_read_b32", v(XQ+w), v(5), mod=f"offset:{L_QP+256*w}")
    I("s_lshl_b32", s(sT1), s(sJ), 6)
    a.lgkm(0)
    for st in (2, 1):
        for w in range(st): I("v_add_f32", v(XQ+w), v(XQ+w), v(XQ+w+st))
    I("v_mov_b32_dpp", v(XQ+1), v(XQ), mod=f"row_shl:4 {DPPALL}")
    I("v_cvt_pk_bf16_f32", v(XQ+8), v(XQ), v(XQ+1))
    I("s_mov_b32", "exec_lo", "0x0f0f0f0f"); I("s_mov_b32", "exec_hi", "0x0f0f0f0f")
    I("buffer_store_dwordx2", vr(XQ+8, 2), v(8), sr(S_WO), s(sT1), mod=f"offen {STMOD}")
    I("s_mov_b64", "exec", -1)
    stamp(43, 44, 28)
    I("s_mov_b32", s(sFLAG), 0)
    I("v_lshlrev_b32", v(5), 4, v(vLANE))
    QF = XQ+16
    a.label("K1_QL")
    for b in range(4):
        I("s_mov_b32", s(sT1), b*16384)
        I("buffer_load_dwordx4", vr(QF+4*b), v(5), sr(S_WO), s(sT1), mod="offen sc1")
    I("s_waitcnt", "vmcnt(0)")
    for b in range(4):
        I("v_xor_b32", v(QF+4*b+1), s(sNON), v(QF+4*b+1)); I("v_xor_b32", v(QF+4*b+3), s(sNON), v(QF+4*b+3))
    I("v_or3_b32", v(6), v(QF+1), v(QF+3), v(QF+5)); I("v_or3_b32", v(7), v(QF+7), v(QF+9), v(QF+11))
    I("v_or3_b32", v(6), v(6), v(QF+13), v(QF+15)); I("v_or_b32", v(6), v(6), v(7))
    I("v_cmp_ne_u32", "s[96:97]", 0, v(6))
    a.nop(2)
    I("s_cmp_eq_u64", "s[96:97]", 0); I("s_cbranch_scc1", "K1_QD")
    I("s_add_u32", s(sFLAG), s(sFLAG), 1); I("s_cmp_gt_u32", s(sFLAG), 20000); I("s_cbranch_scc1", "K1_QD")
    if OPT['qslp']: I("s_sleep", OPT['qslp'])
    I("s_branch", "K1_QL")
    a.label("K1_QD")
    I("v_lshlrev_b32", v(5), 3, v(vLANE))
    for b in range(4):
        I("v_mov_b32", v(QF+4*b+1), v(QF+4*b+2))
        I("ds_write_b64", v(5), vr(QF+4*b, 2), mod=f"offset:{L_QS+512*b}")
    I("v_mov_b32", v(5), 0)
    I("ds_write_b32", v(5), v(XQ+9), mod=f"offset:{L_FL}")
    stamp(43, 44, 29)
    for k in range(4): I("v_mov_b32", v(XQ+12+k), -1)
    I("s_mul_i32", s(sT0), s(sBP), REC); srd(S_WS, P_WS, s(sT0), REC)
    I("v_lshlrev_b32", v(7), 4, v(vLANE))
    for k in range(14):
        if k % 4 == 0: I("s_mov_b32", s(sT0), k*1024)
        I("buffer_store_dwordx4", vr(XQ+12), v(7), sr(S_WS), s(sT0), mod=f"offen offset:{(k%4)*1024} {STMOD}")
    I("s_mul_i32", s(sT0), s(sGI), 36); I("s_add_u32", s(sT0), s(sT0), G_OFF)
    srd(S_WS, P_WS, s(sT0), 36)
    I("v_lshlrev_b32", v(7), 2, v(vLANE))
    I("buffer_store_dword", v(XQ+12), v(7), sr(S_WS), 0, mod=f"offen {STMOD}")
    I("s_and_b32", s(sT0), "s2", 7); I("s_lshl_b32", s(sT0), s(sT0), 5); I("s_add_u32", s(sT0), s(sT0), 8)
    I("v_mov_b32", v(9), s(sT0)); I("v_mov_b32", v(8), 1)
    srd(S_X, P_DBG, None, 256)
    I("s_waitcnt", "vmcnt(0)")
    I("s_mov_b64", "exec", 1)
    I("buffer_atomic_add", v(8), v(9), sr(S_X), 0, mod="offen")
    I("s_mov_b64", "exec", -1)
    stamp(43, 44, 30)
    if OPT['prio']: I("s_setprio", 0)
    ring_issue()
    I("s_branch", "K1_GATE")
    a.label("K1_END")
    I("s_endpgm")

hdr = open('cdna_kernels/'+name+'.s.ref').read().split('\n')
top = [l for l in hdr if l.startswith(';') and '@launch' not in l and 'Override' not in l and 'grid=ceil' not in l]
out = "\n".join(top)+"\n"
out += f"; @launch grid=(256,1,1) block=(512,1,1) lds={LDS_SIZE}\n"
out += '.amdgcn_target "amdgcn-amd-amdhsa--gfx950"\n.text\n'
k1()
out += a.text()
out += '.section .rodata,"a"\n'
out += f""".p2align 6
.amdhsa_kernel {K1}
  .amdhsa_next_free_vgpr 256
  .amdhsa_next_free_sgpr 102
  .amdhsa_accum_offset 256
  .amdhsa_group_segment_fixed_size 0
  .amdhsa_kernarg_size 104
  .amdhsa_user_sgpr_count 2
  .amdhsa_user_sgpr_kernarg_segment_ptr 1
  .amdhsa_system_sgpr_workgroup_id_x 1
.end_amdhsa_kernel
"""
open(sys.argv[1], 'w').write(out)
print("instrs", a.ninstr, "bytes", len(out))
```
